```python
import torch

def _softmax(x, axis=-1):
    return torch.softmax(x, dim=axis)
def _gelu(x):
    return torch.nn.functional.gelu(x, approximate="tanh")
def _silu(x):
    return torch.nn.functional.silu(x)
def _sigmoid(x):
    return torch.sigmoid(x)
def _layernorm(x, axis=-1, eps=1e-5):
    m = x.mean(dim=axis, keepdim=True)
    v = x.var(dim=axis, keepdim=True, unbiased=False)
    return (x - m) / torch.sqrt(v + eps)
def _scatter_add(tgt, idx, src, axis=0):
    return tgt.clone().index_add_(axis, idx, src)
def _segment_sum(src, seg, n):
    out = torch.zeros((n,) + src.shape[1:], dtype=src.dtype)
    return out.index_add_(0, seg, src)
def _pad(x, pw):
    flat = tuple(v for pair in reversed(pw) for v in pair)
    return torch.nn.functional.pad(x, flat)

kernel_name = 'concat_heads__spectral_fnet__spectral_fnet__prompt'

def setup_inputs():

    _w = (lambda a: (lambda t: t.to(torch.bfloat16) if t.is_floating_point() else t)(torch.as_tensor(a)))
    def _A_setup():
        B, S, D = 1, 2048, 512
        ns = torch.arange(S)[:, None] * torch.arange(S)[None, :]
        nd = torch.arange(D)[:, None] * torch.arange(D)[None, :]
        Ws_re = torch.cos(-2.0 * torch.pi * ns / S).to(float)
        Ws_im = torch.sin(-2.0 * torch.pi * ns / S).to(float)
        Wd_re = torch.cos(-2.0 * torch.pi * nd / D).to(float)
        Wd_im = torch.sin(-2.0 * torch.pi * nd / D).to(float)
        return {
            "x": _w((lambda *s: torch.randn(*s, dtype=torch.bfloat16) * 0.05)(B, S, D)),
            "dft_seq_re": _w(Ws_re),
            "dft_seq_im": _w(Ws_im),
            "dft_hid_re": _w(Wd_re),
            "dft_hid_im": _w(Wd_im),
        }
    _A_in = _A_setup()

    def _B_setup():
        B, S, D = 1, 2048, 512
        ns = torch.arange(S)[:, None] * torch.arange(S)[None, :]
        nd = torch.arange(D)[:, None] * torch.arange(D)[None, :]
        Ws_re = torch.cos(-2.0 * torch.pi * ns / S).to(float)
        Ws_im = torch.sin(-2.0 * torch.pi * ns / S).to(float)
        Wd_re = torch.cos(-2.0 * torch.pi * nd / D).to(float)
        Wd_im = torch.sin(-2.0 * torch.pi * nd / D).to(float)
        return {
            "x": _w((lambda *s: torch.randn(*s, dtype=torch.bfloat16) * 0.05)(B, S, D)),
            "dft_seq_re": _w(Ws_re),
            "dft_seq_im": _w(Ws_im),
            "dft_hid_re": _w(Wd_re),
            "dft_hid_im": _w(Wd_im),
        }
    _B_in = _B_setup()

    return {
        "A_x": _A_in["x"],
        "A_dft_seq_re": _A_in["dft_seq_re"],
        "A_dft_seq_im": _A_in["dft_seq_im"],
        "A_dft_hid_re": _A_in["dft_hid_re"],
        "A_dft_hid_im": _A_in["dft_hid_im"],
        "B_x": _B_in["x"],
        "B_dft_seq_re": _B_in["dft_seq_re"],
        "B_dft_seq_im": _B_in["dft_seq_im"],
        "B_dft_hid_re": _B_in["dft_hid_re"],
        "B_dft_hid_im": _B_in["dft_hid_im"],
    }

def reference(A_x, A_dft_seq_re, A_dft_seq_im, A_dft_hid_re, A_dft_hid_im, B_x, B_dft_seq_re, B_dft_seq_im, B_dft_hid_re, B_dft_hid_im):
    def _A_ref(x, dft_seq_re, dft_seq_im, dft_hid_re, dft_hid_im):
        a = torch.einsum("bsd,ed->bse", x, dft_hid_re)
        b = torch.einsum("bsd,ed->bse", x, dft_hid_im)
        y = torch.einsum("ts,bse->bte", dft_seq_re, a) - torch.einsum("ts,bse->bte", dft_seq_im, b)
        return y

    def _B_ref(x, dft_seq_re, dft_seq_im, dft_hid_re, dft_hid_im):
        a = torch.einsum("bsd,ed->bse", x, dft_hid_re)
        b = torch.einsum("bsd,ed->bse", x, dft_hid_im)
        y = torch.einsum("ts,bse->bte", dft_seq_re, a) - torch.einsum("ts,bse->bte", dft_seq_im, b)
        return y

    a = _A_ref(A_x, A_dft_seq_re, A_dft_seq_im, A_dft_hid_re, A_dft_hid_im)
    b = _B_ref(B_x, B_dft_seq_re, B_dft_seq_im, B_dft_hid_re, B_dft_hid_im)
    return torch.concatenate([a, b], axis=-1)
```

```python
import sys
NAME="concat_heads__spectral_fnet__spectral_fnet__prompt"
class E:
    def __init__(s): s.l=[]
    def __call__(s,t):
        for x in t.strip("\n").split("\n"): s.l.append("    "+x.strip() if not x.strip().endswith(":") else x.strip())
    def txt(s): return "\n".join(s.l)+"\n"
def vr(a,n=1): return f"v{a}" if n==1 else f"v[{a}:{a+n-1}]"

HEADER=open("cdna_kernels/%s.s.ref"%NAME).read().split("; Override launch")[0]

def srd(e,s,lo,hi,n):
    e(f"s_mov_b32 s{s}, s{lo}\ns_mov_b32 s{s+1}, s{hi}\ns_mov_b32 s{s+2}, {hex(n)}\ns_mov_b32 s{s+3}, 0x20000")

def out_swaps(e,D,Q):
    for g in range(4):
        base=Q+4*(g>>1)+2*(g&1)
        e(f"v_cvt_pk_bf16_f32 v{base}, v{D+4*g}, v{D+4*g+1}")
        e(f"v_cvt_pk_bf16_f32 v{base+1}, v{D+4*g+2}, v{D+4*g+3}")
    e("s_nop 1")
    for gp in range(2):
        b=Q+4*gp
        e(f"v_permlane32_swap_b32 v{b}, v{b+2}")
        e(f"v_permlane32_swap_b32 v{b+1}, v{b+3}")
    e("s_nop 1")
    for x in range(4):
        e(f"v_permlane16_swap_b32 v{Q+x}, v{Q+4+x}")

def phase1(e, st_flags="", fused=False):
    L=2; T=3
    e(f"""
    v_lshrrev_b32 v1, 6, v0
    v_and_b32 v{L}, 63, v0
    s_and_b32 s21, s2, 7
    v_readfirstlane_b32 s20, v1
    s_bfe_u32 s22, s2, 0x40003
    s_bfe_u32 s23, s2, 0x10007
    v_lshrrev_b32 v3, 2, v{L}
    v_lshlrev_b32 v3, 17, v3
    v_and_b32 v4, 3, v{L}
    v_lshl_or_b32 v3, v4, 4, v3
    s_lshl_b32 s24, s20, 14
    s_lshl_b32 s25, s21, 10
    s_add_u32 s24, s24, s25
    s_lshl_b32 s25, s22, 6
    s_add_u32 s24, s24, s25
    s_add_u32 s25, s24, 8192
    s_lshl_b32 s26, s20, 11
    s_add_u32 s27, s26, 1024
    s_cmp_eq_u32 s23, 0
    s_waitcnt lgkmcnt(0)
    s_cselect_b32 s12, s4, s6
    s_cselect_b32 s13, s5, s7
    s_mov_b32 s14, 0x200000
    s_mov_b32 s15, 0x20000
    s_mov_b32 m0, s26
    s_nop 0
    buffer_load_dwordx4 v3, s[12:15], s24 offen lds
    s_mov_b32 m0, s27
    s_nop 0
    buffer_load_dwordx4 v3, s[12:15], s25 offen lds
    """)
    srd(e,16,8,9,0x400000)
    A1=8
    B2=12
    vTR=20; vEW=21; vER=22; vZ=23
    H=24; M=25
    e(f"""
    v_lshrrev_b32 v{H}, 5, v{L}
    v_and_b32 v{M}, 31, v{L}
    ; --- A1: P=(m>>1)&7 c=m&1
    v_bfe_u32 v4, v{M}, 1, 3
    v_and_b32 v5, 1, v{M}
    v_and_b32 v6, 15, v{M}
    v_cmp_eq_u32 vcc, 1, v6
    v_cvt_f32_u32 v7, v4
    v_cvt_f32_u32 v26, v5
    v_mul_f32 v7, 0x3d800000, v7
    v_mul_f32 v26, 0x3e800000, v26
    v_cndmask_b32 v7, v7, 0.5, vcc
    v_cndmask_b32 v26, v26, 0, vcc
    v_lshlrev_b32 v27, 3, v{H}
    v_cvt_f32_u32 v27, v27
    v_fma_f32 v26, v27, v7, v26
    """)
    for jj in range(8):
        if jj>0: e(f"v_add_f32 v26, v26, v7")
        e(f"v_cos_f32 v{28+jj}, v26")
    e("s_nop 0")
    for q in range(4): e(f"v_cvt_pk_bf16_f32 v{A1+q}, v{28+2*q}, v{29+2*q}")
    e(f"""
    v_lshrrev_b32 v4, 4, v{M}
    v_and_b32 v5, 7, v{M}
    v_lshl_or_b32 v4, v4, 3, v5
    v_bfe_u32 v5, v{M}, 3, 1
    v_cvt_f32_u32 v6, v5
    v_mul_f32 v6, 0x3e800000, v6
    s_cmp_eq_u32 s20, 0
    s_cbranch_scc1 P1_SPECIAL
    v_lshlrev_b32 v7, 4, v4
    v_add_u32 v7, s20, v7
    v_mov_b32 v26, v6
    v_add_f32 v27, 0xbe800000, v6
    v_mov_b32 v28, -1
    s_branch P1_COMMON
    P1_SPECIAL:
    v_lshlrev_b32 v7, 4, v4
    v_cmp_le_u32 vcc, 8, v4
    v_subrev_u32 v29, 120, v7
    v_mov_b32 v28, 0xffff
    v_mov_b32 v30, 0xffff0000
    v_cndmask_b32 v7, v7, v29, vcc
    v_cndmask_b32 v28, v28, v30, vcc
    v_cmp_eq_u32 vcc, 8, v{M}
    v_mov_b32 v29, 0x80
    v_mov_b32 v26, v6
    v_cndmask_b32 v7, v7, v29, vcc
    v_cndmask_b32 v26, v26, 0, vcc
    s_nop 0
    v_mov_b32 v27, v26
    P1_COMMON:
    v_cvt_f32_u32 v7, v7
    v_lshlrev_b32 v29, 2, v{H}
    v_cvt_f32_u32 v29, v29
    v_mul_f32 v7, 0x3b800000, v7
    v_fma_f32 v26, v29, v7, v26
    v_fma_f32 v27, v29, v7, v27
    v_mul_f32 v29, 4.0, v7
    """)
    for ks in range(2):
        for x in range(4):
            e(f"v_cos_f32 v30, v26\nv_cos_f32 v31, v27")
            if x<3: e("v_add_f32 v26, v26, v7\nv_add_f32 v27, v27, v7")
            elif ks==0: e("v_fma_f32 v26, v7, v36, v26\nv_fma_f32 v27, v7, v36, v27") if False else e("v_add_f32 v26, v26, v7\nv_add_f32 v27, v27, v7\nv_add_f32 v26, v26, v29\nv_add_f32 v27, v27, v29")
            else: e("s_nop 0")
            e(f"v_cvt_pk_bf16_f32 v{B2+4*ks+x}, v30, v31")
    for q in range(8): e(f"v_and_b32 v{B2+q}, v{B2+q}, v28")
    e(f"""
    v_bfe_u32 v4, v{L}, 2, 2
    v_lshl_or_b32 v4, v{H}, 3, v4
    v_lshlrev_b32 v4, 6, v4
    v_bfe_u32 v5, v{L}, 4, 1
    v_lshl_or_b32 v4, v5, 5, v4
    v_and_b32 v5, 3, v{L}
    v_lshl_or_b32 v4, v5, 3, v4
    v_add_u32 v{vTR}, s26, v4
    s_lshl_b32 s28, s20, 8
    s_add_u32 s28, s28, 16384
    v_lshlrev_b32 v4, 3, v{M}
    v_lshl_or_b32 v5, v{H}, 12, v4
    v_add_u32 v{vEW}, s28, v5
    s_add_u32 s28, s26, 16384
    v_lshl_or_b32 v5, v{H}, 9, v4
    v_add_u32 v{vER}, s28, v5
    v_and_b32 v4, 7, v{L}
    v_lshlrev_b32 v4, 14, v4
    v_bfe_u32 v5, v{L}, 3, 1
    v_lshl_or_b32 v4, v5, 6, v4
    v_bfe_u32 v5, v{L}, 4, 1
    v_lshl_or_b32 v4, v5, 5, v4
    v_lshl_or_b32 v{vZ}, v{H}, 4, v4
    s_lshl_b32 s28, s23, 21
    s_lshl_b32 s29, s20, 18
    s_add_u32 s28, s28, s29
    s_lshl_b32 s29, s21, 11
    s_add_u32 s28, s28, s29
    s_lshl_b32 s29, s22, 7
    s_add_u32 s28, s28, s29
    s_add_u32 s29, s28, 0x20000
    """)
    B0=28; B1=32; Da=40; Db=56; X=72
    e(f"""
    s_waitcnt vmcnt(1)
    ds_read_b64_tr_b16 v[{B0}:{B0+1}], v{vTR} offset:0
    ds_read_b64_tr_b16 v[{B0+2}:{B0+3}], v{vTR} offset:256
    s_waitcnt vmcnt(0)
    ds_read_b64_tr_b16 v[{B1}:{B1+1}], v{vTR} offset:1024
    ds_read_b64_tr_b16 v[{B1+2}:{B1+3}], v{vTR} offset:1280
    s_waitcnt lgkmcnt(2)
    v_mfma_f32_32x32x16_bf16 v[{Da}:{Da+15}], v[{A1}:{A1+3}], v[{B0}:{B0+3}], 0
    s_waitcnt lgkmcnt(0)
    v_mfma_f32_32x32x16_bf16 v[{Db}:{Db+15}], v[{A1}:{A1+3}], v[{B1}:{B1+3}], 0
    s_nop 10
    """)
    for mu in range(4): e(f"v_cvt_pk_bf16_f32 v{X+2*mu}, v{Da+2*mu}, v{Da+2*mu+1}")
    e("s_nop 6")
    offs=[0,2048,8192,10240]
    for mu in range(4):
        e(f"v_cvt_pk_bf16_f32 v{X+2*mu+1}, v{Db+2*mu}, v{Db+2*mu+1}")
        e(f"ds_write_b64 v{vEW}, v[{X+2*mu}:{X+2*mu+1}] offset:{offs[mu]}")
    e("s_waitcnt lgkmcnt(0)\ns_barrier")
    F=28
    for ks in range(2):
        for sg in range(2):
            e(f"ds_read_b64 v[{F+4*ks+2*sg}:{F+4*ks+2*sg+1}], v{vER} offset:{(4*ks+sg)*256}")
    e(f"""
    s_waitcnt lgkmcnt(2)
    v_mfma_f32_32x32x16_bf16 v[{Da}:{Da+15}], v[{F}:{F+3}], v[{B2}:{B2+3}], 0
    s_waitcnt lgkmcnt(0)
    v_mfma_f32_32x32x16_bf16 v[{Da}:{Da+15}], v[{F+4}:{F+7}], v[{B2+4}:{B2+7}], v[{Da}:{Da+15}]
    s_nop 11
    """)
    out_swaps(e,Da,X)
    e(f"""
    buffer_store_dwordx4 v[{X}:{X+3}], v{vZ}, s[16:19], s28 offen {st_flags}
    buffer_store_dwordx4 v[{X+4}:{X+7}], v{vZ}, s[16:19], s29 offen {st_flags}
    """)

def p2_setup(e, idreg):
    e(f"""
    s_and_b32 s30, {idreg}, 1
    s_lshr_b32 s31, {idreg}, 1
    s_and_b32 s32, s31, 127
    s_lshr_b32 s34, s32, 4
    s_and_b32 s35, s32, 15
    s_lshl_b32 s36, s35, 4
    s_add_u32 s33, s36, s34
    s_sub_u32 s37, s36, 120
    s_cmp_ge_u32 s35, 8
    s_cselect_b32 s37, s37, s36
    s_cmp_eq_u32 s34, 0
    s_cselect_b32 s33, s37, s33
    s_cmp_eq_u32 s31, 128
    s_cselect_b32 s33, 128, s33
    """)

def p2_dma(e, ld_flags=""):
    L=2
    e(f"""
    v_lshlrev_b32 v3, 4, v{L}
    s_lshl_b32 s38, s30, 21
    s_lshl_b32 s39, s32, 14
    s_add_u32 s38, s38, s39
    s_lshl_b32 s26, s20, 11
    s_add_u32 s38, s38, s26
    s_add_u32 s39, s38, 1024
    s_add_u32 s27, s26, 1024
    s_cmp_eq_u32 s32, 0
    s_cbranch_scc0 P2_REG
    v_bfe_u32 v4, v{L}, 2, 1
    s_lshr_b32 s40, s31, 1
    v_lshlrev_b32 v4, 30, v4
    v_add_u32 v3, s40, v3
    v_add_u32 v3, v4, v3
    P2_REG:
    s_mov_b32 m0, s26
    s_nop 0
    buffer_load_dwordx4 v3, s[16:19], s38 offen {ld_flags} lds
    s_mov_b32 m0, s27
    s_nop 0
    buffer_load_dwordx4 v3, s[16:19], s39 offen {ld_flags} lds
    """)

B1=8; TWC=40; TWS=48; A2=56; B3=64; vTR2=80; vXW=81; vXR=82; vO=86
def p2_consts(e):
    L=2; N=4; G=5
    e(f"""
    v_and_b32 v{N}, 15, v{L}
    v_lshrrev_b32 v{G}, 4, v{L}
    v_cvt_f32_u32 v6, v{N}
    v_cvt_f32_u32 v7, v{G}
    v_mul_f32 v87, 0x3d000000, v6
    v_add_f32 v88, v7, v7
    v_mul_f32 v88, v88, v87
    v_mul_f32 v89, 0x41000000, v87
    s_mov_b32 s41, 0x80008000
    s_mov_b32 s42, 0x80000000
    """)
    for ks in range(2):
        for i in range(2):
            f0=B1+ (0*2+0)*8 ;
            fr=lambda eh,cp: B1+((eh*2+cp)*2+ks)*4
            e(f"""
            v_add_f32 v90, v88, v87
            v_cos_f32 v91, v88
            v_cos_f32 v92, v90
            v_sin_f32 v93, v88
            v_sin_f32 v94, v90
            v_add_f32 v88, v88, v89
            v_cvt_pk_bf16_f32 v{fr(0,0)+2*i}, v91, v92
            v_cvt_pk_bf16_f32 v{fr(0,1)+2*i+1}, v91, v92
            v_cvt_pk_bf16_f32 v{fr(0,0)+2*i+1}, v93, v94
            v_cvt_pk_bf16_f32 v{fr(0,1)+2*i}, -v93, -v94
            v_cvt_pk_bf16_f32 v{fr(1,0)+2*i}, v91, -v92
            v_cvt_pk_bf16_f32 v{fr(1,1)+2*i+1}, v91, -v92
            v_cvt_pk_bf16_f32 v{fr(1,0)+2*i+1}, v93, -v94
            v_cvt_pk_bf16_f32 v{fr(1,1)+2*i}, -v93, v94
            """)
    e(f"""
    v_mul_f32 v87, 0x3b000000, v6
    v_mul_f32 v89, 4.0, v7
    """)
    for eh in range(2):
        if eh==1: e("v_add_f32 v87, 0x3d000000, v87")
        e("v_mul_f32 v88, v89, v87")
        for r in range(4):
            e(f"v_cos_f32 v{TWC+4*eh+r}, v88\nv_sin_f32 v{TWS+4*eh+r}, v88")
            if r<3: e("v_add_f32 v88, v88, v87")
    e(f"""
    v_mul_f32 v87, 0x3d800000, v6
    v_mul_f32 v88, v89, v87
    """)
    for r in range(4):
        e(f"v_cos_f32 v{90+r}, v88\nv_sin_f32 v{94+r}, v88")
        if r<3: e("v_add_f32 v88, v88, v87")
    e(f"""
    s_nop 0
    v_cvt_pk_bf16_f32 v{A2+0}, v90, v91
    v_cvt_pk_bf16_f32 v{A2+1}, v92, v93
    v_cvt_pk_bf16_f32 v{A2+2}, v94, v95
    v_cvt_pk_bf16_f32 v{A2+3}, v96, v97
    v_cvt_pk_bf16_f32 v{A2+4}, -v94, -v95
    v_cvt_pk_bf16_f32 v{A2+5}, -v96, -v97
    v_cvt_pk_bf16_f32 v{A2+6}, v90, v91
    v_cvt_pk_bf16_f32 v{A2+7}, v92, v93
    """)
    e(f"""
    v_lshlrev_b32 v6, 3, v{L}
    v_add_u32 v{vTR2}, s26, v6
    s_add_u32 s40, s26, 16384
    v_lshlrev_b32 v6, 2, v{N}
    v_lshl_or_b32 v6, v{G}, 9, v6
    v_add_u32 v{vXW}, s40, v6
    v_and_b32 v6, 31, v{L}
    v_lshrrev_b32 v7, 5, v{L}
    s_and_b32 s43, s20, 3
    s_lshr_b32 s44, s20, 2
    s_lshl_b32 s45, s43, 7
    v_add_u32 v87, s45, v6
    v_lshlrev_b32 v88, 13, v7
    v_add_u32 v88, 16384, v88
    s_cmp_eq_u32 s44, 0
    s_cselect_b32 s46, 0, -1
    s_cselect_b32 s47, 0, 1
    """)
    for tau in range(4):
        e(f"""
        v_xor_b32 v89, s46, v87
        v_add_u32 v89, s47, v89
        v_and_b32 v89, 0x1ff, v89
        v_lshl_add_u32 v{vXR+tau}, v89, 2, v88
        """)
        if tau<3: e("v_add_u32 v87, 32, v87")
    e(f"""
    v_and_b32 v89, 7, v6
    v_lshlrev_b32 v89, 8, v89
    v_add_u32 v89, s33, v89
    v_cvt_f32_u32 v90, v89
    v_mul_f32 v90, 0x3a000000, v90
    v_lshlrev_b32 v91, 2, v7
    v_cvt_f32_u32 v91, v91
    v_mul_f32 v91, v91, v90
    v_lshrrev_b32 v92, 3, v6
    v_cmp_eq_u32 s[48:49], 0, v92
    v_cmp_eq_u32 s[50:51], 1, v92
    v_cmp_eq_u32 s[52:53], 2, v92
    v_cmp_eq_u32 s[54:55], 3, v92
    """)
    for x in range(4):
        e(f"v_cos_f32 v93, v91\nv_sin_f32 v94, v91")
        e("v_add_f32 v91, v91, v90" if x<3 else "s_nop 0")
        e(f"v_cvt_pk_bf16_f32 v95, v93, v94")
        for tau in range(4):
            e(f"v_cndmask_b32 v{B3+4*tau+x}, 0, v95, s[{48+2*tau}:{49+2*tau}]")
    e(f"""
    v_and_b32 v89, 7, v{L}
    v_lshlrev_b32 v89, 8, v89
    v_add_u32 v89, s33, v89
    v_xor_b32 v89, s46, v89
    v_add_u32 v89, s47, v89
    v_and_b32 v89, 0x7ff, v89
    v_lshlrev_b32 v89, 11, v89
    v_bfe_u32 v90, v{L}, 3, 1
    v_lshl_or_b32 v89, v90, 6, v89
    v_bfe_u32 v90, v{L}, 4, 1
    v_lshl_or_b32 v89, v90, 5, v89
    v_lshl_or_b32 v{vO}, v7, 4, v89
    s_lshl_b32 s56, s30, 10
    s_lshl_b32 s57, s43, 8
    s_add_u32 s56, s56, s57
    s_add_u32 s57, s56, 128
    """)

def p2_main(e, st_flags=""):
    A=88; D1=96; BF=112; D2=96; X=120; F=96; D3=112; Q=88
    e("s_waitcnt vmcnt(0)")
    for ks in range(2):
        for i in range(2):
            e(f"ds_read_b64_tr_b16 v[{A+4*ks+2*i}:{A+4*ks+2*i+1}], v{vTR2} offset:{ks*1024+i*512}")
    e("s_waitcnt lgkmcnt(2)")
    for ks in range(2):
        if ks==1: e("s_waitcnt lgkmcnt(0)")
        for eh in range(2):
            for cp in range(2):
                d=D1+(eh*2+cp)*4; f=B1+((eh*2+cp)*2+ks)*4
                c="0" if ks==0 else f"v[{d}:{d+3}]"
                e(f"v_mfma_f32_16x16x32_bf16 v[{d}:{d+3}], v[{A+4*ks}:{A+4*ks+3}], v[{f}:{f+3}], {c}")
    e("s_nop 5")
    for eh in range(2):
        re=D1+eh*8; im=re+4
        for p in range(2):
            c=TWC+4*eh+2*p; s=TWS+4*eh+2*p; t=A+4*p; u=A+4*p+2
            e(f"v_pk_mul_f32 v[{t}:{t+1}], v[{re+2*p}:{re+2*p+1}], v[{c}:{c+1}]")
            e(f"v_pk_mul_f32 v[{u}:{u+1}], v[{im+2*p}:{im+2*p+1}], v[{c}:{c+1}]")
            e(f"v_pk_fma_f32 v[{t}:{t+1}], v[{im+2*p}:{im+2*p+1}], v[{s}:{s+1}], v[{t}:{t+1}]")
            e(f"v_pk_fma_f32 v[{u}:{u+1}], v[{re+2*p}:{re+2*p+1}], v[{s}:{s+1}], v[{u}:{u+1}] neg_lo:[1,0,0] neg_hi:[1,0,0]")
        for p in range(2):
            t=A+4*p; u=t+2
            e(f"v_cvt_pk_bf16_f32 v{BF+4*eh+p}, v{t}, v{t+1}")
            e(f"v_cvt_pk_bf16_f32 v{BF+4*eh+2+p}, v{u}, v{u+1}")
    e("s_nop 1")
    for eh in range(2):
        for cpp in range(2):
            d=D2+(eh*2+cpp)*4
            e(f"v_mfma_f32_16x16x32_bf16 v[{d}:{d+3}], v[{A2+4*cpp}:{A2+4*cpp+3}], v[{BF+4*eh}:{BF+4*eh+3}], 0")
    e("s_nop 7")
    for r in range(4):
        e(f"v_cvt_pk_bf16_f32 v{X+2*r}, v{D2+r}, v{D2+4+r}")
        e(f"v_cvt_pk_bf16_f32 v{X+2*r+1}, v{D2+8+r}, v{D2+12+r}")
        e(f"ds_write2_b32 v{vXW}, v{X+2*r}, v{X+2*r+1} offset0:{32*r} offset1:{32*r+16}")
    e("s_waitcnt lgkmcnt(0)\ns_barrier")
    e("s_and_b32 s58, s32, 127\ns_cmp_eq_u32 s58, 0\ns_cselect_b32 s58, s44, 0\ns_cmp_lg_u32 s58, 0\ns_cbranch_scc1 P2_END")
    for tau in range(4):
        e(f"ds_read2st64_b32 v[{F+4*tau}:{F+4*tau+1}], v{vXR+tau} offset0:0 offset1:8")
        e(f"ds_read2st64_b32 v[{F+4*tau+2}:{F+4*tau+3}], v{vXR+tau} offset0:16 offset1:24")
    for tau in range(4):
        e(f"s_waitcnt lgkmcnt({6-2*tau})")
        c="0" if tau==0 else f"v[{D3}:{D3+15}]"
        e(f"v_mfma_f32_32x32x16_bf16 v[{D3}:{D3+15}], v[{F+4*tau}:{F+4*tau+3}], v[{B3+4*tau}:{B3+4*tau+3}], {c}")
    e("s_nop 11")
    out_swaps(e,D3,Q)
    e(f"""
    buffer_store_dwordx4 v[{Q}:{Q+3}], v{vO}, s[12:15], s56 offen {st_flags}
    buffer_store_dwordx4 v[{Q+4}:{Q+7}], v{vO}, s[12:15], s57 offen {st_flags}
    P2_END:
    """)

def kd(name,vg,sg=102):
    return f""".amdhsa_kernel {name}
  .amdhsa_next_free_vgpr {vg}
  .amdhsa_next_free_sgpr {sg}
  .amdhsa_accum_offset {vg}
  .amdhsa_group_segment_fixed_size 0
  .amdhsa_kernarg_size 104
  .amdhsa_user_sgpr_count 2
  .amdhsa_user_sgpr_kernarg_segment_ptr 1
  .amdhsa_system_sgpr_workgroup_id_x 1
.end_amdhsa_kernel
"""
def func(name,body):
    return f".globl {name}\n.p2align 8\n.type {name},@function\n{name}:\n{body}"

def two_kernel(zst="", zld="", ost=""):
    k1=NAME+"_kernel"; k2="fnet_p2_kernel"
    e=E()
    e("""s_cmp_ge_u32 s2, 256
    s_cbranch_scc1 K1_END
    s_load_dwordx2 s[4:5], s[0:1], 0
    s_load_dwordx2 s[6:7], s[0:1], 40
    s_load_dwordx2 s[8:9], s[0:1], 96""")
    phase1(e,zst)
    e("K1_END:\ns_endpgm")
    f=E()
    f("""s_cmp_ge_u32 s2, 258
    s_cbranch_scc1 P2_END
    s_load_dwordx2 s[8:9], s[0:1], 96
    s_load_dwordx2 s[10:11], s[0:1], 80
    v_lshrrev_b32 v1, 6, v0
    v_and_b32 v2, 63, v0
    s_nop 0
    v_readfirstlane_b32 s20, v1""")
    p2_setup(f,"s2")
    f("s_waitcnt lgkmcnt(0)")
    srd(f,16,8,9,0x400000)
    p2_dma(f,zld)
    srd(f,12,10,11,0x400000)
    p2_consts(f)
    p2_main(f,ost)
    f("s_endpgm")
    s=HEADER+f"; @launch kernel={k1} grid=(256,1,1) block=(512,1,1) lds=32768\n; @launch kernel={k2} grid=(258,1,1) block=(512,1,1) lds=32768\n"
    s+='.amdgcn_target "amdgcn-amd-amdhsa--gfx950"\n.text\n'
    s+=func(k1,e.txt())+func(k2,f.txt())
    s+='.section .rodata,"a"\n.p2align 6\n'+kd(k1,80,64)+".p2align 6\n"+kd(k2,128,64)
    return s
if __name__=="__main__":
    mode=sys.argv[1]; out=sys.argv[2]
    if mode=="two": s=two_kernel(*sys.argv[3:])
    open(out,"w").write(s)
```

```python
import sys
NAME="concat_heads__spectral_fnet__spectral_fnet__prompt"
class E:
    def __init__(s): s.l=[]
    def __call__(s,t):
        for x in t.strip("\n").split("\n"): s.l.append("    "+x.strip() if not x.strip().endswith(":") else x.strip())
    def txt(s): return "\n".join(s.l)+"\n"
def vr(a,n=1): return f"v{a}" if n==1 else f"v[{a}:{a+n-1}]"

HEADER=open("cdna_kernels/%s.s.ref"%NAME).read().split("; Override launch")[0]

def srd(e,s,lo,hi,n):
    e(f"s_mov_b32 s{s}, s{lo}\ns_mov_b32 s{s+1}, s{hi}\ns_mov_b32 s{s+2}, {hex(n)}\ns_mov_b32 s{s+3}, 0x20000")

DIAG=False
def stamp(e,k):
    if DIAG: e(f"s_memrealtime s[70:71]\ns_waitcnt lgkmcnt(0)\ns_mov_b32 s{72+k}, s70")
def stamp_out(e,base,dbgoff,late):
    if not DIAG: return
    e(f"""
    s_waitcnt vmcnt(0)
    s_memrealtime s[70:71]
    s_waitcnt lgkmcnt(0)
    s_mov_b32 s77, s70
    s_sub_u32 s84, s68, {dbgoff}
    s_subb_u32 s85, s69, 0
    s_mov_b32 s86, 256
    s_mov_b32 s87, 0x20000
    v_mov_b32 v1, {base*4+24}
    v_mov_b32 v2, s77
    s_not_b32 s78, s72
    v_mov_b32 v3, s78
    s_mov_b64 exec, 1
    buffer_atomic_umax v2, v1, s[84:87], 0 offen
    buffer_atomic_umax v3, v1, s[84:87], 0 offen offset:4
    s_cmp_eq_u32 s2, {DIAGWG}
    s_cbranch_scc0 DIAG_SKIP{base}
    s_cmp_eq_u32 s20, 0
    s_cbranch_scc0 DIAG_SKIP{base}
    v_mov_b32 v1, {base*4}
    """)
    for k in range(6):
        e(f"v_mov_b32 v2, s{72+k}\nbuffer_store_dword v2, v1, s[84:87], 0 offen offset:{4*k}\ns_nop 1")
    e(f"DIAG_SKIP{base}:")
DIAGWG=0
def out_swaps(e,D,Q):
    for g in range(4):
        base=Q+4*(g>>1)+2*(g&1)
        e(f"v_cvt_pk_bf16_f32 v{base}, v{D+4*g}, v{D+4*g+1}")
        e(f"v_cvt_pk_bf16_f32 v{base+1}, v{D+4*g+2}, v{D+4*g+3}")
    e("s_nop 1")
    for gp in range(2):
        b=Q+4*gp
        e(f"v_permlane32_swap_b32 v{b}, v{b+2}")
        e(f"v_permlane32_swap_b32 v{b+1}, v{b+3}")
    e("s_nop 1")
    for x in range(4):
        e(f"v_permlane16_swap_b32 v{Q+x}, v{Q+4+x}")

def phase1(e, st_flags="", fused=False):
    L=2; T=3
    e(f"""
    v_lshrrev_b32 v1, 6, v0
    v_and_b32 v{L}, 63, v0
    s_and_b32 s21, s2, 7
    v_readfirstlane_b32 s20, v1
    s_bfe_u32 s22, s2, 0x40003
    s_bfe_u32 s23, s2, 0x10007
    v_lshrrev_b32 v3, 2, v{L}
    v_lshlrev_b32 v3, 17, v3
    v_and_b32 v4, 3, v{L}
    v_lshl_or_b32 v3, v4, 4, v3
    s_lshl_b32 s24, s20, 14
    s_lshl_b32 s25, s21, 10
    s_add_u32 s24, s24, s25
    s_lshl_b32 s25, s22, 6
    s_add_u32 s24, s24, s25
    s_add_u32 s25, s24, 8192
    s_lshl_b32 s26, s20, 11
    s_add_u32 s27, s26, 1024
    s_cmp_eq_u32 s23, 0
    s_waitcnt lgkmcnt(0)
    s_cselect_b32 s12, s4, s6
    s_cselect_b32 s13, s5, s7
    s_mov_b32 s14, 0x200000
    s_mov_b32 s15, 0x20000
    s_mov_b32 m0, s26
    s_nop 0
    buffer_load_dwordx4 v3, s[12:15], s24 offen lds
    s_mov_b32 m0, s27
    s_nop 0
    buffer_load_dwordx4 v3, s[12:15], s25 offen lds
    """)
    stamp(e,1)
    srd(e,16,8,9,0x400000)
    A1=8
    B2=12
    vTR=20; vEW=21; vER=22; vZ=23
    H=24; M=25
    e(f"""
    v_lshrrev_b32 v{H}, 5, v{L}
    v_and_b32 v{M}, 31, v{L}
    ; --- A1: P=(m>>1)&7 c=m&1
    v_bfe_u32 v4, v{M}, 1, 3
    v_and_b32 v5, 1, v{M}
    v_and_b32 v6, 15, v{M}
    v_cmp_eq_u32 vcc, 1, v6
    v_cvt_f32_u32 v7, v4
    v_cvt_f32_u32 v26, v5
    v_mul_f32 v7, 0x3d800000, v7
    v_mul_f32 v26, 0x3e800000, v26
    v_cndmask_b32 v7, v7, 0.5, vcc
    v_cndmask_b32 v26, v26, 0, vcc
    v_lshlrev_b32 v27, 3, v{H}
    v_cvt_f32_u32 v27, v27
    v_fma_f32 v26, v27, v7, v26
    """)
    for jj in range(8):
        if jj>0: e(f"v_add_f32 v26, v26, v7")
        e(f"v_cos_f32 v{28+jj}, v26")
    e("s_nop 0")
    for q in range(4): e(f"v_cvt_pk_bf16_f32 v{A1+q}, v{28+2*q}, v{29+2*q}")
    e(f"""
    v_lshrrev_b32 v4, 4, v{M}
    v_and_b32 v5, 7, v{M}
    v_lshl_or_b32 v4, v4, 3, v5
    v_bfe_u32 v5, v{M}, 3, 1
    v_cvt_f32_u32 v6, v5
    v_mul_f32 v6, 0x3e800000, v6
    s_cmp_eq_u32 s20, 0
    s_cbranch_scc1 P1_SPECIAL
    v_lshlrev_b32 v7, 4, v4
    v_add_u32 v7, s20, v7
    v_mov_b32 v26, v6
    v_add_f32 v27, 0xbe800000, v6
    v_mov_b32 v28, -1
    s_branch P1_COMMON
    P1_SPECIAL:
    v_lshlrev_b32 v7, 4, v4
    v_cmp_le_u32 vcc, 8, v4
    v_subrev_u32 v29, 120, v7
    v_mov_b32 v28, 0xffff
    v_mov_b32 v30, 0xffff0000
    v_cndmask_b32 v7, v7, v29, vcc
    v_cndmask_b32 v28, v28, v30, vcc
    v_cmp_eq_u32 vcc, 8, v{M}
    v_mov_b32 v29, 0x80
    v_mov_b32 v26, v6
    v_cndmask_b32 v7, v7, v29, vcc
    v_cndmask_b32 v26, v26, 0, vcc
    s_nop 0
    v_mov_b32 v27, v26
    P1_COMMON:
    v_cvt_f32_u32 v7, v7
    v_lshlrev_b32 v29, 2, v{H}
    v_cvt_f32_u32 v29, v29
    v_mul_f32 v7, 0x3b800000, v7
    v_fma_f32 v26, v29, v7, v26
    v_fma_f32 v27, v29, v7, v27
    v_mul_f32 v29, 4.0, v7
    """)
    for ks in range(2):
        for x in range(4):
            e(f"v_cos_f32 v30, v26\nv_cos_f32 v31, v27")
            if x<3: e("v_add_f32 v26, v26, v7\nv_add_f32 v27, v27, v7")
            elif ks==0: e("v_fma_f32 v26, v7, v36, v26\nv_fma_f32 v27, v7, v36, v27") if False else e("v_add_f32 v26, v26, v7\nv_add_f32 v27, v27, v7\nv_add_f32 v26, v26, v29\nv_add_f32 v27, v27, v29")
            else: e("s_nop 0")
            e(f"v_cvt_pk_bf16_f32 v{B2+4*ks+x}, v30, v31")
    for q in range(8): e(f"v_and_b32 v{B2+q}, v{B2+q}, v28")
    e(f"""
    v_bfe_u32 v4, v{L}, 2, 2
    v_lshl_or_b32 v4, v{H}, 3, v4
    v_lshlrev_b32 v4, 6, v4
    v_bfe_u32 v5, v{L}, 4, 1
    v_lshl_or_b32 v4, v5, 5, v4
    v_and_b32 v5, 3, v{L}
    v_lshl_or_b32 v4, v5, 3, v4
    v_add_u32 v{vTR}, s26, v4
    s_lshl_b32 s28, s20, 8
    s_add_u32 s28, s28, 16384
    v_lshlrev_b32 v4, 3, v{M}
    v_lshl_or_b32 v5, v{H}, 12, v4
    v_add_u32 v{vEW}, s28, v5
    s_add_u32 s28, s26, 16384
    v_lshl_or_b32 v5, v{H}, 9, v4
    v_add_u32 v{vER}, s28, v5
    v_and_b32 v4, 7, v{L}
    v_lshlrev_b32 v4, 14, v4
    v_bfe_u32 v5, v{L}, 3, 1
    v_lshl_or_b32 v4, v5, 6, v4
    v_bfe_u32 v5, v{L}, 4, 1
    v_lshl_or_b32 v4, v5, 5, v4
    v_lshl_or_b32 v{vZ}, v{H}, 4, v4
    s_lshl_b32 s28, s23, 21
    s_lshl_b32 s29, s20, 18
    s_add_u32 s28, s28, s29
    s_lshl_b32 s29, s21, 11
    s_add_u32 s28, s28, s29
    s_lshl_b32 s29, s22, 7
    s_add_u32 s28, s28, s29
    s_add_u32 s29, s28, 0x20000
    """)
    B0=28; B1=32; Da=40; Db=56; X=72
    stamp(e,2)
    if DIAG: e("s_waitcnt vmcnt(0)")
    stamp(e,3)
    e(f"""
    s_waitcnt vmcnt(1)
    ds_read_b64_tr_b16 v[{B0}:{B0+1}], v{vTR} offset:0
    ds_read_b64_tr_b16 v[{B0+2}:{B0+3}], v{vTR} offset:256
    s_waitcnt vmcnt(0)
    ds_read_b64_tr_b16 v[{B1}:{B1+1}], v{vTR} offset:1024
    ds_read_b64_tr_b16 v[{B1+2}:{B1+3}], v{vTR} offset:1280
    s_waitcnt lgkmcnt(2)
    v_mfma_f32_32x32x16_bf16 v[{Da}:{Da+15}], v[{A1}:{A1+3}], v[{B0}:{B0+3}], 0
    s_waitcnt lgkmcnt(0)
    v_mfma_f32_32x32x16_bf16 v[{Db}:{Db+15}], v[{A1}:{A1+3}], v[{B1}:{B1+3}], 0
    s_nop 10
    """)
    for mu in range(4): e(f"v_cvt_pk_bf16_f32 v{X+2*mu}, v{Da+2*mu}, v{Da+2*mu+1}")
    e("s_nop 6")
    offs=[0,2048,8192,10240]
    for mu in range(4):
        e(f"v_cvt_pk_bf16_f32 v{X+2*mu+1}, v{Db+2*mu}, v{Db+2*mu+1}")
        e(f"ds_write_b64 v{vEW}, v[{X+2*mu}:{X+2*mu+1}] offset:{offs[mu]}")
    e("s_waitcnt lgkmcnt(0)\ns_barrier")
    stamp(e,4)
    F=28
    for ks in range(2):
        for sg in range(2):
            e(f"ds_read_b64 v[{F+4*ks+2*sg}:{F+4*ks+2*sg+1}], v{vER} offset:{(4*ks+sg)*256}")
    e(f"""
    s_waitcnt lgkmcnt(2)
    v_mfma_f32_32x32x16_bf16 v[{Da}:{Da+15}], v[{F}:{F+3}], v[{B2}:{B2+3}], 0
    s_waitcnt lgkmcnt(0)
    v_mfma_f32_32x32x16_bf16 v[{Da}:{Da+15}], v[{F+4}:{F+7}], v[{B2+4}:{B2+7}], v[{Da}:{Da+15}]
    s_nop 11
    """)
    out_swaps(e,Da,X)
    e(f"""
    buffer_store_dwordx4 v[{X}:{X+3}], v{vZ}, s[16:19], s28 offen {st_flags}
    buffer_store_dwordx4 v[{X+4}:{X+7}], v{vZ}, s[16:19], s29 offen {st_flags}
    """)

def p2_setup(e, idreg):
    e(f"""
    s_and_b32 s30, {idreg}, 1
    s_lshr_b32 s31, {idreg}, 1
    s_and_b32 s32, s31, 127
    s_lshr_b32 s34, s32, 4
    s_and_b32 s35, s32, 15
    s_lshl_b32 s36, s35, 4
    s_add_u32 s33, s36, s34
    s_sub_u32 s37, s36, 120
    s_cmp_ge_u32 s35, 8
    s_cselect_b32 s37, s37, s36
    s_cmp_eq_u32 s34, 0
    s_cselect_b32 s33, s37, s33
    s_cmp_eq_u32 s31, 128
    s_cselect_b32 s33, 128, s33
    """)

def p2_dma(e, ld_flags=""):
    L=2
    e(f"""
    v_lshlrev_b32 v3, 4, v{L}
    s_lshl_b32 s38, s30, 21
    s_lshl_b32 s39, s32, 14
    s_add_u32 s38, s38, s39
    s_lshl_b32 s26, s20, 11
    s_add_u32 s38, s38, s26
    s_add_u32 s39, s38, 1024
    s_add_u32 s27, s26, 1024
    s_cmp_eq_u32 s32, 0
    s_cbranch_scc0 P2_REG
    v_bfe_u32 v4, v{L}, 2, 1
    s_lshr_b32 s40, s31, 1
    v_lshlrev_b32 v4, 30, v4
    v_add_u32 v3, s40, v3
    v_add_u32 v3, v4, v3
    P2_REG:
    s_mov_b32 m0, s26
    s_nop 0
    buffer_load_dwordx4 v3, s[16:19], s38 offen {ld_flags} lds
    s_mov_b32 m0, s27
    s_nop 0
    buffer_load_dwordx4 v3, s[16:19], s39 offen {ld_flags} lds
    """)

B1=8; TWC=40; TWS=48; A2=56; B3=64; vTR2=80; vXW=81; vXR=82; vO=86
def p2_consts(e):
    L=2; N=4; G=5
    e(f"""
    v_and_b32 v{N}, 15, v{L}
    v_lshrrev_b32 v{G}, 4, v{L}
    v_cvt_f32_u32 v6, v{N}
    v_cvt_f32_u32 v7, v{G}
    v_mul_f32 v87, 0x3d000000, v6
    v_add_f32 v88, v7, v7
    v_mul_f32 v88, v88, v87
    v_mul_f32 v89, 0x41000000, v87
    s_mov_b32 s41, 0x80008000
    s_mov_b32 s42, 0x80000000
    """)
    for ks in range(2):
        for i in range(2):
            f0=B1+ (0*2+0)*8 ;
            fr=lambda eh,cp: B1+((eh*2+cp)*2+ks)*4
            e(f"""
            v_add_f32 v90, v88, v87
            v_cos_f32 v91, v88
            v_cos_f32 v92, v90
            v_sin_f32 v93, v88
            v_sin_f32 v94, v90
            v_add_f32 v88, v88, v89
            v_cvt_pk_bf16_f32 v{fr(0,0)+2*i}, v91, v92
            v_cvt_pk_bf16_f32 v{fr(0,1)+2*i+1}, v91, v92
            v_cvt_pk_bf16_f32 v{fr(0,0)+2*i+1}, v93, v94
            v_cvt_pk_bf16_f32 v{fr(0,1)+2*i}, -v93, -v94
            v_cvt_pk_bf16_f32 v{fr(1,0)+2*i}, v91, -v92
            v_cvt_pk_bf16_f32 v{fr(1,1)+2*i+1}, v91, -v92
            v_cvt_pk_bf16_f32 v{fr(1,0)+2*i+1}, v93, -v94
            v_cvt_pk_bf16_f32 v{fr(1,1)+2*i}, -v93, v94
            """)
    e(f"""
    v_mul_f32 v87, 0x3b000000, v6
    v_mul_f32 v89, 4.0, v7
    """)
    for eh in range(2):
        if eh==1: e("v_add_f32 v87, 0x3d000000, v87")
        e("v_mul_f32 v88, v89, v87")
        for r in range(4):
            e(f"v_cos_f32 v{TWC+4*eh+r}, v88\nv_sin_f32 v{TWS+4*eh+r}, v88")
            if r<3: e("v_add_f32 v88, v88, v87")
    e(f"""
    v_mul_f32 v87, 0x3d800000, v6
    v_mul_f32 v88, v89, v87
    """)
    for r in range(4):
        e(f"v_cos_f32 v{90+r}, v88\nv_sin_f32 v{94+r}, v88")
        if r<3: e("v_add_f32 v88, v88, v87")
    e(f"""
    s_nop 0
    v_cvt_pk_bf16_f32 v{A2+0}, v90, v91
    v_cvt_pk_bf16_f32 v{A2+1}, v92, v93
    v_cvt_pk_bf16_f32 v{A2+2}, v94, v95
    v_cvt_pk_bf16_f32 v{A2+3}, v96, v97
    v_cvt_pk_bf16_f32 v{A2+4}, -v94, -v95
    v_cvt_pk_bf16_f32 v{A2+5}, -v96, -v97
    v_cvt_pk_bf16_f32 v{A2+6}, v90, v91
    v_cvt_pk_bf16_f32 v{A2+7}, v92, v93
    """)
    e(f"""
    v_lshlrev_b32 v6, 3, v{L}
    v_add_u32 v{vTR2}, s26, v6
    s_add_u32 s40, s26, 16384
    v_lshlrev_b32 v6, 2, v{N}
    v_lshl_or_b32 v6, v{G}, 9, v6
    v_add_u32 v{vXW}, s40, v6
    v_and_b32 v6, 31, v{L}
    v_lshrrev_b32 v7, 5, v{L}
    s_and_b32 s43, s20, 3
    s_lshr_b32 s44, s20, 2
    s_lshl_b32 s45, s43, 7
    v_add_u32 v87, s45, v6
    v_lshlrev_b32 v88, 13, v7
    v_add_u32 v88, 16384, v88
    s_cmp_eq_u32 s44, 0
    s_cselect_b32 s46, 0, -1
    s_cselect_b32 s47, 0, 1
    """)
    for tau in range(4):
        e(f"""
        v_xor_b32 v89, s46, v87
        v_add_u32 v89, s47, v89
        v_and_b32 v89, 0x1ff, v89
        v_lshl_add_u32 v{vXR+tau}, v89, 2, v88
        """)
        if tau<3: e("v_add_u32 v87, 32, v87")
    e(f"""
    v_and_b32 v89, 7, v6
    v_lshlrev_b32 v89, 8, v89
    v_add_u32 v89, s33, v89
    v_cvt_f32_u32 v90, v89
    v_mul_f32 v90, 0x3a000000, v90
    v_lshlrev_b32 v91, 2, v7
    v_cvt_f32_u32 v91, v91
    v_mul_f32 v91, v91, v90
    v_lshrrev_b32 v92, 3, v6
    v_cmp_eq_u32 s[48:49], 0, v92
    v_cmp_eq_u32 s[50:51], 1, v92
    v_cmp_eq_u32 s[52:53], 2, v92
    v_cmp_eq_u32 s[54:55], 3, v92
    """)
    for x in range(4):
        e(f"v_cos_f32 v93, v91\nv_sin_f32 v94, v91")
        e("v_add_f32 v91, v91, v90" if x<3 else "s_nop 0")
        e(f"v_cvt_pk_bf16_f32 v95, v93, v94")
        for tau in range(4):
            e(f"v_cndmask_b32 v{B3+4*tau+x}, 0, v95, s[{48+2*tau}:{49+2*tau}]")
    e(f"""
    v_and_b32 v89, 7, v{L}
    v_lshlrev_b32 v89, 8, v89
    v_add_u32 v89, s33, v89
    v_xor_b32 v89, s46, v89
    v_add_u32 v89, s47, v89
    v_and_b32 v89, 0x7ff, v89
    v_lshlrev_b32 v89, 11, v89
    v_bfe_u32 v90, v{L}, 3, 1
    v_lshl_or_b32 v89, v90, 6, v89
    v_bfe_u32 v90, v{L}, 4, 1
    v_lshl_or_b32 v89, v90, 5, v89
    v_lshl_or_b32 v{vO}, v7, 4, v89
    s_lshl_b32 s56, s30, 10
    s_lshl_b32 s57, s43, 8
    s_add_u32 s56, s56, s57
    s_add_u32 s57, s56, 128
    """)

def p2_main(e, st_flags=""):
    A=88; D1=96; BF=112; D2=96; X=120; F=96; D3=112; Q=88
    stamp(e,2)
    e("s_waitcnt vmcnt(0)")
    stamp(e,3)
    for ks in range(2):
        for i in range(2):
            e(f"ds_read_b64_tr_b16 v[{A+4*ks+2*i}:{A+4*ks+2*i+1}], v{vTR2} offset:{ks*1024+i*512}")
    e("s_waitcnt lgkmcnt(2)")
    for ks in range(2):
        if ks==1: e("s_waitcnt lgkmcnt(0)")
        for eh in range(2):
            for cp in range(2):
                d=D1+(eh*2+cp)*4; f=B1+((eh*2+cp)*2+ks)*4
                c="0" if ks==0 else f"v[{d}:{d+3}]"
                e(f"v_mfma_f32_16x16x32_bf16 v[{d}:{d+3}], v[{A+4*ks}:{A+4*ks+3}], v[{f}:{f+3}], {c}")
    e("s_nop 5")
    for eh in range(2):
        re=D1+eh*8; im=re+4
        for p in range(2):
            c=TWC+4*eh+2*p; s=TWS+4*eh+2*p; t=A+4*p; u=A+4*p+2
            e(f"v_pk_mul_f32 v[{t}:{t+1}], v[{re+2*p}:{re+2*p+1}], v[{c}:{c+1}]")
            e(f"v_pk_mul_f32 v[{u}:{u+1}], v[{im+2*p}:{im+2*p+1}], v[{c}:{c+1}]")
            e(f"v_pk_fma_f32 v[{t}:{t+1}], v[{im+2*p}:{im+2*p+1}], v[{s}:{s+1}], v[{t}:{t+1}]")
            e(f"v_pk_fma_f32 v[{u}:{u+1}], v[{re+2*p}:{re+2*p+1}], v[{s}:{s+1}], v[{u}:{u+1}] neg_lo:[1,0,0] neg_hi:[1,0,0]")
        for p in range(2):
            t=A+4*p; u=t+2
            e(f"v_cvt_pk_bf16_f32 v{BF+4*eh+p}, v{t}, v{t+1}")
            e(f"v_cvt_pk_bf16_f32 v{BF+4*eh+2+p}, v{u}, v{u+1}")
    e("s_nop 1")
    for eh in range(2):
        for cpp in range(2):
            d=D2+(eh*2+cpp)*4
            e(f"v_mfma_f32_16x16x32_bf16 v[{d}:{d+3}], v[{A2+4*cpp}:{A2+4*cpp+3}], v[{BF+4*eh}:{BF+4*eh+3}], 0")
    e("s_nop 7")
    for r in range(4):
        e(f"v_cvt_pk_bf16_f32 v{X+2*r}, v{D2+r}, v{D2+4+r}")
        e(f"v_cvt_pk_bf16_f32 v{X+2*r+1}, v{D2+8+r}, v{D2+12+r}")
        e(f"ds_write2_b32 v{vXW}, v{X+2*r}, v{X+2*r+1} offset0:{32*r} offset1:{32*r+16}")
    e("s_waitcnt lgkmcnt(0)\ns_barrier")
    stamp(e,4)
    e("s_and_b32 s58, s32, 127\ns_cmp_eq_u32 s58, 0\ns_cselect_b32 s58, s44, 0\ns_cmp_lg_u32 s58, 0\ns_cbranch_scc1 P2_END")
    for tau in range(4):
        e(f"ds_read2st64_b32 v[{F+4*tau}:{F+4*tau+1}], v{vXR+tau} offset0:0 offset1:8")
        e(f"ds_read2st64_b32 v[{F+4*tau+2}:{F+4*tau+3}], v{vXR+tau} offset0:16 offset1:24")
    for tau in range(4):
        e(f"s_waitcnt lgkmcnt({6-2*tau})")
        c="0" if tau==0 else f"v[{D3}:{D3+15}]"
        e(f"v_mfma_f32_32x32x16_bf16 v[{D3}:{D3+15}], v[{F+4*tau}:{F+4*tau+3}], v[{B3+4*tau}:{B3+4*tau+3}], {c}")
    e("s_nop 11")
    out_swaps(e,D3,Q)
    e(f"""
    buffer_store_dwordx4 v[{Q}:{Q+3}], v{vO}, s[12:15], s56 offen {st_flags}
    buffer_store_dwordx4 v[{Q+4}:{Q+7}], v{vO}, s[12:15], s57 offen {st_flags}
    P2_END:
    """)

def kd(name,vg,sg=102):
    return f""".amdhsa_kernel {name}
  .amdhsa_next_free_vgpr {vg}
  .amdhsa_next_free_sgpr {sg}
  .amdhsa_accum_offset {vg}
  .amdhsa_group_segment_fixed_size 0
  .amdhsa_kernarg_size 104
  .amdhsa_user_sgpr_count 2
  .amdhsa_user_sgpr_kernarg_segment_ptr 1
  .amdhsa_system_sgpr_workgroup_id_x 1
.end_amdhsa_kernel
"""
def func(name,body):
    return f".globl {name}\n.p2align 8\n.type {name},@function\n{name}:\n{body}"

def two_kernel(zst="", zld="", ost=""):
    k1=NAME+"_kernel"; k2="fnet_p2_kernel"
    e=E()
    e("""s_cmp_ge_u32 s2, 256
    s_cbranch_scc1 K1_END
    s_load_dwordx2 s[4:5], s[0:1], 0
    s_load_dwordx2 s[6:7], s[0:1], 40
    s_load_dwordx2 s[8:9], s[0:1], 96""")
    if DIAG: e("s_load_dwordx2 s[68:69], s[0:1], 88")
    stamp(e,0)
    phase1(e,zst)
    stamp_out(e,0,0,0)
    e("K1_END:\ns_endpgm")
    f=E()
    f("""s_cmp_ge_u32 s2, 258
    s_cbranch_scc1 K2_END
    s_load_dwordx2 s[8:9], s[0:1], 96
    s_load_dwordx2 s[10:11], s[0:1], 80""")
    if DIAG: f("s_load_dwordx2 s[68:69], s[0:1], 88")
    stamp(f,0)
    f("""v_lshrrev_b32 v1, 6, v0
    v_and_b32 v2, 63, v0
    s_nop 0
    v_readfirstlane_b32 s20, v1""")
    p2_setup(f,"s2")
    f("s_waitcnt lgkmcnt(0)")
    srd(f,16,8,9,0x400000)
    p2_dma(f,zld)
    stamp(f,1)
    srd(f,12,10,11,0x400000)
    p2_consts(f)
    p2_main(f,ost)
    stamp_out(f,8,512,0)
    f("K2_END:\ns_endpgm")
    s=HEADER+f"; @launch kernel={k1} grid=(256,1,1) block=(512,1,1) lds=32768\n; @launch kernel={k2} grid=(258,1,1) block=(512,1,1) lds=32768\n"
    s+='.amdgcn_target "amdgcn-amd-amdhsa--gfx950"\n.text\n'
    s+=func(k1,e.txt())+func(k2,f.txt())
    s+='.section .rodata,"a"\n.p2align 6\n'+kd(k1,80,96)+".p2align 6\n"+kd(k2,128,96)
    return s
if __name__=="__main__":
    mode=sys.argv[1]; out=sys.argv[2]
    if mode.endswith("_diag"):
        DIAG=True; mode=mode[:-5]
    if mode=="two": s=two_kernel(*sys.argv[3:])
    open(out,"w").write(s)
```

```python
import sys
NAME="concat_heads__spectral_fnet__spectral_fnet__prompt"
class E:
    def __init__(s): s.l=[]
    def __call__(s,t):
        for x in t.strip("\n").split("\n"): s.l.append("    "+x.strip() if not x.strip().endswith(":") else x.strip())
    def txt(s): return "\n".join(s.l)+"\n"
def vr(a,n=1): return f"v{a}" if n==1 else f"v[{a}:{a+n-1}]"

HEADER=open("cdna_kernels/%s.s.ref"%NAME).read().split("; Override launch")[0]

def srd(e,s,lo,hi,n):
    e(f"s_mov_b32 s{s}, s{lo}\ns_mov_b32 s{s+1}, s{hi}\ns_mov_b32 s{s+2}, {hex(n)}\ns_mov_b32 s{s+3}, 0x20000")

DIAG=False
FUSED=False
def stamp(e,k,mode=None):
    if mode=="two" and FUSED: return
    if DIAG: e(f"s_memrealtime s[70:71]\ns_waitcnt lgkmcnt(0)\ns_mov_b32 s{72+k}, s70")
def stamp_out(e,base,dbgoff,late):
    if not DIAG: return
    e(f"""
    s_waitcnt vmcnt(0)
    s_memrealtime s[70:71]
    s_waitcnt lgkmcnt(0)
    s_mov_b32 s83, s70
    s_getreg_b32 s82, hwreg(HW_REG_XCC_ID)
    s_add_u32 s84, s8, {0x800000+base*0x40000}
    s_addc_u32 s85, s9, 0
    s_mov_b32 s86, 0x40000
    s_mov_b32 s87, 0x20000
    s_lshl_b32 s88, s2, 3
    s_add_u32 s88, s88, s20
    s_lshl_b32 s88, s88, 6
    v_mov_b32 v1, s88
    s_mov_b64 exec, 1
    """)
    for k in range(12):
        e(f"v_mov_b32 v2, s{72+k}\nbuffer_store_dword v2, v1, s[84:87], 0 offen offset:{4*k}\ns_nop 1")
DIAGWG=0
def out_swaps(e,D,Q):
    for g in range(4):
        base=Q+4*(g>>1)+2*(g&1)
        e(f"v_cvt_pk_bf16_f32 v{base}, v{D+4*g}, v{D+4*g+1}")
        e(f"v_cvt_pk_bf16_f32 v{base+1}, v{D+4*g+2}, v{D+4*g+3}")
    e("s_nop 1")
    for gp in range(2):
        b=Q+4*gp
        e(f"v_permlane32_swap_b32 v{b}, v{b+2}")
        e(f"v_permlane32_swap_b32 v{b+1}, v{b+3}")
    e("s_nop 1")
    for x in range(4):
        e(f"v_permlane16_swap_b32 v{Q+x}, v{Q+4+x}")

def phase1(e, st_flags="", fused=False):
    L=2; T=3
    e(f"""
    v_lshrrev_b32 v1, 6, v0
    v_and_b32 v{L}, 63, v0
    s_and_b32 s21, s2, 7
    v_readfirstlane_b32 s20, v1
    s_bfe_u32 s22, s2, 0x40003
    s_bfe_u32 s23, s2, 0x10007
    v_lshrrev_b32 v3, 2, v{L}
    v_lshlrev_b32 v3, 17, v3
    v_and_b32 v4, 3, v{L}
    v_lshl_or_b32 v3, v4, 4, v3
    s_lshl_b32 s24, s20, 14
    s_lshl_b32 s25, s21, 10
    s_add_u32 s24, s24, s25
    s_lshl_b32 s25, s22, 6
    s_add_u32 s24, s24, s25
    s_add_u32 s25, s24, 8192
    s_lshl_b32 s26, s20, 11
    s_add_u32 s27, s26, 1024
    s_cmp_eq_u32 s23, 0
    s_waitcnt lgkmcnt(0)
    s_cselect_b32 s12, s4, s6
    s_cselect_b32 s13, s5, s7
    s_mov_b32 s14, 0x200000
    s_mov_b32 s15, 0x20000
    s_mov_b32 m0, s26
    s_nop 0
    buffer_load_dwordx4 v3, s[12:15], s24 offen lds
    s_mov_b32 m0, s27
    s_nop 0
    buffer_load_dwordx4 v3, s[12:15], s25 offen lds
    """)
    stamp(e,1)
    srd(e,16,8,9,0x400000)
    A1=8
    B2=12
    vTR=20; vEW=21; vER=22; vZ=23
    H=24; M=25
    e(f"""
    v_lshrrev_b32 v{H}, 5, v{L}
    v_and_b32 v{M}, 31, v{L}
    ; --- A1: P=(m>>1)&7 c=m&1
    v_bfe_u32 v4, v{M}, 1, 3
    v_and_b32 v5, 1, v{M}
    v_and_b32 v6, 15, v{M}
    v_cmp_eq_u32 vcc, 1, v6
    v_cvt_f32_u32 v7, v4
    v_cvt_f32_u32 v26, v5
    v_mul_f32 v7, 0x3d800000, v7
    v_mul_f32 v26, 0x3e800000, v26
    v_cndmask_b32 v7, v7, 0.5, vcc
    v_cndmask_b32 v26, v26, 0, vcc
    v_lshlrev_b32 v27, 3, v{H}
    v_cvt_f32_u32 v27, v27
    v_fma_f32 v26, v27, v7, v26
    """)
    for jj in range(8):
        if jj>0: e(f"v_add_f32 v26, v26, v7")
        e(f"v_cos_f32 v{28+jj}, v26")
    e("s_nop 0")
    for q in range(4): e(f"v_cvt_pk_bf16_f32 v{A1+q}, v{28+2*q}, v{29+2*q}")
    e(f"""
    v_lshrrev_b32 v4, 4, v{M}
    v_and_b32 v5, 7, v{M}
    v_lshl_or_b32 v4, v4, 3, v5
    v_bfe_u32 v5, v{M}, 3, 1
    v_cvt_f32_u32 v6, v5
    v_mul_f32 v6, 0x3e800000, v6
    s_cmp_eq_u32 s20, 0
    s_cbranch_scc1 P1_SPECIAL
    v_lshlrev_b32 v7, 4, v4
    v_add_u32 v7, s20, v7
    v_mov_b32 v26, v6
    v_add_f32 v27, 0xbe800000, v6
    v_mov_b32 v28, -1
    s_branch P1_COMMON
    P1_SPECIAL:
    v_lshlrev_b32 v7, 4, v4
    v_cmp_le_u32 vcc, 8, v4
    v_subrev_u32 v29, 120, v7
    v_mov_b32 v28, 0xffff
    v_mov_b32 v30, 0xffff0000
    v_cndmask_b32 v7, v7, v29, vcc
    v_cndmask_b32 v28, v28, v30, vcc
    v_cmp_eq_u32 vcc, 8, v{M}
    v_mov_b32 v29, 0x80
    v_mov_b32 v26, v6
    v_cndmask_b32 v7, v7, v29, vcc
    v_cndmask_b32 v26, v26, 0, vcc
    s_nop 0
    v_mov_b32 v27, v26
    P1_COMMON:
    v_cvt_f32_u32 v7, v7
    v_lshlrev_b32 v29, 2, v{H}
    v_cvt_f32_u32 v29, v29
    v_mul_f32 v7, 0x3b800000, v7
    v_fma_f32 v26, v29, v7, v26
    v_fma_f32 v27, v29, v7, v27
    v_mul_f32 v29, 4.0, v7
    """)
    for ks in range(2):
        for x in range(4):
            e(f"v_cos_f32 v30, v26\nv_cos_f32 v31, v27")
            if x<3: e("v_add_f32 v26, v26, v7\nv_add_f32 v27, v27, v7")
            elif ks==0: e("v_fma_f32 v26, v7, v36, v26\nv_fma_f32 v27, v7, v36, v27") if False else e("v_add_f32 v26, v26, v7\nv_add_f32 v27, v27, v7\nv_add_f32 v26, v26, v29\nv_add_f32 v27, v27, v29")
            else: e("s_nop 0")
            e(f"v_cvt_pk_bf16_f32 v{B2+4*ks+x}, v30, v31")
    for q in range(8): e(f"v_and_b32 v{B2+q}, v{B2+q}, v28")
    e(f"""
    v_bfe_u32 v4, v{L}, 2, 2
    v_lshl_or_b32 v4, v{H}, 3, v4
    v_lshlrev_b32 v4, 6, v4
    v_bfe_u32 v5, v{L}, 4, 1
    v_lshl_or_b32 v4, v5, 5, v4
    v_and_b32 v5, 3, v{L}
    v_lshl_or_b32 v4, v5, 3, v4
    v_add_u32 v{vTR}, s26, v4
    s_lshl_b32 s28, s20, 8
    s_add_u32 s28, s28, 16384
    v_lshlrev_b32 v4, 3, v{M}
    v_lshl_or_b32 v5, v{H}, 12, v4
    v_add_u32 v{vEW}, s28, v5
    s_add_u32 s28, s26, 16384
    v_lshl_or_b32 v5, v{H}, 9, v4
    v_add_u32 v{vER}, s28, v5
    v_and_b32 v4, 7, v{L}
    v_lshlrev_b32 v4, 14, v4
    v_bfe_u32 v5, v{L}, 3, 1
    v_lshl_or_b32 v4, v5, 6, v4
    v_bfe_u32 v5, v{L}, 4, 1
    v_lshl_or_b32 v4, v5, 5, v4
    v_lshl_or_b32 v{vZ}, v{H}, 4, v4
    s_lshl_b32 s28, s23, 21
    s_lshl_b32 s29, s20, 18
    s_add_u32 s28, s28, s29
    s_lshl_b32 s29, s21, 11
    s_add_u32 s28, s28, s29
    s_lshl_b32 s29, s22, 7
    s_add_u32 s28, s28, s29
    s_add_u32 s29, s28, 0x20000
    """)
    B0=28; B1=32; Da=40; Db=56; X=72
    if DIAG: e("s_waitcnt vmcnt(0)")
    stamp(e,2)
    e(f"""
    s_waitcnt vmcnt(1)
    ds_read_b64_tr_b16 v[{B0}:{B0+1}], v{vTR} offset:0
    ds_read_b64_tr_b16 v[{B0+2}:{B0+3}], v{vTR} offset:256
    s_waitcnt vmcnt(0)
    ds_read_b64_tr_b16 v[{B1}:{B1+1}], v{vTR} offset:1024
    ds_read_b64_tr_b16 v[{B1+2}:{B1+3}], v{vTR} offset:1280
    s_waitcnt lgkmcnt(2)
    v_mfma_f32_32x32x16_bf16 v[{Da}:{Da+15}], v[{A1}:{A1+3}], v[{B0}:{B0+3}], 0
    s_waitcnt lgkmcnt(0)
    v_mfma_f32_32x32x16_bf16 v[{Db}:{Db+15}], v[{A1}:{A1+3}], v[{B1}:{B1+3}], 0
    s_nop 10
    """)
    for mu in range(4): e(f"v_cvt_pk_bf16_f32 v{X+2*mu}, v{Da+2*mu}, v{Da+2*mu+1}")
    e("s_nop 6")
    offs=[0,2048,8192,10240]
    for mu in range(4):
        e(f"v_cvt_pk_bf16_f32 v{X+2*mu+1}, v{Db+2*mu}, v{Db+2*mu+1}")
        e(f"ds_write_b64 v{vEW}, v[{X+2*mu}:{X+2*mu+1}] offset:{offs[mu]}")
    e("s_waitcnt lgkmcnt(0)\ns_barrier")
    stamp(e,3)
    F=28
    for ks in range(2):
        for sg in range(2):
            e(f"ds_read_b64 v[{F+4*ks+2*sg}:{F+4*ks+2*sg+1}], v{vER} offset:{(4*ks+sg)*256}")
    e(f"""
    s_waitcnt lgkmcnt(2)
    v_mfma_f32_32x32x16_bf16 v[{Da}:{Da+15}], v[{F}:{F+3}], v[{B2}:{B2+3}], 0
    s_waitcnt lgkmcnt(0)
    v_mfma_f32_32x32x16_bf16 v[{Da}:{Da+15}], v[{F+4}:{F+7}], v[{B2+4}:{B2+7}], v[{Da}:{Da+15}]
    s_nop 11
    """)
    out_swaps(e,Da,X)
    e(f"""
    buffer_store_dwordx4 v[{X}:{X+3}], v{vZ}, s[16:19], s28 offen {st_flags}
    buffer_store_dwordx4 v[{X+4}:{X+7}], v{vZ}, s[16:19], s29 offen {st_flags}
    """)

def p2_setup(e, idreg):
    e(f"""
    s_and_b32 s30, {idreg}, 1
    s_lshr_b32 s31, {idreg}, 1
    s_and_b32 s32, s31, 127
    s_lshr_b32 s34, s32, 4
    s_and_b32 s35, s32, 15
    s_lshl_b32 s36, s35, 4
    s_add_u32 s33, s36, s34
    s_sub_u32 s37, s36, 120
    s_cmp_ge_u32 s35, 8
    s_cselect_b32 s37, s37, s36
    s_cmp_eq_u32 s34, 0
    s_cselect_b32 s33, s37, s33
    s_cmp_eq_u32 s31, 128
    s_cselect_b32 s33, 128, s33
    """)

def p2_dma(e, ld_flags=""):
    L=2
    e(f"""
    v_lshlrev_b32 v3, 4, v{L}
    s_lshl_b32 s38, s30, 21
    s_lshl_b32 s39, s32, 14
    s_add_u32 s38, s38, s39
    s_lshl_b32 s26, s20, 11
    s_add_u32 s38, s38, s26
    s_add_u32 s39, s38, 1024
    s_add_u32 s27, s26, 1024
    s_cmp_eq_u32 s32, 0
    s_cbranch_scc0 P2_REG
    v_bfe_u32 v4, v{L}, 2, 1
    s_lshr_b32 s40, s31, 1
    v_lshlrev_b32 v4, 30, v4
    v_add_u32 v3, s40, v3
    v_add_u32 v3, v4, v3
    P2_REG:
    s_mov_b32 m0, s26
    s_nop 0
    buffer_load_dwordx4 v3, s[16:19], s38 offen {ld_flags} lds
    s_mov_b32 m0, s27
    s_nop 0
    buffer_load_dwordx4 v3, s[16:19], s39 offen {ld_flags} lds
    """)

B1=8; TWC=40; TWS=48; A2=56; B3=64; vTR2=80; vXW=81; vXR=82; vO=86
def p2_consts(e):
    L=2; N=4; G=5
    e(f"""
    v_and_b32 v{N}, 15, v{L}
    v_lshrrev_b32 v{G}, 4, v{L}
    v_cvt_f32_u32 v6, v{N}
    v_cvt_f32_u32 v7, v{G}
    v_mul_f32 v87, 0x3d000000, v6
    v_add_f32 v88, v7, v7
    v_mul_f32 v88, v88, v87
    v_mul_f32 v89, 0x41000000, v87
    s_mov_b32 s41, 0x80008000
    s_mov_b32 s42, 0x80000000
    """)
    for ks in range(2):
        for i in range(2):
            f0=B1+ (0*2+0)*8 ;
            fr=lambda eh,cp: B1+((eh*2+cp)*2+ks)*4
            e(f"""
            v_add_f32 v90, v88, v87
            v_cos_f32 v91, v88
            v_cos_f32 v92, v90
            v_sin_f32 v93, v88
            v_sin_f32 v94, v90
            v_add_f32 v88, v88, v89
            v_cvt_pk_bf16_f32 v{fr(0,0)+2*i}, v91, v92
            v_cvt_pk_bf16_f32 v{fr(0,1)+2*i+1}, v91, v92
            v_cvt_pk_bf16_f32 v{fr(0,0)+2*i+1}, v93, v94
            v_cvt_pk_bf16_f32 v{fr(0,1)+2*i}, -v93, -v94
            v_cvt_pk_bf16_f32 v{fr(1,0)+2*i}, v91, -v92
            v_cvt_pk_bf16_f32 v{fr(1,1)+2*i+1}, v91, -v92
            v_cvt_pk_bf16_f32 v{fr(1,0)+2*i+1}, v93, -v94
            v_cvt_pk_bf16_f32 v{fr(1,1)+2*i}, -v93, v94
            """)
    e(f"""
    v_mul_f32 v87, 0x3b000000, v6
    v_mul_f32 v89, 4.0, v7
    """)
    for eh in range(2):
        if eh==1: e("v_add_f32 v87, 0x3d000000, v87")
        e("v_mul_f32 v88, v89, v87")
        for r in range(4):
            e(f"v_cos_f32 v{TWC+4*eh+r}, v88\nv_sin_f32 v{TWS+4*eh+r}, v88")
            if r<3: e("v_add_f32 v88, v88, v87")
    e(f"""
    v_mul_f32 v87, 0x3d800000, v6
    v_mul_f32 v88, v89, v87
    """)
    for r in range(4):
        e(f"v_cos_f32 v{90+r}, v88\nv_sin_f32 v{94+r}, v88")
        if r<3: e("v_add_f32 v88, v88, v87")
    e(f"""
    s_nop 0
    v_cvt_pk_bf16_f32 v{A2+0}, v90, v91
    v_cvt_pk_bf16_f32 v{A2+1}, v92, v93
    v_cvt_pk_bf16_f32 v{A2+2}, v94, v95
    v_cvt_pk_bf16_f32 v{A2+3}, v96, v97
    v_cvt_pk_bf16_f32 v{A2+4}, -v94, -v95
    v_cvt_pk_bf16_f32 v{A2+5}, -v96, -v97
    v_cvt_pk_bf16_f32 v{A2+6}, v90, v91
    v_cvt_pk_bf16_f32 v{A2+7}, v92, v93
    """)
    e(f"""
    v_lshlrev_b32 v6, 3, v{L}
    v_add_u32 v{vTR2}, s26, v6
    s_add_u32 s40, s26, 16384
    v_lshlrev_b32 v6, 2, v{N}
    v_lshl_or_b32 v6, v{G}, 9, v6
    v_add_u32 v{vXW}, s40, v6
    v_and_b32 v6, 31, v{L}
    v_lshrrev_b32 v7, 5, v{L}
    s_and_b32 s43, s20, 3
    s_lshr_b32 s44, s20, 2
    s_lshl_b32 s45, s43, 7
    v_add_u32 v87, s45, v6
    v_lshlrev_b32 v88, 13, v7
    v_add_u32 v88, 16384, v88
    s_cmp_eq_u32 s44, 0
    s_cselect_b32 s46, 0, -1
    s_cselect_b32 s47, 0, 1
    """)
    for tau in range(4):
        e(f"""
        v_xor_b32 v89, s46, v87
        v_add_u32 v89, s47, v89
        v_and_b32 v89, 0x1ff, v89
        v_lshl_add_u32 v{vXR+tau}, v89, 2, v88
        """)
        if tau<3: e("v_add_u32 v87, 32, v87")
    e(f"""
    v_and_b32 v89, 7, v6
    v_lshlrev_b32 v89, 8, v89
    v_add_u32 v89, s33, v89
    v_cvt_f32_u32 v90, v89
    v_mul_f32 v90, 0x3a000000, v90
    v_lshlrev_b32 v91, 2, v7
    v_cvt_f32_u32 v91, v91
    v_mul_f32 v91, v91, v90
    v_lshrrev_b32 v92, 3, v6
    v_cmp_eq_u32 s[48:49], 0, v92
    v_cmp_eq_u32 s[50:51], 1, v92
    v_cmp_eq_u32 s[52:53], 2, v92
    v_cmp_eq_u32 s[54:55], 3, v92
    """)
    for x in range(4):
        e(f"v_cos_f32 v93, v91\nv_sin_f32 v94, v91")
        e("v_add_f32 v91, v91, v90" if x<3 else "s_nop 0")
        e(f"v_cvt_pk_bf16_f32 v95, v93, v94")
        for tau in range(4):
            e(f"v_cndmask_b32 v{B3+4*tau+x}, 0, v95, s[{48+2*tau}:{49+2*tau}]")
    e(f"""
    v_and_b32 v89, 7, v{L}
    v_lshlrev_b32 v89, 8, v89
    v_add_u32 v89, s33, v89
    v_xor_b32 v89, s46, v89
    v_add_u32 v89, s47, v89
    v_and_b32 v89, 0x7ff, v89
    v_lshlrev_b32 v89, 11, v89
    v_bfe_u32 v90, v{L}, 3, 1
    v_lshl_or_b32 v89, v90, 6, v89
    v_bfe_u32 v90, v{L}, 4, 1
    v_lshl_or_b32 v89, v90, 5, v89
    v_lshl_or_b32 v{vO}, v7, 4, v89
    s_lshl_b32 s56, s30, 10
    s_lshl_b32 s57, s43, 8
    s_add_u32 s56, s56, s57
    s_add_u32 s57, s56, 128
    """)

def p2_main(e, st_flags=""):
    A=88; D1=96; BF=112; D2=96; X=120; F=96; D3=112; Q=88
    stamp(e,2,"two")
    e("s_waitcnt vmcnt(0)")
    stamp(e,8)
    for ks in range(2):
        for i in range(2):
            e(f"ds_read_b64_tr_b16 v[{A+4*ks+2*i}:{A+4*ks+2*i+1}], v{vTR2} offset:{ks*1024+i*512}")
    e("s_waitcnt lgkmcnt(2)")
    for ks in range(2):
        if ks==1: e("s_waitcnt lgkmcnt(0)")
        for eh in range(2):
            for cp in range(2):
                d=D1+(eh*2+cp)*4; f=B1+((eh*2+cp)*2+ks)*4
                c="0" if ks==0 else f"v[{d}:{d+3}]"
                e(f"v_mfma_f32_16x16x32_bf16 v[{d}:{d+3}], v[{A+4*ks}:{A+4*ks+3}], v[{f}:{f+3}], {c}")
    e("s_nop 5")
    for eh in range(2):
        re=D1+eh*8; im=re+4
        for p in range(2):
            c=TWC+4*eh+2*p; s=TWS+4*eh+2*p; t=A+4*p; u=A+4*p+2
            e(f"v_pk_mul_f32 v[{t}:{t+1}], v[{re+2*p}:{re+2*p+1}], v[{c}:{c+1}]")
            e(f"v_pk_mul_f32 v[{u}:{u+1}], v[{im+2*p}:{im+2*p+1}], v[{c}:{c+1}]")
            e(f"v_pk_fma_f32 v[{t}:{t+1}], v[{im+2*p}:{im+2*p+1}], v[{s}:{s+1}], v[{t}:{t+1}]")
            e(f"v_pk_fma_f32 v[{u}:{u+1}], v[{re+2*p}:{re+2*p+1}], v[{s}:{s+1}], v[{u}:{u+1}] neg_lo:[1,0,0] neg_hi:[1,0,0]")
        for p in range(2):
            t=A+4*p; u=t+2
            e(f"v_cvt_pk_bf16_f32 v{BF+4*eh+p}, v{t}, v{t+1}")
            e(f"v_cvt_pk_bf16_f32 v{BF+4*eh+2+p}, v{u}, v{u+1}")
    e("s_nop 1")
    for eh in range(2):
        for cpp in range(2):
            d=D2+(eh*2+cpp)*4
            e(f"v_mfma_f32_16x16x32_bf16 v[{d}:{d+3}], v[{A2+4*cpp}:{A2+4*cpp+3}], v[{BF+4*eh}:{BF+4*eh+3}], 0")
    e("s_nop 7")
    for r in range(4):
        e(f"v_cvt_pk_bf16_f32 v{X+2*r}, v{D2+r}, v{D2+4+r}")
        e(f"v_cvt_pk_bf16_f32 v{X+2*r+1}, v{D2+8+r}, v{D2+12+r}")
        e(f"ds_write2_b32 v{vXW}, v{X+2*r}, v{X+2*r+1} offset0:{32*r} offset1:{32*r+16}")
    e("s_waitcnt lgkmcnt(0)\ns_barrier")
    stamp(e,9)
    e("s_and_b32 s58, s32, 127\ns_cmp_eq_u32 s58, 0\ns_cselect_b32 s58, s44, 0\ns_cmp_lg_u32 s58, 0\ns_cbranch_scc1 P2_END")
    for tau in range(4):
        e(f"ds_read2st64_b32 v[{F+4*tau}:{F+4*tau+1}], v{vXR+tau} offset0:0 offset1:8")
        e(f"ds_read2st64_b32 v[{F+4*tau+2}:{F+4*tau+3}], v{vXR+tau} offset0:16 offset1:24")
    for tau in range(4):
        e(f"s_waitcnt lgkmcnt({6-2*tau})")
        c="0" if tau==0 else f"v[{D3}:{D3+15}]"
        e(f"v_mfma_f32_32x32x16_bf16 v[{D3}:{D3+15}], v[{F+4*tau}:{F+4*tau+3}], v[{B3+4*tau}:{B3+4*tau+3}], {c}")
    e("s_nop 11")
    out_swaps(e,D3,Q)
    e(f"""
    buffer_store_dwordx4 v[{Q}:{Q+3}], v{vO}, s[12:15], s56 offen {st_flags}
    buffer_store_dwordx4 v[{Q+4}:{Q+7}], v{vO}, s[12:15], s57 offen {st_flags}
    P2_END:
    """)

def signal(e):
    e("""
    s_waitcnt vmcnt(0)
    s_barrier
    s_cmp_eq_u32 s20, 0
    s_cbranch_scc0 SIG_DONE
    s_lshl_b32 s64, s23, 7
    s_and_b32 s65, s21, 1
    s_lshl_b32 s65, s65, 6
    s_add_u32 s64, s64, s65
    v_mov_b32 v4, s64
    v_mov_b32 v5, 1
    s_mov_b64 exec, 1
    buffer_atomic_add v5, v4, s[60:63], 0 offen sc1
    s_mov_b64 exec, -1
    SIG_DONE:
    """)
def poll(e):
    e("""
    s_cmp_eq_u32 s20, 0
    s_cbranch_scc0 POLL_DONE
    v_lshlrev_b32 v4, 6, v2
    s_lshl_b32 s64, s30, 7
    v_add_u32 v4, s64, v4
    s_mov_b32 s65, 0x40000
    s_mov_b64 exec, 3
    POLL:
    buffer_load_dword v5, v4, s[60:63], 0 offen sc1
    s_sub_u32 s65, s65, 1
    s_cbranch_scc1 POLL_OUT
    s_waitcnt vmcnt(0)
    v_cmp_eq_u32 vcc, 64, v5
    s_nop 4
    s_cmp_eq_u32 vcc_lo, 3
    s_cbranch_scc0 POLL
    POLL_OUT:
    s_mov_b64 exec, -1
    POLL_DONE:
    s_barrier
    """)
def fused(zst="sc1", zld="sc1", ost=""):
    k1=NAME+"_kernel"
    e=E()
    e("""s_cmp_ge_u32 s2, 258
    s_cbranch_scc1 K_END
    s_load_dwordx2 s[4:5], s[0:1], 0
    s_load_dwordx2 s[6:7], s[0:1], 40
    s_load_dwordx2 s[8:9], s[0:1], 96
    s_load_dwordx4 s[56:59], s[0:1], 80""")
    stamp(e,0)
    e("s_cmp_ge_u32 s2, 256\ns_cbranch_scc1 SKIP_P1")
    phase1(e,zst)
    srd(e,60,58,59,256)
    stamp(e,4)
    signal(e)
    e("""s_branch P2_START
    SKIP_P1:
    v_lshrrev_b32 v1, 6, v0
    v_and_b32 v2, 63, v0
    s_nop 0
    v_readfirstlane_b32 s20, v1
    s_waitcnt lgkmcnt(0)""")
    srd(e,60,58,59,256)
    srd(e,16,8,9,0x400000)
    e("P2_START:")
    stamp(e,5)
    srd(e,12,56,57,0x400000)
    p2_setup(e,"s2")
    e("s_lshl_b32 s26, s20, 11")
    p2_consts(e)
    stamp(e,6)
    poll(e)
    stamp(e,7)
    p2_dma(e,zld)
    p2_main(e,ost)
    stamp_out(e,0,0,0)
    e("K_END:\ns_endpgm")
    s=HEADER+f"; @launch grid=(258,1,1) block=(512,1,1) lds=32768\n"
    s+='.amdgcn_target "amdgcn-amd-amdhsa--gfx950"\n.text\n'
    s+=func(k1,e.txt())
    s+='.section .rodata,"a"\n.p2align 6\n'+kd(k1,128,102)
    return s
def kd(name,vg,sg=102):
    return f""".amdhsa_kernel {name}
  .amdhsa_next_free_vgpr {vg}
  .amdhsa_next_free_sgpr {sg}
  .amdhsa_accum_offset {vg}
  .amdhsa_group_segment_fixed_size 0
  .amdhsa_kernarg_size 104
  .amdhsa_user_sgpr_count 2
  .amdhsa_user_sgpr_kernarg_segment_ptr 1
  .amdhsa_system_sgpr_workgroup_id_x 1
.end_amdhsa_kernel
"""
def func(name,body):
    return f".globl {name}\n.p2align 8\n.type {name},@function\n{name}:\n{body}"

def two_kernel(zst="", zld="", ost=""):
    k1=NAME+"_kernel"; k2="fnet_p2_kernel"
    e=E()
    e("""s_cmp_ge_u32 s2, 256
    s_cbranch_scc1 K1_END
    s_load_dwordx2 s[4:5], s[0:1], 0
    s_load_dwordx2 s[6:7], s[0:1], 40
    s_load_dwordx2 s[8:9], s[0:1], 96""")
    if DIAG: e("s_load_dwordx2 s[68:69], s[0:1], 88")
    stamp(e,0)
    phase1(e,zst)
    stamp_out(e,0,0,0)
    e("K1_END:\ns_endpgm")
    f=E()
    f("""s_cmp_ge_u32 s2, 258
    s_cbranch_scc1 K2_END
    s_load_dwordx2 s[8:9], s[0:1], 96
    s_load_dwordx2 s[10:11], s[0:1], 80""")
    if DIAG: f("s_load_dwordx2 s[68:69], s[0:1], 88")
    stamp(f,0)
    f("""v_lshrrev_b32 v1, 6, v0
    v_and_b32 v2, 63, v0
    s_nop 0
    v_readfirstlane_b32 s20, v1""")
    p2_setup(f,"s2")
    f("s_waitcnt lgkmcnt(0)")
    srd(f,16,8,9,0x400000)
    p2_dma(f,zld)
    stamp(f,1)
    srd(f,12,10,11,0x400000)
    p2_consts(f)
    p2_main(f,ost)
    stamp_out(f,1,512,0)
    f("K2_END:\ns_endpgm")
    s=HEADER+f"; @launch kernel={k1} grid=(256,1,1) block=(512,1,1) lds=32768\n; @launch kernel={k2} grid=(258,1,1) block=(512,1,1) lds=32768\n"
    s+='.amdgcn_target "amdgcn-amd-amdhsa--gfx950"\n.text\n'
    s+=func(k1,e.txt())+func(k2,f.txt())
    s+='.section .rodata,"a"\n.p2align 6\n'+kd(k1,80,96)+".p2align 6\n"+kd(k2,128,96)
    return s
if __name__=="__main__":
    mode=sys.argv[1]; out=sys.argv[2]
    if mode.endswith("_diag"):
        DIAG=True; mode=mode[:-5]
    if mode=="two": s=two_kernel(*sys.argv[3:])
    if mode=="fused": FUSED=True; s=fused(*sys.argv[3:])
    open(out,"w").write(s)
```

```python
import sys
NAME="concat_heads__spectral_fnet__spectral_fnet__prompt"
class E:
    def __init__(s): s.l=[]
    def __call__(s,t):
        for x in t.strip("\n").split("\n"): s.l.append("    "+x.strip() if not x.strip().endswith(":") else x.strip())
    def txt(s): return "\n".join(s.l)+"\n"
def vr(a,n=1): return f"v{a}" if n==1 else f"v[{a}:{a+n-1}]"

HEADER=open("cdna_kernels/%s.s.ref"%NAME).read().split("; Override launch")[0]

def srd(e,s,lo,hi,n):
    e(f"s_mov_b32 s{s}, s{lo}\ns_mov_b32 s{s+1}, s{hi}\ns_mov_b32 s{s+2}, {hex(n)}\ns_mov_b32 s{s+3}, 0x20000")

DIAG=False
FUSED=False
def stamp(e,k,mode=None):
    if mode=="two" and FUSED: return
    if DIAG: e(f"s_memrealtime s[70:71]\ns_waitcnt lgkmcnt(0)\ns_mov_b32 s{72+k}, s70")
HDIAG=False
def stamp_out_h(e):
    e("""
    s_waitcnt vmcnt(0)
    s_memrealtime s[70:71]
    s_waitcnt lgkmcnt(0)
    s_mov_b32 s83, s70
    s_cmp_eq_u32 s20, 0
    s_cbranch_scc0 DIAG_SKIP
    s_mov_b64 exec, 1
    v_mov_b32 v1, 0
    s_not_b32 s84, s72
    v_mov_b32 v2, s84
    v_mov_b32 v3, s83
    buffer_atomic_umax v2, v1, s[60:63], 0 offen offset:4
    buffer_atomic_umax v3, v1, s[60:63], 0 offen offset:8
    v_mov_b32 v3, s74
    s_nop 1
    buffer_atomic_umax v3, v1, s[60:63], 0 offen offset:12
    s_nop 1
    v_mov_b32 v3, s77
    s_nop 1
    buffer_atomic_umax v3, v1, s[60:63], 0 offen offset:16
    s_nop 1
    v_mov_b32 v3, s79
    s_nop 1
    buffer_atomic_umax v3, v1, s[60:63], 0 offen offset:20
    s_cmp_eq_u32 s2, 0
    s_cbranch_scc0 DIAG_SKIP
    """)
    idx=[0,1,2,3,4,5,6,7,8,11]
    for j,k in enumerate(idx):
        e(f"v_mov_b32 v2, s{72+k}\nbuffer_store_dword v2, v1, s[60:63], 0 offen offset:{24+4*j}\ns_nop 1")
    e("DIAG_SKIP:")
def stamp_out(e,base,dbgoff,late):
    if HDIAG: return stamp_out_h(e)
    if not DIAG: return
    e(f"""
    s_waitcnt vmcnt(0)
    s_memrealtime s[70:71]
    s_waitcnt lgkmcnt(0)
    s_mov_b32 s83, s70
    s_getreg_b32 s82, hwreg(HW_REG_XCC_ID)
    s_add_u32 s84, s8, {0x800000+base*0x40000}
    s_addc_u32 s85, s9, 0
    s_mov_b32 s86, 0x40000
    s_mov_b32 s87, 0x20000
    s_lshl_b32 s88, s2, 3
    s_add_u32 s88, s88, s20
    s_lshl_b32 s88, s88, 6
    v_mov_b32 v1, s88
    s_mov_b64 exec, 1
    """)
    for k in range(12):
        e(f"v_mov_b32 v2, s{72+k}\nbuffer_store_dword v2, v1, s[84:87], 0 offen offset:{4*k}\ns_nop 1")
DIAGWG=0
def out_swaps(e,D,Q):
    for g in range(4):
        base=Q+4*(g>>1)+2*(g&1)
        e(f"v_cvt_pk_bf16_f32 v{base}, v{D+4*g}, v{D+4*g+1}")
        e(f"v_cvt_pk_bf16_f32 v{base+1}, v{D+4*g+2}, v{D+4*g+3}")
    e("s_nop 1")
    for gp in range(2):
        b=Q+4*gp
        e(f"v_permlane32_swap_b32 v{b}, v{b+2}")
        e(f"v_permlane32_swap_b32 v{b+1}, v{b+3}")
    e("s_nop 1")
    for x in range(4):
        e(f"v_permlane16_swap_b32 v{Q+x}, v{Q+4+x}")

def phase1(e, st_flags="", fused=False):
    L=2; T=3
    e(f"""
    v_lshrrev_b32 v1, 6, v0
    v_and_b32 v{L}, 63, v0
    s_and_b32 s21, s2, 7
    v_readfirstlane_b32 s20, v1
    s_bfe_u32 s22, s2, 0x40003
    s_bfe_u32 s23, s2, 0x10007
    v_lshrrev_b32 v3, 2, v{L}
    v_lshlrev_b32 v3, 17, v3
    v_and_b32 v4, 3, v{L}
    v_lshl_or_b32 v3, v4, 4, v3
    s_lshl_b32 s24, s20, 14
    s_lshl_b32 s25, s21, 10
    s_add_u32 s24, s24, s25
    s_lshl_b32 s25, s22, 6
    s_add_u32 s24, s24, s25
    s_add_u32 s25, s24, 8192
    s_lshl_b32 s26, s20, 11
    s_add_u32 s27, s26, 1024
    s_cmp_eq_u32 s23, 0
    s_waitcnt lgkmcnt(0)
    s_cselect_b32 s12, s4, s6
    s_cselect_b32 s13, s5, s7
    s_mov_b32 s14, 0x200000
    s_mov_b32 s15, 0x20000
    s_mov_b32 m0, s26
    s_nop 0
    buffer_load_dwordx4 v3, s[12:15], s24 offen lds
    s_mov_b32 m0, s27
    s_nop 0
    buffer_load_dwordx4 v3, s[12:15], s25 offen lds
    """)
    stamp(e,1)
    srd(e,16,8,9,0x400000)
    A1=8
    B2=12
    vTR=20; vEW=21; vER=22; vZ=23
    H=24; M=25
    e(f"""
    v_lshrrev_b32 v{H}, 5, v{L}
    v_and_b32 v{M}, 31, v{L}
    ; --- A1: P=(m>>1)&7 c=m&1
    v_bfe_u32 v4, v{M}, 1, 3
    v_and_b32 v5, 1, v{M}
    v_and_b32 v6, 15, v{M}
    v_cmp_eq_u32 vcc, 1, v6
    v_cvt_f32_u32 v7, v4
    v_cvt_f32_u32 v26, v5
    v_mul_f32 v7, 0x3d800000, v7
    v_mul_f32 v26, 0x3e800000, v26
    v_cndmask_b32 v7, v7, 0.5, vcc
    v_cndmask_b32 v26, v26, 0, vcc
    v_lshlrev_b32 v27, 3, v{H}
    v_cvt_f32_u32 v27, v27
    v_fma_f32 v26, v27, v7, v26
    """)
    for jj in range(8):
        if jj>0: e(f"v_add_f32 v26, v26, v7")
        e(f"v_cos_f32 v{28+jj}, v26")
    e("s_nop 0")
    for q in range(4): e(f"v_cvt_pk_bf16_f32 v{A1+q}, v{28+2*q}, v{29+2*q}")
    e(f"""
    v_lshrrev_b32 v4, 4, v{M}
    v_and_b32 v5, 7, v{M}
    v_lshl_or_b32 v4, v4, 3, v5
    v_bfe_u32 v5, v{M}, 3, 1
    v_cvt_f32_u32 v6, v5
    v_mul_f32 v6, 0x3e800000, v6
    s_cmp_eq_u32 s20, 0
    s_cbranch_scc1 P1_SPECIAL
    v_lshlrev_b32 v7, 4, v4
    v_add_u32 v7, s20, v7
    v_mov_b32 v26, v6
    v_add_f32 v27, 0xbe800000, v6
    v_mov_b32 v28, -1
    s_branch P1_COMMON
    P1_SPECIAL:
    v_lshlrev_b32 v7, 4, v4
    v_cmp_le_u32 vcc, 8, v4
    v_subrev_u32 v29, 120, v7
    v_mov_b32 v28, 0xffff
    v_mov_b32 v30, 0xffff0000
    v_cndmask_b32 v7, v7, v29, vcc
    v_cndmask_b32 v28, v28, v30, vcc
    v_cmp_eq_u32 vcc, 8, v{M}
    v_mov_b32 v29, 0x80
    v_mov_b32 v26, v6
    v_cndmask_b32 v7, v7, v29, vcc
    v_cndmask_b32 v26, v26, 0, vcc
    s_nop 0
    v_mov_b32 v27, v26
    P1_COMMON:
    v_cvt_f32_u32 v7, v7
    v_lshlrev_b32 v29, 2, v{H}
    v_cvt_f32_u32 v29, v29
    v_mul_f32 v7, 0x3b800000, v7
    v_fma_f32 v26, v29, v7, v26
    v_fma_f32 v27, v29, v7, v27
    v_mul_f32 v29, 4.0, v7
    """)
    for ks in range(2):
        for x in range(4):
            e(f"v_cos_f32 v30, v26\nv_cos_f32 v31, v27")
            if x<3: e("v_add_f32 v26, v26, v7\nv_add_f32 v27, v27, v7")
            elif ks==0: e("v_fma_f32 v26, v7, v36, v26\nv_fma_f32 v27, v7, v36, v27") if False else e("v_add_f32 v26, v26, v7\nv_add_f32 v27, v27, v7\nv_add_f32 v26, v26, v29\nv_add_f32 v27, v27, v29")
            else: e("s_nop 0")
            e(f"v_cvt_pk_bf16_f32 v{B2+4*ks+x}, v30, v31")
    for q in range(8): e(f"v_and_b32 v{B2+q}, v{B2+q}, v28")
    e(f"""
    v_bfe_u32 v4, v{L}, 2, 2
    v_lshl_or_b32 v4, v{H}, 3, v4
    v_lshlrev_b32 v4, 6, v4
    v_bfe_u32 v5, v{L}, 4, 1
    v_lshl_or_b32 v4, v5, 5, v4
    v_and_b32 v5, 3, v{L}
    v_lshl_or_b32 v4, v5, 3, v4
    v_add_u32 v{vTR}, s26, v4
    s_lshl_b32 s28, s20, 8
    s_add_u32 s28, s28, 16384
    v_lshlrev_b32 v4, 3, v{M}
    v_lshl_or_b32 v5, v{H}, 12, v4
    v_add_u32 v{vEW}, s28, v5
    s_add_u32 s28, s26, 16384
    v_lshl_or_b32 v5, v{H}, 9, v4
    v_add_u32 v{vER}, s28, v5
    v_and_b32 v4, 7, v{L}
    v_lshlrev_b32 v4, 14, v4
    v_bfe_u32 v5, v{L}, 3, 1
    v_lshl_or_b32 v4, v5, 6, v4
    v_bfe_u32 v5, v{L}, 4, 1
    v_lshl_or_b32 v4, v5, 5, v4
    v_lshl_or_b32 v{vZ}, v{H}, 4, v4
    s_lshl_b32 s28, s23, 21
    s_lshl_b32 s29, s20, 18
    s_add_u32 s28, s28, s29
    s_lshl_b32 s29, s21, 11
    s_add_u32 s28, s28, s29
    s_lshl_b32 s29, s22, 7
    s_add_u32 s28, s28, s29
    s_add_u32 s29, s28, 0x20000
    """)
    B0=28; B1=32; Da=40; Db=56; X=72
    if DIAG: e("s_waitcnt vmcnt(0)")
    stamp(e,2)
    e(f"""
    s_waitcnt vmcnt(1)
    ds_read_b64_tr_b16 v[{B0}:{B0+1}], v{vTR} offset:0
    ds_read_b64_tr_b16 v[{B0+2}:{B0+3}], v{vTR} offset:256
    s_waitcnt vmcnt(0)
    ds_read_b64_tr_b16 v[{B1}:{B1+1}], v{vTR} offset:1024
    ds_read_b64_tr_b16 v[{B1+2}:{B1+3}], v{vTR} offset:1280
    s_waitcnt lgkmcnt(2)
    v_mfma_f32_32x32x16_bf16 v[{Da}:{Da+15}], v[{A1}:{A1+3}], v[{B0}:{B0+3}], 0
    s_waitcnt lgkmcnt(0)
    v_mfma_f32_32x32x16_bf16 v[{Db}:{Db+15}], v[{A1}:{A1+3}], v[{B1}:{B1+3}], 0
    s_nop 10
    """)
    for mu in range(4): e(f"v_cvt_pk_bf16_f32 v{X+2*mu}, v{Da+2*mu}, v{Da+2*mu+1}")
    e("s_nop 6")
    offs=[0,2048,8192,10240]
    for mu in range(4):
        e(f"v_cvt_pk_bf16_f32 v{X+2*mu+1}, v{Db+2*mu}, v{Db+2*mu+1}")
        e(f"ds_write_b64 v{vEW}, v[{X+2*mu}:{X+2*mu+1}] offset:{offs[mu]}")
    e("s_waitcnt lgkmcnt(0)\ns_barrier")
    stamp(e,3)
    F=28
    for ks in range(2):
        for sg in range(2):
            e(f"ds_read_b64 v[{F+4*ks+2*sg}:{F+4*ks+2*sg+1}], v{vER} offset:{(4*ks+sg)*256}")
    e(f"""
    s_waitcnt lgkmcnt(2)
    v_mfma_f32_32x32x16_bf16 v[{Da}:{Da+15}], v[{F}:{F+3}], v[{B2}:{B2+3}], 0
    s_waitcnt lgkmcnt(0)
    v_mfma_f32_32x32x16_bf16 v[{Da}:{Da+15}], v[{F+4}:{F+7}], v[{B2+4}:{B2+7}], v[{Da}:{Da+15}]
    s_nop 11
    """)
    out_swaps(e,Da,X)
    e(f"""
    buffer_store_dwordx4 v[{X}:{X+3}], v{vZ}, s[16:19], s28 offen {st_flags}
    buffer_store_dwordx4 v[{X+4}:{X+7}], v{vZ}, s[16:19], s29 offen {st_flags}
    """)

def p2_setup(e, idreg):
    e(f"""
    s_and_b32 s30, {idreg}, 1
    s_lshr_b32 s31, {idreg}, 1
    s_and_b32 s32, s31, 127
    s_lshr_b32 s34, s32, 4
    s_and_b32 s35, s32, 15
    s_lshl_b32 s36, s35, 4
    s_add_u32 s33, s36, s34
    s_sub_u32 s37, s36, 120
    s_cmp_ge_u32 s35, 8
    s_cselect_b32 s37, s37, s36
    s_cmp_eq_u32 s34, 0
    s_cselect_b32 s33, s37, s33
    s_cmp_eq_u32 s31, 128
    s_cselect_b32 s33, 128, s33
    """)

def p2_dma(e, ld_flags=""):
    L=2
    e(f"""
    v_lshlrev_b32 v3, 4, v{L}
    s_lshl_b32 s38, s30, 21
    s_lshl_b32 s39, s32, 14
    s_add_u32 s38, s38, s39
    s_lshl_b32 s26, s20, 11
    s_add_u32 s38, s38, s26
    s_add_u32 s39, s38, 1024
    s_add_u32 s27, s26, 1024
    s_cmp_eq_u32 s32, 0
    s_cbranch_scc0 P2_REG
    v_bfe_u32 v4, v{L}, 2, 1
    s_lshr_b32 s40, s31, 1
    v_lshlrev_b32 v4, 30, v4
    v_add_u32 v3, s40, v3
    v_add_u32 v3, v4, v3
    P2_REG:
    s_mov_b32 m0, s26
    s_nop 0
    buffer_load_dwordx4 v3, s[16:19], s38 offen {ld_flags} lds
    s_mov_b32 m0, s27
    s_nop 0
    buffer_load_dwordx4 v3, s[16:19], s39 offen {ld_flags} lds
    """)

B1=8; TWC=40; TWS=48; A2=56; B3=64; vTR2=80; vXW=81; vXR=82; vO=86
def p2_consts(e):
    L=2; N=4; G=5
    e(f"""
    v_and_b32 v{N}, 15, v{L}
    v_lshrrev_b32 v{G}, 4, v{L}
    v_cvt_f32_u32 v6, v{N}
    v_cvt_f32_u32 v7, v{G}
    v_mul_f32 v87, 0x3d000000, v6
    v_add_f32 v88, v7, v7
    v_mul_f32 v88, v88, v87
    v_mul_f32 v89, 0x41000000, v87
    s_mov_b32 s41, 0x80008000
    s_mov_b32 s42, 0x80000000
    """)
    for ks in range(2):
        for i in range(2):
            f0=B1+ (0*2+0)*8 ;
            fr=lambda eh,cp: B1+((eh*2+cp)*2+ks)*4
            e(f"""
            v_add_f32 v90, v88, v87
            v_cos_f32 v91, v88
            v_cos_f32 v92, v90
            v_sin_f32 v93, v88
            v_sin_f32 v94, v90
            v_add_f32 v88, v88, v89
            v_cvt_pk_bf16_f32 v{fr(0,0)+2*i}, v91, v92
            v_cvt_pk_bf16_f32 v{fr(0,1)+2*i+1}, v91, v92
            v_cvt_pk_bf16_f32 v{fr(0,0)+2*i+1}, v93, v94
            v_cvt_pk_bf16_f32 v{fr(0,1)+2*i}, -v93, -v94
            v_cvt_pk_bf16_f32 v{fr(1,0)+2*i}, v91, -v92
            v_cvt_pk_bf16_f32 v{fr(1,1)+2*i+1}, v91, -v92
            v_cvt_pk_bf16_f32 v{fr(1,0)+2*i+1}, v93, -v94
            v_cvt_pk_bf16_f32 v{fr(1,1)+2*i}, -v93, v94
            """)
    e(f"""
    v_mul_f32 v87, 0x3b000000, v6
    v_mul_f32 v89, 4.0, v7
    """)
    for eh in range(2):
        if eh==1: e("v_add_f32 v87, 0x3d000000, v87")
        e("v_mul_f32 v88, v89, v87")
        for r in range(4):
            e(f"v_cos_f32 v{TWC+4*eh+r}, v88\nv_sin_f32 v{TWS+4*eh+r}, v88")
            if r<3: e("v_add_f32 v88, v88, v87")
    e(f"""
    v_mul_f32 v87, 0x3d800000, v6
    v_mul_f32 v88, v89, v87
    """)
    for r in range(4):
        e(f"v_cos_f32 v{90+r}, v88\nv_sin_f32 v{94+r}, v88")
        if r<3: e("v_add_f32 v88, v88, v87")
    e(f"""
    s_nop 0
    v_cvt_pk_bf16_f32 v{A2+0}, v90, v91
    v_cvt_pk_bf16_f32 v{A2+1}, v92, v93
    v_cvt_pk_bf16_f32 v{A2+2}, v94, v95
    v_cvt_pk_bf16_f32 v{A2+3}, v96, v97
    v_cvt_pk_bf16_f32 v{A2+4}, -v94, -v95
    v_cvt_pk_bf16_f32 v{A2+5}, -v96, -v97
    v_cvt_pk_bf16_f32 v{A2+6}, v90, v91
    v_cvt_pk_bf16_f32 v{A2+7}, v92, v93
    """)
    e(f"""
    v_lshlrev_b32 v6, 3, v{L}
    v_add_u32 v{vTR2}, s26, v6
    s_add_u32 s40, s26, 16384
    v_lshlrev_b32 v6, 2, v{N}
    v_lshl_or_b32 v6, v{G}, 9, v6
    v_add_u32 v{vXW}, s40, v6
    v_and_b32 v6, 31, v{L}
    v_lshrrev_b32 v7, 5, v{L}
    s_and_b32 s43, s20, 3
    s_lshr_b32 s44, s20, 2
    s_lshl_b32 s45, s43, 7
    v_add_u32 v87, s45, v6
    v_lshlrev_b32 v88, 13, v7
    v_add_u32 v88, 16384, v88
    s_cmp_eq_u32 s44, 0
    s_cselect_b32 s46, 0, -1
    s_cselect_b32 s47, 0, 1
    """)
    for tau in range(4):
        e(f"""
        v_xor_b32 v89, s46, v87
        v_add_u32 v89, s47, v89
        v_and_b32 v89, 0x1ff, v89
        v_lshl_add_u32 v{vXR+tau}, v89, 2, v88
        """)
        if tau<3: e("v_add_u32 v87, 32, v87")
    e(f"""
    v_and_b32 v89, 7, v6
    v_lshlrev_b32 v89, 8, v89
    v_add_u32 v89, s33, v89
    v_cvt_f32_u32 v90, v89
    v_mul_f32 v90, 0x3a000000, v90
    v_lshlrev_b32 v91, 2, v7
    v_cvt_f32_u32 v91, v91
    v_mul_f32 v91, v91, v90
    v_lshrrev_b32 v92, 3, v6
    v_cmp_eq_u32 s[48:49], 0, v92
    v_cmp_eq_u32 s[50:51], 1, v92
    v_cmp_eq_u32 s[52:53], 2, v92
    v_cmp_eq_u32 s[54:55], 3, v92
    """)
    for x in range(4):
        e(f"v_cos_f32 v93, v91\nv_sin_f32 v94, v91")
        e("v_add_f32 v91, v91, v90" if x<3 else "s_nop 0")
        e(f"v_cvt_pk_bf16_f32 v95, v93, v94")
        for tau in range(4):
            e(f"v_cndmask_b32 v{B3+4*tau+x}, 0, v95, s[{48+2*tau}:{49+2*tau}]")
    e(f"""
    v_and_b32 v89, 7, v{L}
    v_lshlrev_b32 v89, 8, v89
    v_add_u32 v89, s33, v89
    v_xor_b32 v89, s46, v89
    v_add_u32 v89, s47, v89
    v_and_b32 v89, 0x7ff, v89
    v_lshlrev_b32 v89, 11, v89
    v_bfe_u32 v90, v{L}, 3, 1
    v_lshl_or_b32 v89, v90, 6, v89
    v_bfe_u32 v90, v{L}, 4, 1
    v_lshl_or_b32 v89, v90, 5, v89
    v_lshl_or_b32 v{vO}, v7, 4, v89
    s_lshl_b32 s56, s30, 10
    s_lshl_b32 s57, s43, 8
    s_add_u32 s56, s56, s57
    s_add_u32 s57, s56, 128
    """)

def p2_main(e, st_flags=""):
    A=88; D1=96; BF=112; D2=96; X=120; F=96; D3=112; Q=88
    stamp(e,2,"two")
    e("s_waitcnt vmcnt(0)")
    stamp(e,8)
    for ks in range(2):
        for i in range(2):
            e(f"ds_read_b64_tr_b16 v[{A+4*ks+2*i}:{A+4*ks+2*i+1}], v{vTR2} offset:{ks*1024+i*512}")
    e("s_waitcnt lgkmcnt(2)")
    for ks in range(2):
        if ks==1: e("s_waitcnt lgkmcnt(0)")
        for eh in range(2):
            for cp in range(2):
                d=D1+(eh*2+cp)*4; f=B1+((eh*2+cp)*2+ks)*4
                c="0" if ks==0 else f"v[{d}:{d+3}]"
                e(f"v_mfma_f32_16x16x32_bf16 v[{d}:{d+3}], v[{A+4*ks}:{A+4*ks+3}], v[{f}:{f+3}], {c}")
    e("s_nop 5")
    for eh in range(2):
        re=D1+eh*8; im=re+4
        for p in range(2):
            c=TWC+4*eh+2*p; s=TWS+4*eh+2*p; t=A+4*p; u=A+4*p+2
            e(f"v_pk_mul_f32 v[{t}:{t+1}], v[{re+2*p}:{re+2*p+1}], v[{c}:{c+1}]")
            e(f"v_pk_mul_f32 v[{u}:{u+1}], v[{im+2*p}:{im+2*p+1}], v[{c}:{c+1}]")
            e(f"v_pk_fma_f32 v[{t}:{t+1}], v[{im+2*p}:{im+2*p+1}], v[{s}:{s+1}], v[{t}:{t+1}]")
            e(f"v_pk_fma_f32 v[{u}:{u+1}], v[{re+2*p}:{re+2*p+1}], v[{s}:{s+1}], v[{u}:{u+1}] neg_lo:[1,0,0] neg_hi:[1,0,0]")
        for p in range(2):
            t=A+4*p; u=t+2
            e(f"v_cvt_pk_bf16_f32 v{BF+4*eh+p}, v{t}, v{t+1}")
            e(f"v_cvt_pk_bf16_f32 v{BF+4*eh+2+p}, v{u}, v{u+1}")
    e("s_nop 1")
    for eh in range(2):
        for cpp in range(2):
            d=D2+(eh*2+cpp)*4
            e(f"v_mfma_f32_16x16x32_bf16 v[{d}:{d+3}], v[{A2+4*cpp}:{A2+4*cpp+3}], v[{BF+4*eh}:{BF+4*eh+3}], 0")
    e("s_nop 7")
    for r in range(4):
        e(f"v_cvt_pk_bf16_f32 v{X+2*r}, v{D2+r}, v{D2+4+r}")
        e(f"v_cvt_pk_bf16_f32 v{X+2*r+1}, v{D2+8+r}, v{D2+12+r}")
        e(f"ds_write2_b32 v{vXW}, v{X+2*r}, v{X+2*r+1} offset0:{32*r} offset1:{32*r+16}")
    e("s_waitcnt lgkmcnt(0)\ns_barrier")
    stamp(e,9)
    e("s_and_b32 s58, s32, 127\ns_cmp_eq_u32 s58, 0\ns_cselect_b32 s58, s44, 0\ns_cmp_lg_u32 s58, 0\ns_cbranch_scc1 P2_END")
    for tau in range(4):
        e(f"ds_read2st64_b32 v[{F+4*tau}:{F+4*tau+1}], v{vXR+tau} offset0:0 offset1:8")
        e(f"ds_read2st64_b32 v[{F+4*tau+2}:{F+4*tau+3}], v{vXR+tau} offset0:16 offset1:24")
    for tau in range(4):
        e(f"s_waitcnt lgkmcnt({6-2*tau})")
        c="0" if tau==0 else f"v[{D3}:{D3+15}]"
        e(f"v_mfma_f32_32x32x16_bf16 v[{D3}:{D3+15}], v[{F+4*tau}:{F+4*tau+3}], v[{B3+4*tau}:{B3+4*tau+3}], {c}")
    e("s_nop 11")
    out_swaps(e,D3,Q)
    e(f"""
    buffer_store_dwordx4 v[{Q}:{Q+3}], v{vO}, s[12:15], s56 offen {st_flags}
    buffer_store_dwordx4 v[{Q+4}:{Q+7}], v{vO}, s[12:15], s57 offen {st_flags}
    P2_END:
    """)

def signal(e):
    e("""
    s_waitcnt vmcnt(0)
    s_barrier
    s_cmp_eq_u32 s20, 0
    s_cbranch_scc0 SIG_DONE
    s_lshl_b32 s64, s23, 7
    s_and_b32 s65, s21, 1
    s_lshl_b32 s65, s65, 6
    s_add_u32 s64, s64, s65
    v_mov_b32 v4, s64
    v_mov_b32 v5, 1
    s_mov_b64 exec, 1
    buffer_atomic_add v5, v4, s[60:63], 0 offen sc1
    s_mov_b64 exec, -1
    SIG_DONE:
    """)
def poll(e):
    e("""
    s_cmp_eq_u32 s20, 0
    s_cbranch_scc0 POLL_DONE
    v_lshlrev_b32 v4, 6, v2
    s_lshl_b32 s64, s30, 7
    v_add_u32 v4, s64, v4
    s_mov_b32 s65, 0x40000
    s_mov_b64 exec, 3
    POLL:
    buffer_load_dword v5, v4, s[60:63], 0 offen sc1
    s_sub_u32 s65, s65, 1
    s_cbranch_scc1 POLL_OUT
    s_waitcnt vmcnt(0)
    v_cmp_le_u32 vcc, 64, v5
    s_nop 4
    s_cmp_eq_u32 vcc_lo, 3
    s_cbranch_scc0 POLL
    POLL_OUT:
    s_mov_b64 exec, -1
    POLL_DONE:
    s_barrier
    """)
def fused(zst="sc1", zld="sc1", ost=""):
    k1=NAME+"_kernel"
    e=E()
    e("""s_cmp_ge_u32 s2, 258
    s_cbranch_scc1 K_END
    s_load_dwordx2 s[4:5], s[0:1], 0
    s_load_dwordx2 s[6:7], s[0:1], 40
    s_load_dwordx2 s[8:9], s[0:1], 96
    s_load_dwordx4 s[56:59], s[0:1], 80""")
    stamp(e,0)
    e("s_cmp_ge_u32 s2, 256\ns_cbranch_scc1 SKIP_P1")
    phase1(e,zst)
    srd(e,60,58,59,256)
    stamp(e,4)
    signal(e)
    e("""s_branch P2_START
    SKIP_P1:
    v_lshrrev_b32 v1, 6, v0
    v_and_b32 v2, 63, v0
    s_nop 0
    v_readfirstlane_b32 s20, v1
    s_waitcnt lgkmcnt(0)""")
    srd(e,60,58,59,256)
    srd(e,16,8,9,0x400000)
    e("P2_START:")
    stamp(e,5)
    srd(e,12,56,57,0x400000)
    p2_setup(e,"s2")
    e("s_lshl_b32 s26, s20, 11")
    p2_consts(e)
    stamp(e,6)
    poll(e)
    stamp(e,7)
    p2_dma(e,zld)
    p2_main(e,ost)
    stamp_out(e,0,0,0)
    e("K_END:\ns_endpgm")
    s=HEADER+f"; @launch grid=(258,1,1) block=(512,1,1) lds=32768\n"
    s+='.amdgcn_target "amdgcn-amd-amdhsa--gfx950"\n.text\n'
    s+=func(k1,e.txt())
    s+='.section .rodata,"a"\n.p2align 6\n'+kd(k1,128,102)
    return s
def kd(name,vg,sg=102):
    return f""".amdhsa_kernel {name}
  .amdhsa_next_free_vgpr {vg}
  .amdhsa_next_free_sgpr {sg}
  .amdhsa_accum_offset {vg}
  .amdhsa_group_segment_fixed_size 0
  .amdhsa_kernarg_size 104
  .amdhsa_user_sgpr_count 2
  .amdhsa_user_sgpr_kernarg_segment_ptr 1
  .amdhsa_system_sgpr_workgroup_id_x 1
.end_amdhsa_kernel
"""
def func(name,body):
    return f".globl {name}\n.p2align 8\n.type {name},@function\n{name}:\n{body}"

def two_kernel(zst="", zld="", ost=""):
    k1=NAME+"_kernel"; k2="fnet_p2_kernel"
    e=E()
    e("""s_cmp_ge_u32 s2, 256
    s_cbranch_scc1 K1_END
    s_load_dwordx2 s[4:5], s[0:1], 0
    s_load_dwordx2 s[6:7], s[0:1], 40
    s_load_dwordx2 s[8:9], s[0:1], 96""")
    if DIAG: e("s_load_dwordx2 s[68:69], s[0:1], 88")
    stamp(e,0)
    phase1(e,zst)
    stamp_out(e,0,0,0)
    e("K1_END:\ns_endpgm")
    f=E()
    f("""s_cmp_ge_u32 s2, 258
    s_cbranch_scc1 K2_END
    s_load_dwordx2 s[8:9], s[0:1], 96
    s_load_dwordx2 s[10:11], s[0:1], 80""")
    if DIAG: f("s_load_dwordx2 s[68:69], s[0:1], 88")
    stamp(f,0)
    f("""v_lshrrev_b32 v1, 6, v0
    v_and_b32 v2, 63, v0
    s_nop 0
    v_readfirstlane_b32 s20, v1""")
    p2_setup(f,"s2")
    f("s_waitcnt lgkmcnt(0)")
    srd(f,16,8,9,0x400000)
    p2_dma(f,zld)
    stamp(f,1)
    srd(f,12,10,11,0x400000)
    p2_consts(f)
    p2_main(f,ost)
    stamp_out(f,1,512,0)
    f("K2_END:\ns_endpgm")
    s=HEADER+f"; @launch kernel={k1} grid=(256,1,1) block=(512,1,1) lds=32768\n; @launch kernel={k2} grid=(258,1,1) block=(512,1,1) lds=32768\n"
    s+='.amdgcn_target "amdgcn-amd-amdhsa--gfx950"\n.text\n'
    s+=func(k1,e.txt())+func(k2,f.txt())
    s+='.section .rodata,"a"\n.p2align 6\n'+kd(k1,80,96)+".p2align 6\n"+kd(k2,128,96)
    return s
if __name__=="__main__":
    mode=sys.argv[1]; out=sys.argv[2]
    if mode.endswith("_hdiag"):
        DIAG=True; HDIAG=True; mode=mode[:-6]
    if mode.endswith("_diag"):
        DIAG=True; mode=mode[:-5]
    if mode=="two": s=two_kernel(*sys.argv[3:])
    if mode=="fused": FUSED=True; s=fused(*sys.argv[3:])
    open(out,"w").write(s)
```

```python
import sys
NAME="concat_heads__spectral_fnet__spectral_fnet__prompt"
class E:
    def __init__(s): s.l=[]
    def __call__(s,t):
        for x in t.strip("\n").split("\n"): s.l.append("    "+x.strip() if not x.strip().endswith(":") else x.strip())
    def txt(s): return "\n".join(s.l)+"\n"
def vr(a,n=1): return f"v{a}" if n==1 else f"v[{a}:{a+n-1}]"

HEADER=open("cdna_kernels/%s.s.ref"%NAME).read().split("; Override launch")[0]

def srd(e,s,lo,hi,n):
    e(f"s_mov_b32 s{s}, s{lo}\ns_mov_b32 s{s+1}, s{hi}\ns_mov_b32 s{s+2}, {hex(n)}\ns_mov_b32 s{s+3}, 0x20000")

DIAG=False
OPT={}
FUSED=False
def stamp(e,k,mode=None):
    if mode=="two" and FUSED: return
    if DIAG: e(f"s_memrealtime s[70:71]\ns_waitcnt lgkmcnt(0)\ns_mov_b32 s{72+k}, s70")
HDIAG=False
def stamp_out_h(e):
    e("""
    s_waitcnt vmcnt(0)
    s_memrealtime s[70:71]
    s_waitcnt lgkmcnt(0)
    s_mov_b32 s83, s70
    s_cmp_eq_u32 s20, 0
    s_cbranch_scc0 DIAG_SKIP
    s_mov_b64 exec, 1
    v_mov_b32 v1, 0
    s_not_b32 s84, s72
    v_mov_b32 v2, s84
    v_mov_b32 v3, s83
    buffer_atomic_umax v2, v1, s[60:63], 0 offen offset:4
    buffer_atomic_umax v3, v1, s[60:63], 0 offen offset:8
    v_mov_b32 v3, s74
    s_nop 1
    buffer_atomic_umax v3, v1, s[60:63], 0 offen offset:12
    s_nop 1
    v_mov_b32 v3, s77
    s_nop 1
    buffer_atomic_umax v3, v1, s[60:63], 0 offen offset:16
    s_nop 1
    v_mov_b32 v3, s79
    s_nop 1
    buffer_atomic_umax v3, v1, s[60:63], 0 offen offset:20
    s_cmp_eq_u32 s2, 0
    s_cbranch_scc0 DIAG_SKIP
    """)
    idx=[0,1,2,3,4,5,6,7,8,11]
    for j,k in enumerate(idx):
        e(f"v_mov_b32 v2, s{72+k}\nbuffer_store_dword v2, v1, s[60:63], 0 offen offset:{24+4*j}\ns_nop 1")
    e("DIAG_SKIP:")
def stamp_out(e,base,dbgoff,late):
    if HDIAG: return stamp_out_h(e)
    if not DIAG: return
    e(f"""
    s_waitcnt vmcnt(0)
    s_memrealtime s[70:71]
    s_waitcnt lgkmcnt(0)
    s_mov_b32 s83, s70
    s_getreg_b32 s82, hwreg(HW_REG_XCC_ID)
    s_add_u32 s84, s8, {0x800000+base*0x40000}
    s_addc_u32 s85, s9, 0
    s_mov_b32 s86, 0x40000
    s_mov_b32 s87, 0x20000
    s_lshl_b32 s88, s2, 3
    s_add_u32 s88, s88, s20
    s_lshl_b32 s88, s88, 6
    v_mov_b32 v1, s88
    s_mov_b64 exec, 1
    """)
    for k in range(12):
        e(f"v_mov_b32 v2, s{72+k}\nbuffer_store_dword v2, v1, s[84:87], 0 offen offset:{4*k}\ns_nop 1")
DIAGWG=0
def out_swaps(e,D,Q):
    for g in range(4):
        base=Q+4*(g>>1)+2*(g&1)
        e(f"v_cvt_pk_bf16_f32 v{base}, v{D+4*g}, v{D+4*g+1}")
        e(f"v_cvt_pk_bf16_f32 v{base+1}, v{D+4*g+2}, v{D+4*g+3}")
    e("s_nop 1")
    for gp in range(2):
        b=Q+4*gp
        e(f"v_permlane32_swap_b32 v{b}, v{b+2}")
        e(f"v_permlane32_swap_b32 v{b+1}, v{b+3}")
    e("s_nop 1")
    for x in range(4):
        e(f"v_permlane16_swap_b32 v{Q+x}, v{Q+4+x}")

def phase1(e, st_flags="", fused=False):
    L=2; T=3
    e(f"""
    v_lshrrev_b32 v1, 6, v0
    v_and_b32 v{L}, 63, v0
    s_and_b32 s21, s2, 7
    v_readfirstlane_b32 s20, v1
    s_bfe_u32 s22, s2, 0x40003
    s_bfe_u32 s23, s2, 0x10007
    v_lshrrev_b32 v3, 2, v{L}
    v_lshlrev_b32 v3, 17, v3
    v_and_b32 v4, 3, v{L}
    v_lshl_or_b32 v3, v4, 4, v3
    s_lshl_b32 s24, s20, 14
    s_lshl_b32 s25, s21, 10
    s_add_u32 s24, s24, s25
    s_lshl_b32 s25, s22, 6
    s_add_u32 s24, s24, s25
    s_add_u32 s25, s24, 8192
    s_lshl_b32 s26, s20, 11
    s_add_u32 s27, s26, 1024
    s_cmp_eq_u32 s23, 0
    s_waitcnt lgkmcnt(0)
    s_cselect_b32 s12, s4, s6
    s_cselect_b32 s13, s5, s7
    s_mov_b32 s14, 0x200000
    s_mov_b32 s15, 0x20000
    s_mov_b32 m0, s26
    s_nop 0
    buffer_load_dwordx4 v3, s[12:15], s24 offen lds
    s_mov_b32 m0, s27
    s_nop 0
    buffer_load_dwordx4 v3, s[12:15], s25 offen lds
    """)
    stamp(e,1)
    srd(e,16,8,9,0x400000)
    if OPT.get("touch"):
        srd(e,64,56,57,0x400000)
        srd(e,60,58,59,256)
        e("""
        s_lshl_b32 s46, s23, 21
        v_mov_b32 v6, 0
        s_mov_b32 s47, 0x200000
        s_mov_b64 exec, 1
        buffer_load_dword v100, v6, s[16:19], s46 offen
        buffer_load_dword v101, v6, s[64:67], 0 offen
        buffer_load_dword v102, v6, s[64:67], s47 offen
        buffer_load_dword v103, v6, s[60:63], 0 offen sc1
        s_mov_b64 exec, -1
        """)
    if OPT.get("pad"):
        for i in range(int(OPT["pad"])): e("s_nop 0")
    if OPT.get("padloop"):
        e("s_mov_b32 s46, %d\nPADL:"%(int(OPT["padloop"])//16))
        for i in range(16): e("s_nop 0")
        e("s_sub_u32 s46, s46, 1\ns_cmp_lg_u32 s46, 0\ns_cbranch_scc1 PADL")
    A1=8
    B2=12
    vTR=20; vEW=21; vER=22; vZ=23
    H=24; M=25
    e(f"""
    v_lshrrev_b32 v{H}, 5, v{L}
    v_and_b32 v{M}, 31, v{L}
    ; --- A1: P=(m>>1)&7 c=m&1
    v_bfe_u32 v4, v{M}, 1, 3
    v_and_b32 v5, 1, v{M}
    v_and_b32 v6, 15, v{M}
    v_cmp_eq_u32 vcc, 1, v6
    v_cvt_f32_u32 v7, v4
    v_cvt_f32_u32 v26, v5
    v_mul_f32 v7, 0x3d800000, v7
    v_mul_f32 v26, 0x3e800000, v26
    v_cndmask_b32 v7, v7, 0.5, vcc
    v_cndmask_b32 v26, v26, 0, vcc
    v_lshlrev_b32 v27, 3, v{H}
    v_cvt_f32_u32 v27, v27
    v_fma_f32 v26, v27, v7, v26
    """)
    for jj in range(8):
        if jj>0: e(f"v_add_f32 v26, v26, v7")
        e(f"v_cos_f32 v{28+jj}, v26")
    e("s_nop 0")
    for q in range(4): e(f"v_cvt_pk_bf16_f32 v{A1+q}, v{28+2*q}, v{29+2*q}")
    e(f"""
    v_lshrrev_b32 v4, 4, v{M}
    v_and_b32 v5, 7, v{M}
    v_lshl_or_b32 v4, v4, 3, v5
    v_bfe_u32 v5, v{M}, 3, 1
    v_cvt_f32_u32 v6, v5
    v_mul_f32 v6, 0x3e800000, v6
    s_cmp_eq_u32 s20, 0
    s_cbranch_scc1 P1_SPECIAL
    v_lshlrev_b32 v7, 4, v4
    v_add_u32 v7, s20, v7
    v_mov_b32 v26, v6
    v_add_f32 v27, 0xbe800000, v6
    v_mov_b32 v28, -1
    s_branch P1_COMMON
    P1_SPECIAL:
    v_lshlrev_b32 v7, 4, v4
    v_cmp_le_u32 vcc, 8, v4
    v_subrev_u32 v29, 120, v7
    v_mov_b32 v28, 0xffff
    v_mov_b32 v30, 0xffff0000
    v_cndmask_b32 v7, v7, v29, vcc
    v_cndmask_b32 v28, v28, v30, vcc
    v_cmp_eq_u32 vcc, 8, v{M}
    v_mov_b32 v29, 0x80
    v_mov_b32 v26, v6
    v_cndmask_b32 v7, v7, v29, vcc
    v_cndmask_b32 v26, v26, 0, vcc
    s_nop 0
    v_mov_b32 v27, v26
    P1_COMMON:
    v_cvt_f32_u32 v7, v7
    v_lshlrev_b32 v29, 2, v{H}
    v_cvt_f32_u32 v29, v29
    v_mul_f32 v7, 0x3b800000, v7
    v_fma_f32 v26, v29, v7, v26
    v_fma_f32 v27, v29, v7, v27
    v_mul_f32 v29, 4.0, v7
    """)
    for ks in range(2):
        for x in range(4):
            e(f"v_cos_f32 v30, v26\nv_cos_f32 v31, v27")
            if x<3: e("v_add_f32 v26, v26, v7\nv_add_f32 v27, v27, v7")
            elif ks==0: e("v_fma_f32 v26, v7, v36, v26\nv_fma_f32 v27, v7, v36, v27") if False else e("v_add_f32 v26, v26, v7\nv_add_f32 v27, v27, v7\nv_add_f32 v26, v26, v29\nv_add_f32 v27, v27, v29")
            else: e("s_nop 0")
            e(f"v_cvt_pk_bf16_f32 v{B2+4*ks+x}, v30, v31")
    for q in range(8): e(f"v_and_b32 v{B2+q}, v{B2+q}, v28")
    e(f"""
    v_bfe_u32 v4, v{L}, 2, 2
    v_lshl_or_b32 v4, v{H}, 3, v4
    v_lshlrev_b32 v4, 6, v4
    v_bfe_u32 v5, v{L}, 4, 1
    v_lshl_or_b32 v4, v5, 5, v4
    v_and_b32 v5, 3, v{L}
    v_lshl_or_b32 v4, v5, 3, v4
    v_add_u32 v{vTR}, s26, v4
    s_lshl_b32 s28, s20, 8
    s_add_u32 s28, s28, 16384
    v_lshlrev_b32 v4, 3, v{M}
    v_lshl_or_b32 v5, v{H}, 12, v4
    v_add_u32 v{vEW}, s28, v5
    s_add_u32 s28, s26, 16384
    v_lshl_or_b32 v5, v{H}, 9, v4
    v_add_u32 v{vER}, s28, v5
    v_and_b32 v4, 7, v{L}
    v_lshlrev_b32 v4, 14, v4
    v_bfe_u32 v5, v{L}, 3, 1
    v_lshl_or_b32 v4, v5, 6, v4
    v_bfe_u32 v5, v{L}, 4, 1
    v_lshl_or_b32 v4, v5, 5, v4
    v_lshl_or_b32 v{vZ}, v{H}, 4, v4
    s_lshl_b32 s28, s23, 21
    s_lshl_b32 s29, s20, 18
    s_add_u32 s28, s28, s29
    s_lshl_b32 s29, s21, 11
    s_add_u32 s28, s28, s29
    s_lshl_b32 s29, s22, 7
    s_add_u32 s28, s28, s29
    s_add_u32 s29, s28, 0x20000
    """)
    B0=28; B1=32; Da=40; Db=56; X=72
    NT=4 if OPT.get("touch") else 0
    if DIAG: e("s_waitcnt vmcnt(0)")
    stamp(e,2)
    e(f"""
    s_waitcnt vmcnt({1+NT})
    ds_read_b64_tr_b16 v[{B0}:{B0+1}], v{vTR} offset:0
    ds_read_b64_tr_b16 v[{B0+2}:{B0+3}], v{vTR} offset:256
    s_waitcnt vmcnt({NT})
    ds_read_b64_tr_b16 v[{B1}:{B1+1}], v{vTR} offset:1024
    ds_read_b64_tr_b16 v[{B1+2}:{B1+3}], v{vTR} offset:1280
    s_waitcnt lgkmcnt(2)
    v_mfma_f32_32x32x16_bf16 v[{Da}:{Da+15}], v[{A1}:{A1+3}], v[{B0}:{B0+3}], 0
    s_waitcnt lgkmcnt(0)
    v_mfma_f32_32x32x16_bf16 v[{Db}:{Db+15}], v[{A1}:{A1+3}], v[{B1}:{B1+3}], 0
    s_nop 10
    """)
    for mu in range(4): e(f"v_cvt_pk_bf16_f32 v{X+2*mu}, v{Da+2*mu}, v{Da+2*mu+1}")
    e("s_nop 6")
    offs=[0,2048,8192,10240]
    for mu in range(4):
        e(f"v_cvt_pk_bf16_f32 v{X+2*mu+1}, v{Db+2*mu}, v{Db+2*mu+1}")
        e(f"ds_write_b64 v{vEW}, v[{X+2*mu}:{X+2*mu+1}] offset:{offs[mu]}")
    e("s_waitcnt lgkmcnt(0)\ns_barrier")
    stamp(e,3)
    F=28
    for ks in range(2):
        for sg in range(2):
            e(f"ds_read_b64 v[{F+4*ks+2*sg}:{F+4*ks+2*sg+1}], v{vER} offset:{(4*ks+sg)*256}")
    e(f"""
    s_waitcnt lgkmcnt(2)
    v_mfma_f32_32x32x16_bf16 v[{Da}:{Da+15}], v[{F}:{F+3}], v[{B2}:{B2+3}], 0
    s_waitcnt lgkmcnt(0)
    v_mfma_f32_32x32x16_bf16 v[{Da}:{Da+15}], v[{F+4}:{F+7}], v[{B2+4}:{B2+7}], v[{Da}:{Da+15}]
    s_nop 11
    """)
    out_swaps(e,Da,X)
    e(f"""
    buffer_store_dwordx4 v[{X}:{X+3}], v{vZ}, s[16:19], s28 offen {st_flags}
    buffer_store_dwordx4 v[{X+4}:{X+7}], v{vZ}, s[16:19], s29 offen {st_flags}
    """)

def p2_setup(e, idreg):
    e(f"""
    s_and_b32 s30, {idreg}, 1
    s_lshr_b32 s31, {idreg}, 1
    s_and_b32 s32, s31, 127
    s_lshr_b32 s34, s32, 4
    s_and_b32 s35, s32, 15
    s_lshl_b32 s36, s35, 4
    s_add_u32 s33, s36, s34
    s_sub_u32 s37, s36, 120
    s_cmp_ge_u32 s35, 8
    s_cselect_b32 s37, s37, s36
    s_cmp_eq_u32 s34, 0
    s_cselect_b32 s33, s37, s33
    s_cmp_eq_u32 s31, 128
    s_cselect_b32 s33, 128, s33
    """)

def p2_dma(e, ld_flags=""):
    L=2
    e(f"""
    v_lshlrev_b32 v3, 4, v{L}
    s_lshl_b32 s38, s30, 21
    s_lshl_b32 s39, s32, 14
    s_add_u32 s38, s38, s39
    s_lshl_b32 s26, s20, 11
    s_add_u32 s38, s38, s26
    s_add_u32 s39, s38, 1024
    s_add_u32 s27, s26, 1024
    s_cmp_eq_u32 s32, 0
    s_cbranch_scc0 P2_REG
    v_bfe_u32 v4, v{L}, 2, 1
    s_lshr_b32 s40, s31, 1
    v_lshlrev_b32 v4, 30, v4
    v_add_u32 v3, s40, v3
    v_add_u32 v3, v4, v3
    P2_REG:
    s_mov_b32 m0, s26
    s_nop 0
    buffer_load_dwordx4 v3, s[16:19], s38 offen {ld_flags} lds
    s_mov_b32 m0, s27
    s_nop 0
    buffer_load_dwordx4 v3, s[16:19], s39 offen {ld_flags} lds
    """)

B1=8; TWC=40; TWS=48; A2=56; B3=64; vTR2=80; vXW=81; vXR=82; vO=86
def p2_consts(e):
    L=2; N=4; G=5
    e(f"""
    v_and_b32 v{N}, 15, v{L}
    v_lshrrev_b32 v{G}, 4, v{L}
    v_cvt_f32_u32 v6, v{N}
    v_cvt_f32_u32 v7, v{G}
    v_mul_f32 v87, 0x3d000000, v6
    v_add_f32 v88, v7, v7
    v_mul_f32 v88, v88, v87
    v_mul_f32 v89, 0x41000000, v87
    s_mov_b32 s41, 0x80008000
    s_mov_b32 s42, 0x80000000
    """)
    for ks in range(2):
        for i in range(2):
            f0=B1+ (0*2+0)*8 ;
            fr=lambda eh,cp: B1+((eh*2+cp)*2+ks)*4
            e(f"""
            v_add_f32 v90, v88, v87
            v_cos_f32 v91, v88
            v_cos_f32 v92, v90
            v_sin_f32 v93, v88
            v_sin_f32 v94, v90
            v_add_f32 v88, v88, v89
            v_cvt_pk_bf16_f32 v{fr(0,0)+2*i}, v91, v92
            v_cvt_pk_bf16_f32 v{fr(0,1)+2*i+1}, v91, v92
            v_cvt_pk_bf16_f32 v{fr(0,0)+2*i+1}, v93, v94
            v_cvt_pk_bf16_f32 v{fr(0,1)+2*i}, -v93, -v94
            v_cvt_pk_bf16_f32 v{fr(1,0)+2*i}, v91, -v92
            v_cvt_pk_bf16_f32 v{fr(1,1)+2*i+1}, v91, -v92
            v_cvt_pk_bf16_f32 v{fr(1,0)+2*i+1}, v93, -v94
            v_cvt_pk_bf16_f32 v{fr(1,1)+2*i}, -v93, v94
            """)
    e(f"""
    v_mul_f32 v87, 0x3b000000, v6
    v_mul_f32 v89, 4.0, v7
    """)
    for eh in range(2):
        if eh==1: e("v_add_f32 v87, 0x3d000000, v87")
        e("v_mul_f32 v88, v89, v87")
        for r in range(4):
            e(f"v_cos_f32 v{TWC+4*eh+r}, v88\nv_sin_f32 v{TWS+4*eh+r}, v88")
            if r<3: e("v_add_f32 v88, v88, v87")
    e(f"""
    v_mul_f32 v87, 0x3d800000, v6
    v_mul_f32 v88, v89, v87
    """)
    for r in range(4):
        e(f"v_cos_f32 v{90+r}, v88\nv_sin_f32 v{94+r}, v88")
        if r<3: e("v_add_f32 v88, v88, v87")
    e(f"""
    s_nop 0
    v_cvt_pk_bf16_f32 v{A2+0}, v90, v91
    v_cvt_pk_bf16_f32 v{A2+1}, v92, v93
    v_cvt_pk_bf16_f32 v{A2+2}, v94, v95
    v_cvt_pk_bf16_f32 v{A2+3}, v96, v97
    v_cvt_pk_bf16_f32 v{A2+4}, -v94, -v95
    v_cvt_pk_bf16_f32 v{A2+5}, -v96, -v97
    v_cvt_pk_bf16_f32 v{A2+6}, v90, v91
    v_cvt_pk_bf16_f32 v{A2+7}, v92, v93
    """)
    e(f"""
    v_lshlrev_b32 v6, 3, v{L}
    v_add_u32 v{vTR2}, s26, v6
    s_add_u32 s40, s26, 16384
    v_lshlrev_b32 v6, 2, v{N}
    v_lshl_or_b32 v6, v{G}, 9, v6
    v_add_u32 v{vXW}, s40, v6
    v_and_b32 v6, 31, v{L}
    v_lshrrev_b32 v7, 5, v{L}
    s_and_b32 s43, s20, 3
    s_lshr_b32 s44, s20, 2
    s_lshl_b32 s45, s43, 7
    v_add_u32 v87, s45, v6
    v_lshlrev_b32 v88, 13, v7
    v_add_u32 v88, 16384, v88
    s_cmp_eq_u32 s44, 0
    s_cselect_b32 s46, 0, -1
    s_cselect_b32 s47, 0, 1
    """)
    for tau in range(4):
        e(f"""
        v_xor_b32 v89, s46, v87
        v_add_u32 v89, s47, v89
        v_and_b32 v89, 0x1ff, v89
        v_lshl_add_u32 v{vXR+tau}, v89, 2, v88
        """)
        if tau<3: e("v_add_u32 v87, 32, v87")
    e(f"""
    v_and_b32 v89, 7, v6
    v_lshlrev_b32 v89, 8, v89
    v_add_u32 v89, s33, v89
    v_cvt_f32_u32 v90, v89
    v_mul_f32 v90, 0x3a000000, v90
    v_lshlrev_b32 v91, 2, v7
    v_cvt_f32_u32 v91, v91
    v_mul_f32 v91, v91, v90
    v_lshrrev_b32 v92, 3, v6
    v_cmp_eq_u32 s[48:49], 0, v92
    v_cmp_eq_u32 s[50:51], 1, v92
    v_cmp_eq_u32 s[52:53], 2, v92
    v_cmp_eq_u32 s[54:55], 3, v92
    """)
    for x in range(4):
        e(f"v_cos_f32 v93, v91\nv_sin_f32 v94, v91")
        e("v_add_f32 v91, v91, v90" if x<3 else "s_nop 0")
        e(f"v_cvt_pk_bf16_f32 v95, v93, v94")
        for tau in range(4):
            e(f"v_cndmask_b32 v{B3+4*tau+x}, 0, v95, s[{48+2*tau}:{49+2*tau}]")
    e(f"""
    v_and_b32 v89, 7, v{L}
    v_lshlrev_b32 v89, 8, v89
    v_add_u32 v89, s33, v89
    v_xor_b32 v89, s46, v89
    v_add_u32 v89, s47, v89
    v_and_b32 v89, 0x7ff, v89
    v_lshlrev_b32 v89, 11, v89
    v_bfe_u32 v90, v{L}, 3, 1
    v_lshl_or_b32 v89, v90, 6, v89
    v_bfe_u32 v90, v{L}, 4, 1
    v_lshl_or_b32 v89, v90, 5, v89
    v_lshl_or_b32 v{vO}, v7, 4, v89
    s_lshl_b32 s56, s30, 10
    s_lshl_b32 s57, s43, 8
    s_add_u32 s56, s56, s57
    s_add_u32 s57, s56, 128
    """)

def p2_main(e, st_flags=""):
    A=88; D1=96; BF=112; D2=96; X=120; F=96; D3=112; Q=88
    stamp(e,2,"two")
    e("s_waitcnt vmcnt(0)")
    stamp(e,8)
    for ks in range(2):
        for i in range(2):
            e(f"ds_read_b64_tr_b16 v[{A+4*ks+2*i}:{A+4*ks+2*i+1}], v{vTR2} offset:{ks*1024+i*512}")
    e("s_waitcnt lgkmcnt(2)")
    for ks in range(2):
        if ks==1: e("s_waitcnt lgkmcnt(0)")
        for eh in range(2):
            for cp in range(2):
                d=D1+(eh*2+cp)*4; f=B1+((eh*2+cp)*2+ks)*4
                c="0" if ks==0 else f"v[{d}:{d+3}]"
                e(f"v_mfma_f32_16x16x32_bf16 v[{d}:{d+3}], v[{A+4*ks}:{A+4*ks+3}], v[{f}:{f+3}], {c}")
    e("s_nop 5")
    for eh in range(2):
        re=D1+eh*8; im=re+4
        for p in range(2):
            c=TWC+4*eh+2*p; s=TWS+4*eh+2*p; t=A+4*p; u=A+4*p+2
            e(f"v_pk_mul_f32 v[{t}:{t+1}], v[{re+2*p}:{re+2*p+1}], v[{c}:{c+1}]")
            e(f"v_pk_mul_f32 v[{u}:{u+1}], v[{im+2*p}:{im+2*p+1}], v[{c}:{c+1}]")
            e(f"v_pk_fma_f32 v[{t}:{t+1}], v[{im+2*p}:{im+2*p+1}], v[{s}:{s+1}], v[{t}:{t+1}]")
            e(f"v_pk_fma_f32 v[{u}:{u+1}], v[{re+2*p}:{re+2*p+1}], v[{s}:{s+1}], v[{u}:{u+1}] neg_lo:[1,0,0] neg_hi:[1,0,0]")
        for p in range(2):
            t=A+4*p; u=t+2
            e(f"v_cvt_pk_bf16_f32 v{BF+4*eh+p}, v{t}, v{t+1}")
            e(f"v_cvt_pk_bf16_f32 v{BF+4*eh+2+p}, v{u}, v{u+1}")
    e("s_nop 1")
    for eh in range(2):
        for cpp in range(2):
            d=D2+(eh*2+cpp)*4
            e(f"v_mfma_f32_16x16x32_bf16 v[{d}:{d+3}], v[{A2+4*cpp}:{A2+4*cpp+3}], v[{BF+4*eh}:{BF+4*eh+3}], 0")
    e("s_nop 7")
    for r in range(4):
        e(f"v_cvt_pk_bf16_f32 v{X+2*r}, v{D2+r}, v{D2+4+r}")
        e(f"v_cvt_pk_bf16_f32 v{X+2*r+1}, v{D2+8+r}, v{D2+12+r}")
        e(f"ds_write2_b32 v{vXW}, v{X+2*r}, v{X+2*r+1} offset0:{32*r} offset1:{32*r+16}")
    e("s_waitcnt lgkmcnt(0)\ns_barrier")
    stamp(e,9)
    e("s_and_b32 s58, s32, 127\ns_cmp_eq_u32 s58, 0\ns_cselect_b32 s58, s44, 0\ns_cmp_lg_u32 s58, 0\ns_cbranch_scc1 P2_END")
    for tau in range(4):
        e(f"ds_read2st64_b32 v[{F+4*tau}:{F+4*tau+1}], v{vXR+tau} offset0:0 offset1:8")
        e(f"ds_read2st64_b32 v[{F+4*tau+2}:{F+4*tau+3}], v{vXR+tau} offset0:16 offset1:24")
    for tau in range(4):
        e(f"s_waitcnt lgkmcnt({6-2*tau})")
        c="0" if tau==0 else f"v[{D3}:{D3+15}]"
        e(f"v_mfma_f32_32x32x16_bf16 v[{D3}:{D3+15}], v[{F+4*tau}:{F+4*tau+3}], v[{B3+4*tau}:{B3+4*tau+3}], {c}")
    e("s_nop 11")
    out_swaps(e,D3,Q)
    e(f"""
    buffer_store_dwordx4 v[{Q}:{Q+3}], v{vO}, s[12:15], s56 offen {st_flags}
    buffer_store_dwordx4 v[{Q+4}:{Q+7}], v{vO}, s[12:15], s57 offen {st_flags}
    P2_END:
    """)

def signal(e):
    e("""
    s_waitcnt vmcnt(0)
    s_barrier
    s_cmp_eq_u32 s20, 0
    s_cbranch_scc0 SIG_DONE
    s_lshl_b32 s64, s23, 7
    s_and_b32 s65, s21, 1
    s_lshl_b32 s65, s65, 6
    s_add_u32 s64, s64, s65
    v_mov_b32 v4, s64
    v_mov_b32 v5, 1
    s_mov_b64 exec, 1
    buffer_atomic_add v5, v4, s[60:63], 0 offen sc1
    s_mov_b64 exec, -1
    SIG_DONE:
    """)
def poll(e):
    e("""
    s_cmp_eq_u32 s20, 0
    s_cbranch_scc0 POLL_DONE
    v_lshlrev_b32 v4, 6, v2
    s_lshl_b32 s64, s30, 7
    v_add_u32 v4, s64, v4
    s_mov_b32 s65, 0x40000
    s_mov_b64 exec, 3
    POLL:
    buffer_load_dword v5, v4, s[60:63], 0 offen sc1
    s_sub_u32 s65, s65, 1
    s_cbranch_scc1 POLL_OUT
    s_waitcnt vmcnt(0)
    v_cmp_le_u32 vcc, 64, v5
    s_nop 4
    s_cmp_eq_u32 vcc_lo, 3
    s_cbranch_scc0 POLL
    POLL_OUT:
    s_mov_b64 exec, -1
    POLL_DONE:
    s_barrier
    """)
def fused(zst="sc1", zld="sc1", ost=""):
    k1=NAME+"_kernel"
    e=E()
    e("""s_cmp_ge_u32 s2, 258
    s_cbranch_scc1 K_END
    s_load_dwordx2 s[4:5], s[0:1], 0
    s_load_dwordx2 s[6:7], s[0:1], 40
    s_load_dwordx2 s[8:9], s[0:1], 96
    s_load_dwordx4 s[56:59], s[0:1], 80""")
    stamp(e,0)
    e("s_cmp_ge_u32 s2, 256\ns_cbranch_scc1 SKIP_P1")
    phase1(e,zst)
    srd(e,60,58,59,256)
    stamp(e,4)
    signal(e)
    e("""s_branch P2_START
    SKIP_P1:
    v_lshrrev_b32 v1, 6, v0
    v_and_b32 v2, 63, v0
    s_nop 0
    v_readfirstlane_b32 s20, v1
    s_waitcnt lgkmcnt(0)""")
    srd(e,60,58,59,256)
    srd(e,16,8,9,0x400000)
    e("P2_START:")
    stamp(e,5)
    srd(e,12,56,57,0x400000)
    p2_setup(e,"s2")
    e("s_lshl_b32 s26, s20, 11")
    p2_consts(e)
    stamp(e,6)
    poll(e)
    stamp(e,7)
    p2_dma(e,zld)
    p2_main(e,ost)
    stamp_out(e,0,0,0)
    e("K_END:\ns_endpgm")
    s=HEADER+f"; @launch grid=(258,1,1) block=(512,1,1) lds=32768\n"
    s+='.amdgcn_target "amdgcn-amd-amdhsa--gfx950"\n.text\n'
    s+=func(k1,e.txt())
    s+='.section .rodata,"a"\n.p2align 6\n'+kd(k1,128,102)
    return s
def kd(name,vg,sg=102):
    return f""".amdhsa_kernel {name}
  .amdhsa_next_free_vgpr {vg}
  .amdhsa_next_free_sgpr {sg}
  .amdhsa_accum_offset {vg}
  .amdhsa_group_segment_fixed_size 0
  .amdhsa_kernarg_size 104
  .amdhsa_user_sgpr_count 2
  .amdhsa_user_sgpr_kernarg_segment_ptr 1
  .amdhsa_system_sgpr_workgroup_id_x 1
.end_amdhsa_kernel
"""
def func(name,body):
    return f".globl {name}\n.p2align 8\n.type {name},@function\n{name}:\n{body}"

def two_kernel(zst="", zld="", ost=""):
    k1=NAME+"_kernel"; k2="fnet_p2_kernel"
    e=E()
    e("""s_cmp_ge_u32 s2, 256
    s_cbranch_scc1 K1_END
    s_load_dwordx2 s[4:5], s[0:1], 0
    s_load_dwordx2 s[6:7], s[0:1], 40
    s_load_dwordx2 s[8:9], s[0:1], 96""")
    if DIAG: e("s_load_dwordx2 s[68:69], s[0:1], 88")
    stamp(e,0)
    phase1(e,zst)
    stamp_out(e,0,0,0)
    e("K1_END:\ns_endpgm")
    f=E()
    f("""s_cmp_ge_u32 s2, 258
    s_cbranch_scc1 K2_END
    s_load_dwordx2 s[8:9], s[0:1], 96
    s_load_dwordx2 s[10:11], s[0:1], 80""")
    if DIAG: f("s_load_dwordx2 s[68:69], s[0:1], 88")
    stamp(f,0)
    f("""v_lshrrev_b32 v1, 6, v0
    v_and_b32 v2, 63, v0
    s_nop 0
    v_readfirstlane_b32 s20, v1""")
    p2_setup(f,"s2")
    f("s_waitcnt lgkmcnt(0)")
    srd(f,16,8,9,0x400000)
    p2_dma(f,zld)
    stamp(f,1)
    srd(f,12,10,11,0x400000)
    p2_consts(f)
    p2_main(f,ost)
    stamp_out(f,1,512,0)
    f("K2_END:\ns_endpgm")
    s=HEADER+f"; @launch kernel={k1} grid=(256,1,1) block=(512,1,1) lds=32768\n; @launch kernel={k2} grid=(258,1,1) block=(512,1,1) lds=32768\n"
    s+='.amdgcn_target "amdgcn-amd-amdhsa--gfx950"\n.text\n'
    s+=func(k1,e.txt())+func(k2,f.txt())
    s+='.section .rodata,"a"\n.p2align 6\n'+kd(k1,80,96)+".p2align 6\n"+kd(k2,128,96)
    return s
if __name__=="__main__":
    mode=sys.argv[1]; out=sys.argv[2]
    args=[a for a in sys.argv[3:] if not a.startswith("-")]
    for a in sys.argv[3:]:
        if a.startswith("-"):
            k,_,v=a[1:].partition("="); OPT[k]=v or "1"
    sys.argv=sys.argv[:3]+args
    if mode.endswith("_hdiag"):
        DIAG=True; HDIAG=True; mode=mode[:-6]
    if mode.endswith("_diag"):
        DIAG=True; mode=mode[:-5]
    if mode=="two": s=two_kernel(*sys.argv[3:])
    if mode=="fused": FUSED=True; s=fused(*sys.argv[3:])
    open(out,"w").write(s)
```

```python
import sys
import gen
from gen import E, vr, srd, NAME, HEADER, func, kd, out_swaps
OPT={}
DIAG=False
def stamp(e,k):
    if DIAG: e(f"s_memrealtime s[70:71]\ns_waitcnt lgkmcnt(0)\ns_mov_b32 s{72+k}, s70")
L=2
A1=104; B2=108; vTR=124; vEW=125; vER=126; vZ=127; H=80; M=81; T=64-26
DAT=116; Da=64; Db=88
def t(k): return f"v{k+T}"
def p1_issue(e):
    e(f"""
    s_and_b32 s21, s2, 7
    s_bfe_u32 s22, s2, 0x40003
    s_bfe_u32 s23, s2, 0x10007
    v_lshrrev_b32 v3, 2, v{L}
    v_lshlrev_b32 v3, 17, v3
    v_and_b32 v4, 3, v{L}
    v_lshl_or_b32 v3, v4, 4, v3
    s_lshl_b32 s24, s20, 14
    s_lshl_b32 s25, s21, 10
    s_add_u32 s24, s24, s25
    s_lshl_b32 s25, s22, 6
    s_add_u32 s24, s24, s25
    s_add_u32 s25, s24, 8192
    s_add_u32 s27, s26, 1024
    s_mov_b32 s14, 0x200000
    s_mov_b32 s15, 0x20000
    s_mov_b32 m0, s26
    s_cmp_eq_u32 s23, 0
    s_waitcnt lgkmcnt(0)
    s_cselect_b32 s12, s4, s6
    s_cselect_b32 s13, s5, s7
    buffer_load_dwordx4 v3, s[12:15], s24 offen lds
    s_mov_b32 m0, s27
    s_nop 0
    buffer_load_dwordx4 v3, s[12:15], s25 offen lds
    """)
def p1_consts(e):
    e(f"""
    v_lshrrev_b32 v{H}, 5, v{L}
    v_and_b32 v{M}, 31, v{L}
    v_bfe_u32 v4, v{M}, 1, 3
    v_and_b32 v5, 1, v{M}
    v_and_b32 v6, 15, v{M}
    v_cmp_eq_u32 vcc, 1, v6
    v_cvt_f32_u32 v7, v4
    v_cvt_f32_u32 {t(26)}, v5
    v_mul_f32 v7, 0x3d800000, v7
    v_mul_f32 {t(26)}, 0x3e800000, {t(26)}
    v_cndmask_b32 v7, v7, 0.5, vcc
    v_cndmask_b32 {t(26)}, {t(26)}, 0, vcc
    v_lshlrev_b32 {t(27)}, 3, v{H}
    v_cvt_f32_u32 {t(27)}, {t(27)}
    v_fma_f32 {t(26)}, {t(27)}, v7, {t(26)}
    """)
    for jj in range(8):
        if jj>0: e(f"v_add_f32 {t(26)}, {t(26)}, v7")
        e(f"v_cos_f32 {t(28+jj)}, {t(26)}")
    e("s_nop 0")
    for q in range(4): e(f"v_cvt_pk_bf16_f32 v{A1+q}, {t(28+2*q)}, {t(29+2*q)}")
    e(f"""
    v_lshrrev_b32 v4, 4, v{M}
    v_and_b32 v5, 7, v{M}
    v_lshl_or_b32 v4, v4, 3, v5
    v_bfe_u32 v5, v{M}, 3, 1
    v_cvt_f32_u32 v6, v5
    v_mul_f32 v6, 0x3e800000, v6
    s_cmp_eq_u32 s20, 0
    s_cbranch_scc1 P1_SPECIAL
    v_lshlrev_b32 v7, 4, v4
    v_add_u32 v7, s20, v7
    v_mov_b32 {t(26)}, v6
    v_add_f32 {t(27)}, 0xbe800000, v6
    v_mov_b32 {t(28)}, -1
    s_branch P1_COMMON
    P1_SPECIAL:
    v_lshlrev_b32 v7, 4, v4
    v_cmp_le_u32 vcc, 8, v4
    v_subrev_u32 {t(29)}, 120, v7
    v_mov_b32 {t(28)}, 0xffff
    v_mov_b32 {t(30)}, 0xffff0000
    v_cndmask_b32 v7, v7, {t(29)}, vcc
    v_cndmask_b32 {t(28)}, {t(28)}, {t(30)}, vcc
    v_cmp_eq_u32 vcc, 8, v{M}
    v_mov_b32 {t(29)}, 0x80
    v_mov_b32 {t(26)}, v6
    v_cndmask_b32 v7, v7, {t(29)}, vcc
    v_cndmask_b32 {t(26)}, {t(26)}, 0, vcc
    s_nop 0
    v_mov_b32 {t(27)}, {t(26)}
    P1_COMMON:
    v_cvt_f32_u32 v7, v7
    v_lshlrev_b32 {t(29)}, 2, v{H}
    v_cvt_f32_u32 {t(29)}, {t(29)}
    v_mul_f32 v7, 0x3b800000, v7
    v_fma_f32 {t(26)}, {t(29)}, v7, {t(26)}
    v_fma_f32 {t(27)}, {t(29)}, v7, {t(27)}
    v_mul_f32 {t(29)}, 4.0, v7
    """)
    for ks in range(2):
        for x in range(4):
            e(f"v_cos_f32 {t(30)}, {t(26)}\nv_cos_f32 {t(31)}, {t(27)}")
            if x<3: e(f"v_add_f32 {t(26)}, {t(26)}, v7\nv_add_f32 {t(27)}, {t(27)}, v7")
            elif ks==0: e(f"v_add_f32 {t(26)}, {t(26)}, v7\nv_add_f32 {t(27)}, {t(27)}, v7\nv_add_f32 {t(26)}, {t(26)}, {t(29)}\nv_add_f32 {t(27)}, {t(27)}, {t(29)}")
            else: e("s_nop 0")
            e(f"v_cvt_pk_bf16_f32 v{B2+4*ks+x}, {t(30)}, {t(31)}")
    for q in range(8): e(f"v_and_b32 v{B2+q}, v{B2+q}, {t(28)}")
    e(f"""
    v_bfe_u32 v4, v{L}, 2, 2
    v_lshl_or_b32 v4, v{H}, 3, v4
    v_lshlrev_b32 v4, 6, v4
    v_bfe_u32 v5, v{L}, 4, 1
    v_lshl_or_b32 v4, v5, 5, v4
    v_and_b32 v5, 3, v{L}
    v_lshl_or_b32 v4, v5, 3, v4
    v_add_u32 v{vTR}, s26, v4
    s_lshl_b32 s28, s20, 8
    s_add_u32 s28, s28, 16384
    v_lshlrev_b32 v4, 3, v{M}
    v_lshl_or_b32 v5, v{H}, 12, v4
    v_add_u32 v{vEW}, s28, v5
    s_add_u32 s28, s26, 16384
    v_lshl_or_b32 v5, v{H}, 9, v4
    v_add_u32 v{vER}, s28, v5
    v_and_b32 v4, 7, v{L}
    v_lshlrev_b32 v4, 14, v4
    v_bfe_u32 v5, v{L}, 3, 1
    v_lshl_or_b32 v4, v5, 6, v4
    v_bfe_u32 v5, v{L}, 4, 1
    v_lshl_or_b32 v4, v5, 5, v4
    v_lshl_or_b32 v{vZ}, v{H}, 4, v4
    s_lshl_b32 s28, s23, 21
    s_lshl_b32 s29, s20, 18
    s_add_u32 s28, s28, s29
    s_lshl_b32 s29, s21, 11
    s_add_u32 s28, s28, s29
    s_lshl_b32 s29, s22, 7
    s_add_u32 s28, s28, s29
    s_add_u32 s29, s28, 0x20000
    """)
def p1_main(e, st_flags):
    B0=DAT; B1=DAT+4; X=DAT; F=DAT
    NX=1 if OPT.get("sig")=="tag" else 0
    if DIAG: e("s_waitcnt vmcnt(0)")
    stamp(e,2)
    e(f"""
    s_waitcnt vmcnt({1+NX})
    ds_read_b64_tr_b16 v[{B0}:{B0+1}], v{vTR} offset:0
    ds_read_b64_tr_b16 v[{B0+2}:{B0+3}], v{vTR} offset:256
    s_waitcnt vmcnt({NX})
    ds_read_b64_tr_b16 v[{B1}:{B1+1}], v{vTR} offset:1024
    ds_read_b64_tr_b16 v[{B1+2}:{B1+3}], v{vTR} offset:1280
    s_waitcnt lgkmcnt(2)
    v_mfma_f32_32x32x16_bf16 v[{Da}:{Da+15}], v[{A1}:{A1+3}], v[{B0}:{B0+3}], 0
    s_waitcnt lgkmcnt(0)
    v_mfma_f32_32x32x16_bf16 v[{Db}:{Db+15}], v[{A1}:{A1+3}], v[{B1}:{B1+3}], 0
    s_nop 10
    """)
    offs=[0,2048,8192,10240]
    for mu in range(4):
        e(f"v_cvt_pk_bf16_f32 v{X+2*mu}, v{Da+2*mu}, v{Da+2*mu+1}")
        e(f"v_cvt_pk_bf16_f32 v{X+2*mu+1}, v{Db+2*mu}, v{Db+2*mu+1}")
        e(f"ds_write_b64 v{vEW}, v[{X+2*mu}:{X+2*mu+1}] offset:{offs[mu]}")
    e("s_waitcnt lgkmcnt(0)\ns_barrier")
    stamp(e,3)
    for ks in range(2):
        for sg in range(2):
            e(f"ds_read_b64 v[{F+4*ks+2*sg}:{F+4*ks+2*sg+1}], v{vER} offset:{(4*ks+sg)*256}")
    e(f"""
    s_waitcnt lgkmcnt(2)
    v_mfma_f32_32x32x16_bf16 v[{Da}:{Da+15}], v[{F}:{F+3}], v[{B2}:{B2+3}], 0
    s_waitcnt lgkmcnt(0)
    v_mfma_f32_32x32x16_bf16 v[{Da}:{Da+15}], v[{F+4}:{F+7}], v[{B2+4}:{B2+7}], v[{Da}:{Da+15}]
    s_nop 10
    """)
    out_swaps(e,Da,X)
    e(f"""
    buffer_store_dwordx4 v[{X}:{X+3}], v{vZ}, s[16:19], s28 offen {st_flags}
    buffer_store_dwordx4 v[{X+4}:{X+7}], v{vZ}, s[16:19], s29 offen {st_flags}
    """)
PB1=8; TWC=40; TWS=48; A2=56; B3=64; vTR2=80; vXW=81; vXR=82; vO=86
def p2_consts_a(e):
    N=4; G=5
    e(f"""
    v_and_b32 v{N}, 15, v{L}
    v_lshrrev_b32 v{G}, 4, v{L}
    v_cvt_f32_u32 v6, v{N}
    v_cvt_f32_u32 v7, v{G}
    v_mul_f32 v87, 0x3d000000, v6
    v_add_f32 v88, v7, v7
    v_mul_f32 v88, v88, v87
    v_mul_f32 v89, 0x41000000, v87
    """)
    for ks in range(2):
        for i in range(2):
            fr=lambda eh,cp: PB1+((eh*2+cp)*2+ks)*4
            e(f"""
            v_add_f32 v90, v88, v87
            v_cos_f32 v91, v88
            v_cos_f32 v92, v90
            v_sin_f32 v93, v88
            v_sin_f32 v94, v90
            v_add_f32 v88, v88, v89
            v_cvt_pk_bf16_f32 v{fr(0,0)+2*i}, v91, v92
            v_cvt_pk_bf16_f32 v{fr(0,1)+2*i+1}, v91, v92
            v_cvt_pk_bf16_f32 v{fr(0,0)+2*i+1}, v93, v94
            v_cvt_pk_bf16_f32 v{fr(0,1)+2*i}, -v93, -v94
            v_cvt_pk_bf16_f32 v{fr(1,0)+2*i}, v91, -v92
            v_cvt_pk_bf16_f32 v{fr(1,1)+2*i+1}, v91, -v92
            v_cvt_pk_bf16_f32 v{fr(1,0)+2*i+1}, v93, -v94
            v_cvt_pk_bf16_f32 v{fr(1,1)+2*i}, -v93, v94
            """)
    e(f"""
    v_mul_f32 v87, 0x3b000000, v6
    v_mul_f32 v89, 4.0, v7
    """)
    for eh in range(2):
        if eh==1: e("v_add_f32 v87, 0x3d000000, v87")
        e("v_mul_f32 v88, v89, v87")
        for r in range(4):
            e(f"v_cos_f32 v{TWC+4*eh+r}, v88\nv_sin_f32 v{TWS+4*eh+r}, v88")
            if r<3: e("v_add_f32 v88, v88, v87")
    e(f"""
    v_mul_f32 v87, 0x3d800000, v6
    v_mul_f32 v88, v89, v87
    """)
    for r in range(4):
        e(f"v_cos_f32 v{90+r}, v88\nv_sin_f32 v{94+r}, v88")
        if r<3: e("v_add_f32 v88, v88, v87")
    e(f"""
    s_nop 0
    v_cvt_pk_bf16_f32 v{A2+0}, v90, v91
    v_cvt_pk_bf16_f32 v{A2+1}, v92, v93
    v_cvt_pk_bf16_f32 v{A2+2}, v94, v95
    v_cvt_pk_bf16_f32 v{A2+3}, v96, v97
    v_cvt_pk_bf16_f32 v{A2+4}, -v94, -v95
    v_cvt_pk_bf16_f32 v{A2+5}, -v96, -v97
    v_cvt_pk_bf16_f32 v{A2+6}, v90, v91
    v_cvt_pk_bf16_f32 v{A2+7}, v92, v93
    """)
def p2_consts_b(e):
    N=4; G=5
    e(f"""
    v_and_b32 v{N}, 15, v{L}
    v_lshrrev_b32 v{G}, 4, v{L}
    v_lshlrev_b32 v6, 3, v{L}
    v_add_u32 v{vTR2}, s26, v6
    s_add_u32 s40, s26, 16384
    v_lshlrev_b32 v6, 2, v{N}
    v_lshl_or_b32 v6, v{G}, 9, v6
    v_add_u32 v{vXW}, s40, v6
    v_and_b32 v6, 31, v{L}
    v_lshrrev_b32 v7, 5, v{L}
    s_and_b32 s43, s20, 3
    s_lshr_b32 s44, s20, 2
    s_lshl_b32 s45, s43, 7
    v_add_u32 v87, s45, v6
    v_lshlrev_b32 v88, 13, v7
    v_add_u32 v88, 16384, v88
    s_cmp_eq_u32 s44, 0
    s_cselect_b32 s46, 0, -1
    s_cselect_b32 s47, 0, 1
    """)
    for tau in range(4):
        e(f"""
        v_xor_b32 v89, s46, v87
        v_add_u32 v89, s47, v89
        v_and_b32 v89, 0x1ff, v89
        v_lshl_add_u32 v{vXR+tau}, v89, 2, v88
        """)
        if tau<3: e("v_add_u32 v87, 32, v87")
    e(f"""
    v_and_b32 v89, 7, v6
    v_lshlrev_b32 v89, 8, v89
    v_add_u32 v89, s33, v89
    v_cvt_f32_u32 v90, v89
    v_mul_f32 v90, 0x3a000000, v90
    v_lshlrev_b32 v91, 2, v7
    v_cvt_f32_u32 v91, v91
    v_mul_f32 v91, v91, v90
    v_lshrrev_b32 v92, 3, v6
    v_cmp_eq_u32 s[48:49], 0, v92
    v_cmp_eq_u32 s[50:51], 1, v92
    v_cmp_eq_u32 s[52:53], 2, v92
    v_cmp_eq_u32 s[54:55], 3, v92
    """)
    for x in range(4):
        e(f"v_cos_f32 v93, v91\nv_sin_f32 v94, v91")
        e("v_add_f32 v91, v91, v90" if x<3 else "s_nop 0")
        e(f"v_cvt_pk_bf16_f32 v95, v93, v94")
        for tau in range(4):
            e(f"v_cndmask_b32 v{B3+4*tau+x}, 0, v95, s[{48+2*tau}:{49+2*tau}]")
    e(f"""
    v_xor_b32 v89, s46, v89
    v_add_u32 v89, s47, v89
    v_and_b32 v89, 0x7ff, v89
    v_lshlrev_b32 v89, 11, v89
    v_bfe_u32 v90, v{L}, 3, 1
    v_lshl_or_b32 v89, v90, 6, v89
    v_bfe_u32 v90, v{L}, 4, 1
    v_lshl_or_b32 v89, v90, 5, v89
    v_lshl_or_b32 v{vO}, v7, 4, v89
    s_lshl_b32 s56, s30, 10
    s_lshl_b32 s57, s43, 8
    s_add_u32 s56, s56, s57
    s_add_u32 s57, s56, 128
    """)
def p2_setup(e, special):
    if special: e("s_and_b32 s30, s2, 1\ns_movk_i32 s31, 128")
    else: e("s_lshr_b32 s30, s2, 7\ns_and_b32 s31, s2, 127")
    e("""
    s_and_b32 s32, s31, 127
    s_lshr_b32 s34, s32, 4
    s_and_b32 s35, s32, 15
    s_lshl_b32 s36, s35, 4
    s_add_u32 s33, s36, s34
    s_sub_u32 s37, s36, 120
    s_cmp_ge_u32 s35, 8
    s_cselect_b32 s37, s37, s36
    s_cmp_eq_u32 s34, 0
    s_cselect_b32 s33, s37, s33
    s_cmp_eq_u32 s31, 128
    s_cselect_b32 s33, 128, s33
    """)
def reset_shard(e):
    S=int(OPT.get("S","8")); lg=S.bit_length()-1
    e(f"""
    s_and_b32 s91, s2, {S-1}
    s_cmp_eq_u32 s20, 0
    s_cbranch_scc0 RESET_DONE
    s_andn2_b32 s67, s2, {S-1}
    s_add_u32 s92, s23, 256
    v_add_u32 v6, s67, v{L}
    v_mov_b32 v7, s92
    v_cmp_eq_u32 vcc, {S}, v{L}
    s_lshl_b32 s92, s91, 2
    s_add_u32 s92, s92, 0x400000
    v_cndmask_b32 v6, v6, v7, vcc
    v_lshlrev_b32 v6, 7, v6
    v_mov_b32 v7, 0
    s_mov_b64 exec, {hex((1<<(S+1))-1)}
    buffer_store_dword v7, v6, s[16:19], s92 offen sc1
    s_mov_b64 exec, -1
    RESET_DONE:
    """)
def signal_shard(e):
    S=int(OPT.get("S","8")); lg=S.bit_length()-1
    sp=int(OPT.get("sp",str(128//S)))
    e(f"""
    s_waitcnt vmcnt(0)
    s_barrier
    s_cmp_eq_u32 s20, 0
    s_cbranch_scc0 POLL_DONE
    s_lshl_b32 s64, s30, 7
    s_mul_i32 s65, s91, {sp}
    s_add_u32 s64, s64, s65
    v_mov_b32 v4, s64
    v_mov_b32 v5, 1
    s_mov_b64 exec, 1
    buffer_atomic_add v5, v4, s[60:63], 0 offen sc0 sc1
    s_waitcnt vmcnt(0)""")
    stamp(e,6)
    e(f"""
    v_readfirstlane_b32 s64, v5
    s_cmp_eq_u32 s64, {128//S-1}
    s_cbranch_scc0 POLL_PRE
    s_mov_b64 exec, -1
    v_lshlrev_b32 v4, 7, v2
    s_lshl_b32 s65, s30, 14
    s_lshl_b32 s66, s91, 2
    s_add_u32 s65, s65, s66
    s_add_u32 s65, s65, 0x400000
    s_add_u32 s64, s65, 8192
    v_mov_b32 v5, 1
    s_nop 0
    buffer_store_dword v5, v4, s[16:19], s65 offen sc1
    buffer_store_dword v5, v4, s[16:19], s64 offen sc1
    s_mov_b64 exec, 1
    s_lshl_b32 s65, s30, 7
    s_add_u32 s65, s65, s66
    s_add_u32 s65, s65, 0x408000
    buffer_store_dword v5, v4, s[16:19], s65 offen sc1
    s_branch POLL_PRE
    POLL_SPECIAL:
    s_cmp_eq_u32 s20, 0
    s_cbranch_scc0 POLL_DONE
    POLL_PRE:
    s_mov_b64 exec, -1
    s_lshl_b32 s67, s2, 7
    s_add_u32 s67, s67, 0x400000
    v_lshlrev_b32 v4, 2, v2
    s_mov_b32 s65, 0x40000
    s_mov_b64 exec, {hex((1<<S)-1)}
    POLL:
    buffer_load_dword v5, v4, s[16:19], s67 offen sc1
    s_sub_u32 s65, s65, 1
    s_cbranch_scc1 POLL_OUT
    s_waitcnt vmcnt(0)
    v_cmp_eq_u32 vcc, 1, v5
    s_nop 4
    s_cmp_eq_u32 vcc_lo, {hex((1<<S)-1)}
    s_cbranch_scc0 POLL
    POLL_OUT:
    s_mov_b64 exec, -1
    POLL_DONE:
    s_barrier
    """)
def tag_load(e,special):
    br="s2" if special else "s23"
    if special: e("s_and_b32 s93, s2, 1\ns_lshl_b32 s93, s93, 8")
    else: e("s_lshl_b32 s93, s23, 8")
    e("""
    s_add_u32 s93, s93, 0x408000
    buffer_load_dword v1, off, s[16:19], s93 sc1
    """)
def tag_addr(e):
    R=int(OPT.get("R","8"))
    e(f"""
    s_lshl_b32 s66, s30, 14
    s_add_u32 s66, s66, 0x400000
    s_and_b32 s64, s2, {R-1}
    s_lshl_b32 s64, s64, 11
    s_add_u32 s67, s66, s64
    v_lshrrev_b32 v6, 2, v{L}
    v_and_b32 v5, 3, v{L}
    v_lshlrev_b32 v6, 8, v6
    v_lshl_or_b32 v6, v5, 4, v6
    """)
def signal_tag(e):
    R=int(OPT.get("R","8"))
    tag_addr(e)
    e(f"""
    s_and_b32 s64, s2, 7
    s_lshl_b32 s65, s64, 8
    s_add_u32 s65, s65, s66
    s_bfe_u32 s64, s2, 0x40003
    s_lshl_b32 s64, s64, 2
    s_add_u32 s92, s65, s64
    v_lshlrev_b32 v4, 11, v{L}
    s_mov_b32 s65, 0x40000
    s_waitcnt vmcnt(0)
    v_add_u32 v1, 0x9e3779b9, v1
    s_barrier
    s_cmp_eq_u32 s20, 0
    s_cbranch_scc0 POLL_DONE
    s_mov_b64 exec, {hex((1<<R)-1)}
    buffer_atomic_swap v1, v4, s[16:19], s92 offen sc1
    s_branch POLL_PRE
    POLL_SPECIAL:""")
    tag_addr(e)
    e(f"""
    s_mov_b32 s65, 0x40000
    s_waitcnt vmcnt(0)
    v_add_u32 v1, 0x9e3779b9, v1
    s_cmp_eq_u32 s20, 0
    s_cbranch_scc0 POLL_DONE
    POLL_PRE:""")
    stamp(e,6)
    e(f"""
    s_mov_b32 exec_lo, -1
    s_mov_b32 exec_hi, 0
    POLL:
    buffer_load_dwordx4 v[88:91], v6, s[16:19], s67 offen sc1
    s_sub_u32 s65, s65, 1
    s_cbranch_scc1 POLL_OUT
    s_waitcnt vmcnt(0)
    v_xor_b32 v88, v88, v1
    v_xor_b32 v89, v89, v1
    v_xor_b32 v90, v90, v1
    v_xor_b32 v91, v91, v1
    v_or3_b32 v88, v88, v89, v90
    v_or_b32 v88, v88, v91
    v_cmp_ne_u32 vcc, 0, v88
    s_cbranch_vccnz POLL
    POLL_OUT:
    s_cmp_lt_u32 s2, 256
    s_cbranch_scc1 NO_EPOCH
    s_mov_b64 exec, 1
    s_lshl_b32 s64, s30, 8
    s_add_u32 s64, s64, 0x408000
    buffer_store_dword v1, off, s[16:19], s64 sc1
    NO_EPOCH:
    s_mov_b64 exec, -1
    POLL_DONE:
    s_barrier
    """)
def reset_line(e,sfx=""):
    if OPT.get("sig")=="tag":
        tag_load(e,sfx!="")
        return
    if OPT.get("sig")=="shard":
        if sfx=="": reset_shard(e)
        return
    if OPT.get("sig")!="last": return
    e(f"""
    s_lshl_b32 s67, s2, 7
    s_add_u32 s67, s67, 0x400000
    s_cmp_eq_u32 s20, 0
    s_cbranch_scc0 RESET_DONE{sfx}
    v_mov_b32 v6, s67
    v_mov_b32 v7, 0
    s_mov_b64 exec, 1
    buffer_store_dword v7, v6, s[16:19], 0 offen sc1
    s_mov_b64 exec, -1
    RESET_DONE{sfx}:
    """)
def signal_last(e):
    e("""
    SIGNAL:
    s_waitcnt vmcnt(0)
    s_barrier
    s_cmp_eq_u32 s20, 0
    s_cbranch_scc0 POLL_DONE
    s_lshl_b32 s64, s30, 7
    v_mov_b32 v4, s64
    v_mov_b32 v5, 1
    s_mov_b64 exec, 1
    buffer_atomic_add v5, v4, s[60:63], 0 offen sc0 sc1
    s_waitcnt vmcnt(0)""")
    stamp(e,6)
    e("""
    v_readfirstlane_b32 s64, v5
    s_cmp_eq_u32 s64, 128
    s_cbranch_scc0 POLL_PRE
    s_mov_b64 exec, -1
    v_lshlrev_b32 v4, 7, v2
    s_lshl_b32 s65, s30, 14
    s_add_u32 s65, s65, 0x400000
    s_add_u32 s66, s65, 8192
    v_mov_b32 v5, 1
    s_nop 0
    buffer_store_dword v5, v4, s[16:19], s65 offen sc1
    buffer_store_dword v5, v4, s[16:19], s66 offen sc1
    s_mov_b64 exec, 1
    s_lshl_b32 s65, s30, 7
    s_add_u32 s65, s65, 0x408000
    buffer_store_dword v5, v4, s[16:19], s65 offen sc1
    s_branch POLL_OUT
    POLL_PRE:
    v_mov_b32 v4, s67
    s_mov_b32 s65, 0x40000
    POLL:
    buffer_load_dword v5, v4, s[16:19], 0 offen sc1
    s_sub_u32 s65, s65, 1
    s_cbranch_scc1 POLL_OUT
    s_waitcnt vmcnt(0)
    v_readfirstlane_b32 s64, v5
    s_cmp_eq_u32 s64, 1
    s_cbranch_scc0 POLL
    POLL_OUT:
    s_mov_b64 exec, -1
    POLL_DONE:
    s_barrier
    """)
def dma_addr(e,sfx=''):
    e(f"""
    v_lshlrev_b32 v3, 4, v{L}
    s_lshl_b32 s38, s30, 21
    s_lshl_b32 s39, s32, 14
    s_add_u32 s38, s38, s39
    s_add_u32 s38, s38, s26
    s_add_u32 s39, s38, 1024
    s_add_u32 s27, s26, 1024
    s_cmp_eq_u32 s32, 0
    s_cbranch_scc0 P2_REG{sfx}
    v_bfe_u32 v4, v{L}, 2, 1
    s_lshr_b32 s40, s31, 1
    v_lshlrev_b32 v4, 30, v4
    v_add_u32 v3, s40, v3
    v_add_u32 v3, v4, v3
    P2_REG{sfx}:
    """)
def dma_issue(e,ld_flags):
    e(f"""
    s_mov_b32 m0, s26
    s_nop 0
    buffer_load_dwordx4 v3, s[16:19], s38 offen {ld_flags} lds
    s_mov_b32 m0, s27
    s_nop 0
    buffer_load_dwordx4 v3, s[16:19], s39 offen {ld_flags} lds
    """)
def signal(e):
    sig=OPT.get("sig","atomic")
    e("""
    s_waitcnt vmcnt(0)
    s_barrier
    s_cmp_eq_u32 s20, 0
    s_cbranch_scc0 SIG_DONE""")
    if sig=="atomic":
        e("""
        s_lshl_b32 s64, s23, 7
        s_and_b32 s65, s21, 1
        s_lshl_b32 s65, s65, 6
        s_add_u32 s64, s64, s65
        v_mov_b32 v4, s64
        v_mov_b32 v5, 1
        s_mov_b64 exec, 1
        buffer_atomic_add v5, v4, s[60:63], 0 offen sc1
        s_mov_b64 exec, -1""")
    elif sig=="byte":
        e("""
        v_mov_b32 v4, s2
        v_mov_b32 v5, 1
        s_mov_b64 exec, 1
        buffer_store_byte v5, v4, s[60:63], 0 offen sc0 sc1
        s_mov_b64 exec, -1""")
    e("SIG_DONE:")
def poll(e):
    sig=OPT.get("sig","atomic")
    e("""
    s_cmp_eq_u32 s20, 0
    s_cbranch_scc0 POLL_DONE""")
    if sig=="atomic":
        e("""
        v_lshlrev_b32 v4, 6, v2
        s_lshl_b32 s64, s30, 7
        v_add_u32 v4, s64, v4
        s_mov_b32 s65, 0x40000
        s_mov_b64 exec, 3
        POLL:
        buffer_load_dword v5, v4, s[60:63], 0 offen sc1
        s_sub_u32 s65, s65, 1
        s_cbranch_scc1 POLL_OUT
        s_waitcnt vmcnt(0)
        v_cmp_le_u32 vcc, 64, v5
        s_nop 4
        s_cmp_eq_u32 vcc_lo, 3
        s_cbranch_scc0 POLL""")
    else:
        e("""
        v_lshlrev_b32 v4, 4, v2
        s_lshl_b32 s64, s30, 7
        v_add_u32 v4, s64, v4
        s_mov_b32 s65, 0x40000
        s_mov_b32 s66, 0x01010101
        s_mov_b64 exec, 0xff
        POLL:
        buffer_load_dwordx4 v[88:91], v4, s[60:63], 0 offen sc1
        s_sub_u32 s65, s65, 1
        s_cbranch_scc1 POLL_OUT
        s_waitcnt vmcnt(0)
        v_and_b32 v88, v88, v89
        v_and_b32 v90, v90, v91
        v_and_b32 v88, v88, v90
        v_cmp_eq_u32 vcc, s66, v88
        s_nop 4
        s_cmp_eq_u32 vcc_lo, 0xff
        s_cbranch_scc0 POLL""")
    e("""
    POLL_OUT:
    s_mov_b64 exec, -1
    POLL_DONE:
    s_barrier
    """)
def p2_main(e, st_flags=""):
    gen.DIAG=DIAG
    gen.p2_main(e, st_flags)
def fused(zst="sc1", zld="sc1", ost=""):
    k1=NAME+"_kernel"
    e=E()
    e("""s_cmp_ge_u32 s2, 258
    s_cbranch_scc1 K_END
    s_load_dwordx2 s[4:5], s[0:1], 0
    s_load_dwordx2 s[6:7], s[0:1], 40
    s_load_dwordx2 s[8:9], s[0:1], 96
    s_load_dwordx4 s[56:59], s[0:1], 80""")
    stamp(e,0)
    e(f"""
    v_lshrrev_b32 v1, 6, v0
    v_and_b32 v{L}, 63, v0
    s_nop 0
    v_readfirstlane_b32 s20, v1
    s_lshl_b32 s26, s20, 11
    s_cmp_ge_u32 s2, 256
    s_cbranch_scc1 SPECIAL_WG
    """)
    last=OPT.get("sig")=="last"
    shard=OPT.get("sig")=="shard"
    tag=OPT.get("sig")=="tag"
    ZS=0x410000 if (last or shard or tag) else 0x400000
    p1_issue(e)
    stamp(e,1)
    srd(e,16,8,9,ZS)
    srd(e,60,58,59,256)
    reset_line(e)
    p1_consts(e)
    p2_consts_a(e)
    p1_main(e,zst)
    stamp(e,4)
    srd(e,12,56,57,0x400000)
    p2_setup(e,False)
    p2_consts_b(e)
    dma_addr(e)
    stamp(e,5)
    if last: signal_last(e)
    elif shard: signal_shard(e)
    elif tag: signal_tag(e)
    else:
        signal(e)
        e("POLL_START:")
        stamp(e,6)
        poll(e)
    stamp(e,7)
    dma_issue(e,zld)
    p2_main(e,ost)
    gen.stamp_out(e,0,0,0)
    e("K_END:\ns_endpgm")
    e("SPECIAL_WG:\ns_waitcnt lgkmcnt(0)")
    srd(e,16,8,9,ZS)
    srd(e,60,58,59,256)
    reset_line(e,"B")
    p2_consts_a(e)
    srd(e,12,56,57,0x400000)
    p2_setup(e,True)
    p2_consts_b(e)
    dma_addr(e,"B")
    e("s_branch SIGNAL" if last else ("s_branch POLL_SPECIAL" if (shard or tag) else "s_branch POLL_START"))
    s=HEADER+f"; @launch grid=(258,1,1) block=(512,1,1) lds=32768\n"
    s+='.amdgcn_target "amdgcn-amd-amdhsa--gfx950"\n.text\n'
    s+=func(k1,e.txt())
    s+='.section .rodata,"a"\n.p2align 6\n'+kd(k1,128,102)
    return s
if __name__=="__main__":
    mode=sys.argv[1]; out=sys.argv[2]
    args=[a for a in sys.argv[3:] if not a.startswith("-")]
    for a in sys.argv[3:]:
        if a.startswith("-"):
            k,_,v=a[1:].partition("="); OPT[k]=v or "1"
    if mode.endswith("_diag"):
        DIAG=True; gen.DIAG=True
    gen.FUSED=True
    open(out,"w").write(fused(*args))
```

```python
import sys
import gen
from gen import E, vr, srd, NAME, HEADER, func, kd, out_swaps
OPT={}
DIAG=False
def stamp(e,k):
    if DIAG: e(f"s_memrealtime s[70:71]\ns_waitcnt lgkmcnt(0)\ns_mov_b32 s{72+k}, s70")
L=2
A1=104; B2=108; vTR=124; vEW=125; vER=126; vZ=127; H=80; M=81; T=64-26
DAT=116; Da=64; Db=88
def t(k): return f"v{k+T}"
def p1_issue(e):
    e(f"""
    s_and_b32 s21, s2, 7
    s_bfe_u32 s22, s2, 0x40003
    s_bfe_u32 s23, s2, 0x10007
    v_lshrrev_b32 v3, 2, v{L}
    v_lshlrev_b32 v3, 17, v3
    v_and_b32 v4, 3, v{L}
    v_lshl_or_b32 v3, v4, 4, v3
    s_lshl_b32 s24, s20, 14
    s_lshl_b32 s25, s21, 10
    s_add_u32 s24, s24, s25
    s_lshl_b32 s25, s22, 6
    s_add_u32 s24, s24, s25
    s_add_u32 s25, s24, 8192
    s_add_u32 s27, s26, 1024
    s_mov_b32 s14, 0x200000
    s_mov_b32 s15, 0x20000
    s_mov_b32 m0, s26
    s_cmp_eq_u32 s23, 0
    s_waitcnt lgkmcnt(0)
    s_cselect_b32 s12, s4, s6
    s_cselect_b32 s13, s5, s7
    buffer_load_dwordx4 v3, s[12:15], s24 offen lds
    s_mov_b32 m0, s27
    s_nop 0
    buffer_load_dwordx4 v3, s[12:15], s25 offen lds
    """)
def p1_consts(e):
    e(f"""
    v_lshrrev_b32 v{H}, 5, v{L}
    v_and_b32 v{M}, 31, v{L}
    v_bfe_u32 v4, v{M}, 1, 3
    v_and_b32 v5, 1, v{M}
    v_and_b32 v6, 15, v{M}
    v_cmp_eq_u32 vcc, 1, v6
    v_cvt_f32_u32 v7, v4
    v_cvt_f32_u32 {t(26)}, v5
    v_mul_f32 v7, 0x3d800000, v7
    v_mul_f32 {t(26)}, 0x3e800000, {t(26)}
    v_cndmask_b32 v7, v7, 0.5, vcc
    v_cndmask_b32 {t(26)}, {t(26)}, 0, vcc
    v_lshlrev_b32 {t(27)}, 3, v{H}
    v_cvt_f32_u32 {t(27)}, {t(27)}
    v_fma_f32 {t(26)}, {t(27)}, v7, {t(26)}
    """)
    for jj in range(8):
        if jj>0: e(f"v_add_f32 {t(26)}, {t(26)}, v7")
        e(f"v_cos_f32 {t(28+jj)}, {t(26)}")
    e("s_nop 0")
    for q in range(4): e(f"v_cvt_pk_bf16_f32 v{A1+q}, {t(28+2*q)}, {t(29+2*q)}")
    e(f"""
    v_lshrrev_b32 v4, 4, v{M}
    v_and_b32 v5, 7, v{M}
    v_lshl_or_b32 v4, v4, 3, v5
    v_bfe_u32 v5, v{M}, 3, 1
    v_cvt_f32_u32 v6, v5
    v_mul_f32 v6, 0x3e800000, v6
    s_cmp_eq_u32 s20, 0
    s_cbranch_scc1 P1_SPECIAL
    v_lshlrev_b32 v7, 4, v4
    v_add_u32 v7, s20, v7
    v_mov_b32 {t(26)}, v6
    v_add_f32 {t(27)}, 0xbe800000, v6
    v_mov_b32 {t(28)}, -1
    s_branch P1_COMMON
    P1_SPECIAL:
    v_lshlrev_b32 v7, 4, v4
    v_cmp_le_u32 vcc, 8, v4
    v_subrev_u32 {t(29)}, 120, v7
    v_mov_b32 {t(28)}, 0xffff
    v_mov_b32 {t(30)}, 0xffff0000
    v_cndmask_b32 v7, v7, {t(29)}, vcc
    v_cndmask_b32 {t(28)}, {t(28)}, {t(30)}, vcc
    v_cmp_eq_u32 vcc, 8, v{M}
    v_mov_b32 {t(29)}, 0x80
    v_mov_b32 {t(26)}, v6
    v_cndmask_b32 v7, v7, {t(29)}, vcc
    v_cndmask_b32 {t(26)}, {t(26)}, 0, vcc
    s_nop 0
    v_mov_b32 {t(27)}, {t(26)}
    P1_COMMON:
    v_cvt_f32_u32 v7, v7
    v_lshlrev_b32 {t(29)}, 2, v{H}
    v_cvt_f32_u32 {t(29)}, {t(29)}
    v_mul_f32 v7, 0x3b800000, v7
    v_fma_f32 {t(26)}, {t(29)}, v7, {t(26)}
    v_fma_f32 {t(27)}, {t(29)}, v7, {t(27)}
    v_mul_f32 {t(29)}, 4.0, v7
    """)
    for ks in range(2):
        for x in range(4):
            e(f"v_cos_f32 {t(30)}, {t(26)}\nv_cos_f32 {t(31)}, {t(27)}")
            if x<3: e(f"v_add_f32 {t(26)}, {t(26)}, v7\nv_add_f32 {t(27)}, {t(27)}, v7")
            elif ks==0: e(f"v_add_f32 {t(26)}, {t(26)}, v7\nv_add_f32 {t(27)}, {t(27)}, v7\nv_add_f32 {t(26)}, {t(26)}, {t(29)}\nv_add_f32 {t(27)}, {t(27)}, {t(29)}")
            else: e("s_nop 0")
            e(f"v_cvt_pk_bf16_f32 v{B2+4*ks+x}, {t(30)}, {t(31)}")
    for q in range(8): e(f"v_and_b32 v{B2+q}, v{B2+q}, {t(28)}")
    e(f"""
    v_bfe_u32 v4, v{L}, 2, 2
    v_lshl_or_b32 v4, v{H}, 3, v4
    v_lshlrev_b32 v4, 6, v4
    v_bfe_u32 v5, v{L}, 4, 1
    v_lshl_or_b32 v4, v5, 5, v4
    v_and_b32 v5, 3, v{L}
    v_lshl_or_b32 v4, v5, 3, v4
    v_add_u32 v{vTR}, s26, v4
    s_lshl_b32 s28, s20, 8
    s_add_u32 s28, s28, 16384
    v_lshlrev_b32 v4, 3, v{M}
    v_lshl_or_b32 v5, v{H}, 12, v4
    v_add_u32 v{vEW}, s28, v5
    s_add_u32 s28, s26, 16384
    v_lshl_or_b32 v5, v{H}, 9, v4
    v_add_u32 v{vER}, s28, v5
    v_and_b32 v4, 7, v{L}
    v_lshlrev_b32 v4, 14, v4
    v_bfe_u32 v5, v{L}, 3, 1
    v_lshl_or_b32 v4, v5, 6, v4
    v_bfe_u32 v5, v{L}, 4, 1
    v_lshl_or_b32 v4, v5, 5, v4
    v_lshl_or_b32 v{vZ}, v{H}, 4, v4
    s_lshl_b32 s28, s23, 21
    s_lshl_b32 s29, s20, 18
    s_add_u32 s28, s28, s29
    s_lshl_b32 s29, s21, 11
    s_add_u32 s28, s28, s29
    s_lshl_b32 s29, s22, 7
    s_add_u32 s28, s28, s29
    s_add_u32 s29, s28, 0x20000
    """)
def p1_main(e, st_flags):
    B0=DAT; B1=DAT+4; X=DAT; F=DAT
    NX=1 if OPT.get("sig") in ("tag","wtag") else 0
    if DIAG: e("s_waitcnt vmcnt(0)")
    stamp(e,2)
    e(f"""
    s_waitcnt vmcnt({1+NX})
    ds_read_b64_tr_b16 v[{B0}:{B0+1}], v{vTR} offset:0
    ds_read_b64_tr_b16 v[{B0+2}:{B0+3}], v{vTR} offset:256
    s_waitcnt vmcnt({NX})
    ds_read_b64_tr_b16 v[{B1}:{B1+1}], v{vTR} offset:1024
    ds_read_b64_tr_b16 v[{B1+2}:{B1+3}], v{vTR} offset:1280
    s_waitcnt lgkmcnt(2)
    v_mfma_f32_32x32x16_bf16 v[{Da}:{Da+15}], v[{A1}:{A1+3}], v[{B0}:{B0+3}], 0
    s_waitcnt lgkmcnt(0)
    v_mfma_f32_32x32x16_bf16 v[{Db}:{Db+15}], v[{A1}:{A1+3}], v[{B1}:{B1+3}], 0
    s_nop 10
    """)
    offs=[0,2048,8192,10240]
    for mu in range(4):
        e(f"v_cvt_pk_bf16_f32 v{X+2*mu}, v{Da+2*mu}, v{Da+2*mu+1}")
        e(f"v_cvt_pk_bf16_f32 v{X+2*mu+1}, v{Db+2*mu}, v{Db+2*mu+1}")
        e(f"ds_write_b64 v{vEW}, v[{X+2*mu}:{X+2*mu+1}] offset:{offs[mu]}")
    e("s_waitcnt vmcnt(0) lgkmcnt(0)\ns_barrier")
    stamp(e,3)
    for ks in range(2):
        for sg in range(2):
            e(f"ds_read_b64 v[{F+4*ks+2*sg}:{F+4*ks+2*sg+1}], v{vER} offset:{(4*ks+sg)*256}")
    e(f"""
    s_waitcnt lgkmcnt(2)
    v_mfma_f32_32x32x16_bf16 v[{Da}:{Da+15}], v[{F}:{F+3}], v[{B2}:{B2+3}], 0
    s_waitcnt lgkmcnt(0)
    v_mfma_f32_32x32x16_bf16 v[{Da}:{Da+15}], v[{F+4}:{F+7}], v[{B2+4}:{B2+7}], v[{Da}:{Da+15}]
    s_nop 10
    """)
    out_swaps(e,Da,X)
    e(f"""
    buffer_store_dwordx4 v[{X}:{X+3}], v{vZ}, s[16:19], s28 offen {st_flags}
    buffer_store_dwordx4 v[{X+4}:{X+7}], v{vZ}, s[16:19], s29 offen {st_flags}
    """)
PB1=8; TWC=40; TWS=48; A2=56; B3=64; vTR2=80; vXW=81; vXR=82; vO=86
def p2_consts_a(e):
    N=4; G=5
    e(f"""
    v_and_b32 v{N}, 15, v{L}
    v_lshrrev_b32 v{G}, 4, v{L}
    v_cvt_f32_u32 v6, v{N}
    v_cvt_f32_u32 v7, v{G}
    v_mul_f32 v87, 0x3d000000, v6
    v_add_f32 v88, v7, v7
    v_mul_f32 v88, v88, v87
    v_mul_f32 v89, 0x41000000, v87
    """)
    for ks in range(2):
        for i in range(2):
            fr=lambda eh,cp: PB1+((eh*2+cp)*2+ks)*4
            e(f"""
            v_add_f32 v90, v88, v87
            v_cos_f32 v91, v88
            v_cos_f32 v92, v90
            v_sin_f32 v93, v88
            v_sin_f32 v94, v90
            v_add_f32 v88, v88, v89
            v_cvt_pk_bf16_f32 v{fr(0,0)+2*i}, v91, v92
            v_cvt_pk_bf16_f32 v{fr(0,1)+2*i+1}, v91, v92
            v_cvt_pk_bf16_f32 v{fr(0,0)+2*i+1}, v93, v94
            v_cvt_pk_bf16_f32 v{fr(0,1)+2*i}, -v93, -v94
            v_cvt_pk_bf16_f32 v{fr(1,0)+2*i}, v91, -v92
            v_cvt_pk_bf16_f32 v{fr(1,1)+2*i+1}, v91, -v92
            v_cvt_pk_bf16_f32 v{fr(1,0)+2*i+1}, v93, -v94
            v_cvt_pk_bf16_f32 v{fr(1,1)+2*i}, -v93, v94
            """)
    e(f"""
    v_mul_f32 v87, 0x3b000000, v6
    v_mul_f32 v89, 4.0, v7
    """)
    for eh in range(2):
        if eh==1: e("v_add_f32 v87, 0x3d000000, v87")
        e("v_mul_f32 v88, v89, v87")
        for r in range(4):
            e(f"v_cos_f32 v{TWC+4*eh+r}, v88\nv_sin_f32 v{TWS+4*eh+r}, v88")
            if r<3: e("v_add_f32 v88, v88, v87")
    e(f"""
    v_mul_f32 v87, 0x3d800000, v6
    v_mul_f32 v88, v89, v87
    """)
    for r in range(4):
        e(f"v_cos_f32 v{90+r}, v88\nv_sin_f32 v{94+r}, v88")
        if r<3: e("v_add_f32 v88, v88, v87")
    e(f"""
    s_nop 0
    v_cvt_pk_bf16_f32 v{A2+0}, v90, v91
    v_cvt_pk_bf16_f32 v{A2+1}, v92, v93
    v_cvt_pk_bf16_f32 v{A2+2}, v94, v95
    v_cvt_pk_bf16_f32 v{A2+3}, v96, v97
    v_cvt_pk_bf16_f32 v{A2+4}, -v94, -v95
    v_cvt_pk_bf16_f32 v{A2+5}, -v96, -v97
    v_cvt_pk_bf16_f32 v{A2+6}, v90, v91
    v_cvt_pk_bf16_f32 v{A2+7}, v92, v93
    """)
def p2_consts_b(e):
    N=4; G=5
    e(f"""
    v_and_b32 v{N}, 15, v{L}
    v_lshrrev_b32 v{G}, 4, v{L}
    v_lshlrev_b32 v6, 3, v{L}
    v_add_u32 v{vTR2}, s26, v6
    s_add_u32 s40, s26, 16384
    v_lshlrev_b32 v6, 2, v{N}
    v_lshl_or_b32 v6, v{G}, 9, v6
    v_add_u32 v{vXW}, s40, v6
    v_and_b32 v6, 31, v{L}
    v_lshrrev_b32 v7, 5, v{L}
    s_and_b32 s43, s20, 3
    s_lshr_b32 s44, s20, 2
    s_lshl_b32 s45, s43, 7
    v_add_u32 v87, s45, v6
    v_lshlrev_b32 v88, 13, v7
    v_add_u32 v88, 16384, v88
    s_cmp_eq_u32 s44, 0
    s_cselect_b32 s46, 0, -1
    s_cselect_b32 s47, 0, 1
    """)
    for tau in range(4):
        e(f"""
        v_xor_b32 v89, s46, v87
        v_add_u32 v89, s47, v89
        v_and_b32 v89, 0x1ff, v89
        v_lshl_add_u32 v{vXR+tau}, v89, 2, v88
        """)
        if tau<3: e("v_add_u32 v87, 32, v87")
    e(f"""
    v_and_b32 v89, 7, v6
    v_lshlrev_b32 v89, 8, v89
    v_add_u32 v89, s33, v89
    v_cvt_f32_u32 v90, v89
    v_mul_f32 v90, 0x3a000000, v90
    v_lshlrev_b32 v91, 2, v7
    v_cvt_f32_u32 v91, v91
    v_mul_f32 v91, v91, v90
    v_lshrrev_b32 v92, 3, v6
    v_cmp_eq_u32 s[48:49], 0, v92
    v_cmp_eq_u32 s[50:51], 1, v92
    v_cmp_eq_u32 s[52:53], 2, v92
    v_cmp_eq_u32 s[54:55], 3, v92
    """)
    for x in range(4):
        e(f"v_cos_f32 v93, v91\nv_sin_f32 v94, v91")
        e("v_add_f32 v91, v91, v90" if x<3 else "s_nop 0")
        e(f"v_cvt_pk_bf16_f32 v95, v93, v94")
        for tau in range(4):
            e(f"v_cndmask_b32 v{B3+4*tau+x}, 0, v95, s[{48+2*tau}:{49+2*tau}]")
    e(f"""
    v_xor_b32 v89, s46, v89
    v_add_u32 v89, s47, v89
    v_and_b32 v89, 0x7ff, v89
    v_lshlrev_b32 v89, 11, v89
    v_bfe_u32 v90, v{L}, 3, 1
    v_lshl_or_b32 v89, v90, 6, v89
    v_bfe_u32 v90, v{L}, 4, 1
    v_lshl_or_b32 v89, v90, 5, v89
    v_lshl_or_b32 v{vO}, v7, 4, v89
    s_lshl_b32 s56, s30, 10
    s_lshl_b32 s57, s43, 8
    s_add_u32 s56, s56, s57
    s_add_u32 s57, s56, 128
    """)
def p2_setup(e, special):
    if special: e("s_and_b32 s30, s2, 1\ns_movk_i32 s31, 128")
    elif OPT.get("sig")=="wtag": e("s_lshr_b32 s30, s2, 7\ns_lshl_b32 s31, s21, 4\ns_or_b32 s31, s31, s22")
    else: e("s_lshr_b32 s30, s2, 7\ns_and_b32 s31, s2, 127")
    e("""
    s_and_b32 s32, s31, 127
    s_lshr_b32 s34, s32, 4
    s_and_b32 s35, s32, 15
    s_lshl_b32 s36, s35, 4
    s_add_u32 s33, s36, s34
    s_sub_u32 s37, s36, 120
    s_cmp_ge_u32 s35, 8
    s_cselect_b32 s37, s37, s36
    s_cmp_eq_u32 s34, 0
    s_cselect_b32 s33, s37, s33
    s_cmp_eq_u32 s31, 128
    s_cselect_b32 s33, 128, s33
    """)
def reset_shard(e):
    S=int(OPT.get("S","8")); lg=S.bit_length()-1
    e(f"""
    s_and_b32 s91, s2, {S-1}
    s_cmp_eq_u32 s20, 0
    s_cbranch_scc0 RESET_DONE
    s_andn2_b32 s67, s2, {S-1}
    s_add_u32 s92, s23, 256
    v_add_u32 v6, s67, v{L}
    v_mov_b32 v7, s92
    v_cmp_eq_u32 vcc, {S}, v{L}
    s_lshl_b32 s92, s91, 2
    s_add_u32 s92, s92, 0x400000
    v_cndmask_b32 v6, v6, v7, vcc
    v_lshlrev_b32 v6, 7, v6
    v_mov_b32 v7, 0
    s_mov_b64 exec, {hex((1<<(S+1))-1)}
    buffer_store_dword v7, v6, s[16:19], s92 offen sc1
    s_mov_b64 exec, -1
    RESET_DONE:
    """)
def signal_shard(e):
    S=int(OPT.get("S","8")); lg=S.bit_length()-1
    sp=int(OPT.get("sp",str(128//S)))
    e(f"""
    s_waitcnt vmcnt(0)
    s_barrier
    s_cmp_eq_u32 s20, 0
    s_cbranch_scc0 POLL_DONE
    s_lshl_b32 s64, s30, 7
    s_mul_i32 s65, s91, {sp}
    s_add_u32 s64, s64, s65
    v_mov_b32 v4, s64
    v_mov_b32 v5, 1
    s_mov_b64 exec, 1
    buffer_atomic_add v5, v4, s[60:63], 0 offen sc0 sc1
    s_waitcnt vmcnt(0)""")
    stamp(e,6)
    e(f"""
    v_readfirstlane_b32 s64, v5
    s_cmp_eq_u32 s64, {128//S-1}
    s_cbranch_scc0 POLL_PRE
    s_mov_b64 exec, -1
    v_lshlrev_b32 v4, 7, v2
    s_lshl_b32 s65, s30, 14
    s_lshl_b32 s66, s91, 2
    s_add_u32 s65, s65, s66
    s_add_u32 s65, s65, 0x400000
    s_add_u32 s64, s65, 8192
    v_mov_b32 v5, 1
    s_nop 0
    buffer_store_dword v5, v4, s[16:19], s65 offen sc1
    buffer_store_dword v5, v4, s[16:19], s64 offen sc1
    s_mov_b64 exec, 1
    s_lshl_b32 s65, s30, 7
    s_add_u32 s65, s65, s66
    s_add_u32 s65, s65, 0x408000
    buffer_store_dword v5, v4, s[16:19], s65 offen sc1
    s_branch POLL_PRE
    POLL_SPECIAL:
    s_cmp_eq_u32 s20, 0
    s_cbranch_scc0 POLL_DONE
    POLL_PRE:
    s_mov_b64 exec, -1
    s_lshl_b32 s67, s2, 7
    s_add_u32 s67, s67, 0x400000
    v_lshlrev_b32 v4, 2, v2
    s_mov_b32 s65, 0x40000
    s_mov_b64 exec, {hex((1<<S)-1)}
    POLL:
    buffer_load_dword v5, v4, s[16:19], s67 offen sc1
    s_sub_u32 s65, s65, 1
    s_cbranch_scc1 POLL_OUT
    s_waitcnt vmcnt(0)
    v_cmp_eq_u32 vcc, 1, v5
    s_nop 4
    s_cmp_eq_u32 vcc_lo, {hex((1<<S)-1)}
    s_cbranch_scc0 POLL
    POLL_OUT:
    s_mov_b64 exec, -1
    POLL_DONE:
    s_barrier
    """)
def tag_load(e,special):
    br="s2" if special else "s23"
    if special: e("s_and_b32 s93, s2, 1\ns_lshl_b32 s93, s93, 8")
    else: e("s_lshl_b32 s93, s23, 8")
    e("""
    s_add_u32 s93, s93, 0x408000
    buffer_load_dword v1, off, s[16:19], s93 sc1
    """)
def tag_addr(e):
    R=int(OPT.get("R","8"))
    e(f"""
    s_lshl_b32 s66, s30, 14
    s_add_u32 s66, s66, 0x400000
    s_and_b32 s64, s2, {R-1}
    s_lshl_b32 s64, s64, 11
    s_add_u32 s67, s66, s64
    v_lshrrev_b32 v6, 2, v{L}
    v_and_b32 v5, 3, v{L}
    v_lshlrev_b32 v6, 8, v6
    v_lshl_or_b32 v6, v5, 4, v6
    """)
def signal_tag(e):
    R=int(OPT.get("R","8"))
    tag_addr(e)
    e(f"""
    s_and_b32 s64, s2, 7
    s_lshl_b32 s65, s64, 8
    s_add_u32 s65, s65, s66
    s_bfe_u32 s64, s2, 0x40003
    s_lshl_b32 s64, s64, 2
    s_add_u32 s92, s65, s64
    v_lshlrev_b32 v4, 11, v{L}
    s_mov_b32 s65, 0x40000
    s_waitcnt vmcnt(0)
    v_add_u32 v1, 0x9e3779b9, v1
    s_barrier
    s_cmp_eq_u32 s20, 0
    s_cbranch_scc0 POLL_DONE
    s_mov_b64 exec, {hex((1<<R)-1)}
    buffer_atomic_swap v1, v4, s[16:19], s92 offen sc1
    s_branch POLL_PRE
    POLL_SPECIAL:""")
    tag_addr(e)
    e(f"""
    s_mov_b32 s65, 0x40000
    s_waitcnt vmcnt(0)
    v_add_u32 v1, 0x9e3779b9, v1
    s_cmp_eq_u32 s20, 0
    s_cbranch_scc0 POLL_DONE
    POLL_PRE:""")
    stamp(e,6)
    e(f"""
    s_mov_b32 exec_lo, -1
    s_mov_b32 exec_hi, 0
    POLL:
    buffer_load_dwordx4 v[88:91], v6, s[16:19], s67 offen sc1
    s_sub_u32 s65, s65, 1
    s_cbranch_scc1 POLL_OUT
    s_waitcnt vmcnt(0)
    v_xor_b32 v88, v88, v1
    v_xor_b32 v89, v89, v1
    v_xor_b32 v90, v90, v1
    v_xor_b32 v91, v91, v1
    v_or3_b32 v88, v88, v89, v90
    v_or_b32 v88, v88, v91
    v_cmp_ne_u32 vcc, 0, v88
    s_cbranch_vccnz POLL
    POLL_OUT:
    s_cmp_lt_u32 s2, 256
    s_cbranch_scc1 NO_EPOCH
    s_mov_b64 exec, 1
    s_lshl_b32 s64, s30, 8
    s_add_u32 s64, s64, 0x408000
    buffer_store_dword v1, off, s[16:19], s64 sc1
    NO_EPOCH:
    s_mov_b64 exec, -1
    POLL_DONE:
    s_barrier
    """)
def wtag_addr(e):
    e(f"""
    s_lshl_b32 s66, s30, 14
    s_add_u32 s66, s66, 0x400000
    s_lshl_b32 s64, s34, 11
    s_lshl_b32 s65, s20, 8
    s_add_u32 s67, s66, s64
    s_add_u32 s67, s67, s65
    v_and_b32 v6, 3, v{L}
    v_lshlrev_b32 v6, 4, v6
    """)
def signal_wtag(e):
    wtag_addr(e)
    e(f"""
    s_lshl_b32 s64, s21, 8
    s_lshl_b32 s65, s22, 2
    s_add_u32 s64, s64, s65
    s_add_u32 s64, s64, s26
    s_add_u32 s92, s64, s66
    s_mov_b32 s65, 0x40000
    s_waitcnt vmcnt(0)
    v_add_u32 v1, 0x9e3779b9, v1
    s_mov_b64 exec, 1
    buffer_atomic_swap v1, off, s[16:19], s92 sc1
    s_branch POLL_PRE
    POLL_SPECIAL:""")
    wtag_addr(e)
    e(f"""
    s_mov_b32 s65, 0x40000
    s_waitcnt vmcnt(0)
    v_add_u32 v1, 0x9e3779b9, v1
    POLL_PRE:""")
    stamp(e,6)
    e(f"""
    s_mov_b64 exec, 15
    POLL:
    buffer_load_dwordx4 v[88:91], v6, s[16:19], s67 offen sc1
    s_sub_u32 s65, s65, 1
    s_cbranch_scc1 POLL_OUT
    s_waitcnt vmcnt(0)
    v_xor_b32 v88, v88, v1
    v_xor_b32 v89, v89, v1
    v_xor_b32 v90, v90, v1
    v_xor_b32 v91, v91, v1
    v_or3_b32 v88, v88, v89, v90
    v_or_b32 v88, v88, v91
    v_cmp_ne_u32 vcc, 0, v88
    s_cbranch_vccnz POLL
    POLL_OUT:
    s_mov_b64 exec, -1
    """)
def epoch_update(e):
    e("""
    s_cmp_lt_u32 s2, 256
    s_cbranch_scc1 NO_EPOCH
    s_cmp_eq_u32 s20, 0
    s_cbranch_scc0 NO_EPOCH
    s_mov_b64 exec, 1
    s_lshl_b32 s64, s30, 8
    s_add_u32 s64, s64, 0x408000
    buffer_store_dword v1, off, s[16:19], s64 sc1
    s_mov_b64 exec, -1
    NO_EPOCH:
    """)
def reset_line(e,sfx=""):
    if OPT.get("sig") in ("tag","wtag"):
        tag_load(e,sfx!="")
        return
    if OPT.get("sig")=="shard":
        if sfx=="": reset_shard(e)
        return
    if OPT.get("sig")!="last": return
    e(f"""
    s_lshl_b32 s67, s2, 7
    s_add_u32 s67, s67, 0x400000
    s_cmp_eq_u32 s20, 0
    s_cbranch_scc0 RESET_DONE{sfx}
    v_mov_b32 v6, s67
    v_mov_b32 v7, 0
    s_mov_b64 exec, 1
    buffer_store_dword v7, v6, s[16:19], 0 offen sc1
    s_mov_b64 exec, -1
    RESET_DONE{sfx}:
    """)
def signal_last(e):
    e("""
    SIGNAL:
    s_waitcnt vmcnt(0)
    s_barrier
    s_cmp_eq_u32 s20, 0
    s_cbranch_scc0 POLL_DONE
    s_lshl_b32 s64, s30, 7
    v_mov_b32 v4, s64
    v_mov_b32 v5, 1
    s_mov_b64 exec, 1
    buffer_atomic_add v5, v4, s[60:63], 0 offen sc0 sc1
    s_waitcnt vmcnt(0)""")
    stamp(e,6)
    e("""
    v_readfirstlane_b32 s64, v5
    s_cmp_eq_u32 s64, 128
    s_cbranch_scc0 POLL_PRE
    s_mov_b64 exec, -1
    v_lshlrev_b32 v4, 7, v2
    s_lshl_b32 s65, s30, 14
    s_add_u32 s65, s65, 0x400000
    s_add_u32 s66, s65, 8192
    v_mov_b32 v5, 1
    s_nop 0
    buffer_store_dword v5, v4, s[16:19], s65 offen sc1
    buffer_store_dword v5, v4, s[16:19], s66 offen sc1
    s_mov_b64 exec, 1
    s_lshl_b32 s65, s30, 7
    s_add_u32 s65, s65, 0x408000
    buffer_store_dword v5, v4, s[16:19], s65 offen sc1
    s_branch POLL_OUT
    POLL_PRE:
    v_mov_b32 v4, s67
    s_mov_b32 s65, 0x40000
    POLL:
    buffer_load_dword v5, v4, s[16:19], 0 offen sc1
    s_sub_u32 s65, s65, 1
    s_cbranch_scc1 POLL_OUT
    s_waitcnt vmcnt(0)
    v_readfirstlane_b32 s64, v5
    s_cmp_eq_u32 s64, 1
    s_cbranch_scc0 POLL
    POLL_OUT:
    s_mov_b64 exec, -1
    POLL_DONE:
    s_barrier
    """)
def dma_addr(e,sfx=''):
    e(f"""
    v_lshlrev_b32 v3, 4, v{L}
    s_lshl_b32 s38, s30, 21
    s_lshl_b32 s39, s32, 14
    s_add_u32 s38, s38, s39
    s_add_u32 s38, s38, s26
    s_add_u32 s39, s38, 1024
    s_add_u32 s27, s26, 1024
    s_cmp_eq_u32 s32, 0
    s_cbranch_scc0 P2_REG{sfx}
    v_bfe_u32 v4, v{L}, 2, 1
    s_lshr_b32 s40, s31, 1
    v_lshlrev_b32 v4, 30, v4
    v_add_u32 v3, s40, v3
    v_add_u32 v3, v4, v3
    P2_REG{sfx}:
    """)
def dma_issue(e,ld_flags):
    e(f"""
    s_mov_b32 m0, s26
    s_nop 0
    buffer_load_dwordx4 v3, s[16:19], s38 offen {ld_flags} lds
    s_mov_b32 m0, s27
    s_nop 0
    buffer_load_dwordx4 v3, s[16:19], s39 offen {ld_flags} lds
    """)
def signal(e):
    sig=OPT.get("sig","atomic")
    e("""
    s_waitcnt vmcnt(0)
    s_barrier
    s_cmp_eq_u32 s20, 0
    s_cbranch_scc0 SIG_DONE""")
    if sig=="atomic":
        e("""
        s_lshl_b32 s64, s23, 7
        s_and_b32 s65, s21, 1
        s_lshl_b32 s65, s65, 6
        s_add_u32 s64, s64, s65
        v_mov_b32 v4, s64
        v_mov_b32 v5, 1
        s_mov_b64 exec, 1
        buffer_atomic_add v5, v4, s[60:63], 0 offen sc1
        s_mov_b64 exec, -1""")
    elif sig=="byte":
        e("""
        v_mov_b32 v4, s2
        v_mov_b32 v5, 1
        s_mov_b64 exec, 1
        buffer_store_byte v5, v4, s[60:63], 0 offen sc0 sc1
        s_mov_b64 exec, -1""")
    e("SIG_DONE:")
def poll(e):
    sig=OPT.get("sig","atomic")
    e("""
    s_cmp_eq_u32 s20, 0
    s_cbranch_scc0 POLL_DONE""")
    if sig=="atomic":
        e("""
        v_lshlrev_b32 v4, 6, v2
        s_lshl_b32 s64, s30, 7
        v_add_u32 v4, s64, v4
        s_mov_b32 s65, 0x40000
        s_mov_b64 exec, 3
        POLL:
        buffer_load_dword v5, v4, s[60:63], 0 offen sc1
        s_sub_u32 s65, s65, 1
        s_cbranch_scc1 POLL_OUT
        s_waitcnt vmcnt(0)
        v_cmp_le_u32 vcc, 64, v5
        s_nop 4
        s_cmp_eq_u32 vcc_lo, 3
        s_cbranch_scc0 POLL""")
    else:
        e("""
        v_lshlrev_b32 v4, 4, v2
        s_lshl_b32 s64, s30, 7
        v_add_u32 v4, s64, v4
        s_mov_b32 s65, 0x40000
        s_mov_b32 s66, 0x01010101
        s_mov_b64 exec, 0xff
        POLL:
        buffer_load_dwordx4 v[88:91], v4, s[60:63], 0 offen sc1
        s_sub_u32 s65, s65, 1
        s_cbranch_scc1 POLL_OUT
        s_waitcnt vmcnt(0)
        v_and_b32 v88, v88, v89
        v_and_b32 v90, v90, v91
        v_and_b32 v88, v88, v90
        v_cmp_eq_u32 vcc, s66, v88
        s_nop 4
        s_cmp_eq_u32 vcc_lo, 0xff
        s_cbranch_scc0 POLL""")
    e("""
    POLL_OUT:
    s_mov_b64 exec, -1
    POLL_DONE:
    s_barrier
    """)
def p2_main(e, st_flags=""):
    A=88; D1=96; BF=112; D2=96; X=120; F=96; D3=112; Q=88
    B1=PB1
    e("s_waitcnt vmcnt(0)")
    stamp(e,8)
    for ks in range(2):
        for i in range(2):
            e(f"ds_read_b64_tr_b16 v[{A+4*ks+2*i}:{A+4*ks+2*i+1}], v{vTR2} offset:{ks*1024+i*512}")
    e("s_waitcnt lgkmcnt(2)")
    for ks in range(2):
        if ks==1: e("s_waitcnt lgkmcnt(0)")
        for eh in range(2):
            for cp in range(2):
                d=D1+(eh*2+cp)*4; f=B1+((eh*2+cp)*2+ks)*4
                c="0" if ks==0 else f"v[{d}:{d+3}]"
                e(f"v_mfma_f32_16x16x32_bf16 v[{d}:{d+3}], v[{A+4*ks}:{A+4*ks+3}], v[{f}:{f+3}], {c}")
    e("s_nop 5")
    for eh in range(2):
        re=D1+eh*8; im=re+4
        for p in range(2):
            c=TWC+4*eh+2*p; s_=TWS+4*eh+2*p; t=A+4*p; u=A+4*p+2
            e(f"v_pk_mul_f32 v[{t}:{t+1}], v[{re+2*p}:{re+2*p+1}], v[{c}:{c+1}]")
            e(f"v_pk_mul_f32 v[{u}:{u+1}], v[{im+2*p}:{im+2*p+1}], v[{c}:{c+1}]")
            e(f"v_pk_fma_f32 v[{t}:{t+1}], v[{im+2*p}:{im+2*p+1}], v[{s_}:{s_+1}], v[{t}:{t+1}]")
            e(f"v_pk_fma_f32 v[{u}:{u+1}], v[{re+2*p}:{re+2*p+1}], v[{s_}:{s_+1}], v[{u}:{u+1}] neg_lo:[1,0,0] neg_hi:[1,0,0]")
        for p in range(2):
            t=A+4*p; u=t+2
            e(f"v_cvt_pk_bf16_f32 v{BF+4*eh+p}, v{t}, v{t+1}")
            e(f"v_cvt_pk_bf16_f32 v{BF+4*eh+2+p}, v{u}, v{u+1}")
    e("s_nop 1")
    for eh in range(2):
        for cpp in range(2):
            d=D2+(eh*2+cpp)*4
            e(f"v_mfma_f32_16x16x32_bf16 v[{d}:{d+3}], v[{A2+4*cpp}:{A2+4*cpp+3}], v[{BF+4*eh}:{BF+4*eh+3}], 0")
    e("s_nop 7")
    for r in range(4):
        e(f"v_cvt_pk_bf16_f32 v{X+2*r}, v{D2+r}, v{D2+4+r}")
        e(f"v_cvt_pk_bf16_f32 v{X+2*r+1}, v{D2+8+r}, v{D2+12+r}")
        e(f"ds_write2_b32 v{vXW}, v{X+2*r}, v{X+2*r+1} offset0:{32*r} offset1:{32*r+16}")
    e("s_waitcnt lgkmcnt(0)\ns_barrier")
    stamp(e,9)
    if OPT.get("sig")=="wtag": epoch_update(e)
    e("s_and_b32 s58, s32, 127\ns_cmp_eq_u32 s58, 0\ns_cselect_b32 s58, s44, 0\ns_cmp_lg_u32 s58, 0\ns_cbranch_scc1 P2_END")
    for tau in range(4):
        e(f"ds_read2st64_b32 v[{F+4*tau}:{F+4*tau+1}], v{vXR+tau} offset0:0 offset1:8")
        e(f"ds_read2st64_b32 v[{F+4*tau+2}:{F+4*tau+3}], v{vXR+tau} offset0:16 offset1:24")
    for tau in range(4):
        e(f"s_waitcnt lgkmcnt({6-2*tau})")
        c="0" if tau==0 else f"v[{D3}:{D3+15}]"
        e(f"v_mfma_f32_32x32x16_bf16 v[{D3}:{D3+15}], v[{F+4*tau}:{F+4*tau+3}], v[{B3+4*tau}:{B3+4*tau+3}], {c}")
    e("s_nop 11")
    out_swaps(e,D3,Q)
    e(f"""
    buffer_store_dwordx4 v[{Q}:{Q+3}], v{vO}, s[12:15], s56 offen {st_flags}
    buffer_store_dwordx4 v[{Q+4}:{Q+7}], v{vO}, s[12:15], s57 offen {st_flags}
    P2_END:
    """)
def fused(zst="sc1", zld="sc1", ost=""):
    k1=NAME+"_kernel"
    e=E()
    e("""s_cmp_ge_u32 s2, 258
    s_cbranch_scc1 K_END
    s_load_dwordx2 s[4:5], s[0:1], 0
    s_load_dwordx2 s[6:7], s[0:1], 40
    s_load_dwordx2 s[8:9], s[0:1], 96
    s_load_dwordx4 s[56:59], s[0:1], 80""")
    stamp(e,0)
    e(f"""
    v_lshrrev_b32 v1, 6, v0
    v_and_b32 v{L}, 63, v0
    s_nop 0
    v_readfirstlane_b32 s20, v1
    s_lshl_b32 s26, s20, 11
    s_cmp_ge_u32 s2, 256
    s_cbranch_scc1 SPECIAL_WG
    """)
    last=OPT.get("sig")=="last"
    shard=OPT.get("sig")=="shard"
    tag=OPT.get("sig") in ("tag","wtag")
    wtag=OPT.get("sig")=="wtag"
    ZS=0x410000 if (last or shard or tag) else 0x400000
    p1_issue(e)
    stamp(e,1)
    srd(e,16,8,9,ZS)
    srd(e,60,58,59,256)
    reset_line(e)
    p1_consts(e)
    p2_consts_a(e)
    p1_main(e,zst)
    stamp(e,4)
    srd(e,12,56,57,0x400000)
    p2_setup(e,False)
    p2_consts_b(e)
    dma_addr(e)
    stamp(e,5)
    if last: signal_last(e)
    elif shard: signal_shard(e)
    elif wtag: signal_wtag(e)
    elif tag: signal_tag(e)
    else:
        signal(e)
        e("POLL_START:")
        stamp(e,6)
        poll(e)
    stamp(e,7)
    dma_issue(e,zld)
    p2_main(e,ost)
    gen.stamp_out(e,0,0,0)
    e("K_END:\ns_endpgm")
    e("SPECIAL_WG:\ns_waitcnt lgkmcnt(0)")
    srd(e,16,8,9,ZS)
    srd(e,60,58,59,256)
    reset_line(e,"B")
    p2_consts_a(e)
    srd(e,12,56,57,0x400000)
    p2_setup(e,True)
    p2_consts_b(e)
    dma_addr(e,"B")
    e("s_branch SIGNAL" if last else ("s_branch POLL_SPECIAL" if (shard or tag) else "s_branch POLL_START"))
    s=HEADER+f"; @launch grid=(258,1,1) block=(512,1,1) lds=32768\n"
    s+='.amdgcn_target "amdgcn-amd-amdhsa--gfx950"\n.text\n'
    s+=func(k1,e.txt())
    s+='.section .rodata,"a"\n.p2align 6\n'+kd(k1,128,102)
    return s
if __name__=="__main__":
    mode=sys.argv[1]; out=sys.argv[2]
    args=[a for a in sys.argv[3:] if not a.startswith("-")]
    for a in sys.argv[3:]:
        if a.startswith("-"):
            k,_,v=a[1:].partition("="); OPT[k]=v or "1"
    if mode.endswith("_diag"):
        DIAG=True; gen.DIAG=True
    gen.FUSED=True
    open(out,"w").write(fused(*args))
```

```python
import sys
import gen
from gen import E, vr, srd, NAME, HEADER, func, kd, out_swaps
OPT={}
DIAG=False
def stamp(e,k):
    if DIAG: e(f"s_memrealtime s[70:71]\ns_waitcnt lgkmcnt(0)\ns_mov_b32 s{72+k}, s70")
L=2
A1=104; B2=108; vTR=124; vEW=125; vER=126; vZ=127; H=80; M=81; T=64-26
DAT=116; Da=64; Db=88
def t(k): return f"v{k+T}"
def p1_issue(e):
    e(f"""
    s_and_b32 s21, s2, 7
    s_bfe_u32 s22, s2, 0x40003
    s_bfe_u32 s23, s2, 0x10007
    v_lshrrev_b32 v3, 2, v{L}
    v_lshlrev_b32 v3, 17, v3
    v_and_b32 v4, 3, v{L}
    v_lshl_or_b32 v3, v4, 4, v3
    s_lshl_b32 s24, s20, 14
    s_lshl_b32 s25, s21, 10
    s_add_u32 s24, s24, s25
    s_lshl_b32 s25, s22, 6
    s_add_u32 s24, s24, s25
    s_add_u32 s25, s24, 8192
    s_add_u32 s27, s26, 1024
    s_mov_b32 s14, 0x200000
    s_mov_b32 s15, 0x20000
    s_mov_b32 m0, s26
    s_cmp_eq_u32 s23, 0
    s_waitcnt lgkmcnt(0)
    s_cselect_b32 s12, s4, s6
    s_cselect_b32 s13, s5, s7
    buffer_load_dwordx4 v3, s[12:15], s24 offen {OPT.get("xf","").replace("+"," ")} lds
    s_mov_b32 m0, s27
    s_nop 0
    buffer_load_dwordx4 v3, s[12:15], s25 offen {OPT.get("xf","").replace("+"," ")} lds
    """)
def p1_consts(e):
    e(f"""
    v_lshrrev_b32 v{H}, 5, v{L}
    v_and_b32 v{M}, 31, v{L}
    v_bfe_u32 v4, v{M}, 1, 3
    v_and_b32 v5, 1, v{M}
    v_and_b32 v6, 15, v{M}
    v_cmp_eq_u32 vcc, 1, v6
    v_cvt_f32_u32 v7, v4
    v_cvt_f32_u32 {t(26)}, v5
    v_mul_f32 v7, 0x3d800000, v7
    v_mul_f32 {t(26)}, 0x3e800000, {t(26)}
    v_cndmask_b32 v7, v7, 0.5, vcc
    v_cndmask_b32 {t(26)}, {t(26)}, 0, vcc
    v_lshlrev_b32 {t(27)}, 3, v{H}
    v_cvt_f32_u32 {t(27)}, {t(27)}
    v_fma_f32 {t(26)}, {t(27)}, v7, {t(26)}
    """)
    for jj in range(8):
        if jj>0: e(f"v_add_f32 {t(26)}, {t(26)}, v7")
        e(f"v_cos_f32 {t(28+jj)}, {t(26)}")
    e("s_nop 0")
    for q in range(4): e(f"v_cvt_pk_bf16_f32 v{A1+q}, {t(28+2*q)}, {t(29+2*q)}")
    e(f"""
    v_lshrrev_b32 v4, 4, v{M}
    v_and_b32 v5, 7, v{M}
    v_lshl_or_b32 v4, v4, 3, v5
    v_bfe_u32 v5, v{M}, 3, 1
    v_cvt_f32_u32 v6, v5
    v_mul_f32 v6, 0x3e800000, v6
    s_cmp_eq_u32 s20, 0
    s_cbranch_scc1 P1_SPECIAL
    v_lshlrev_b32 v7, 4, v4
    v_add_u32 v7, s20, v7
    v_mov_b32 {t(26)}, v6
    v_add_f32 {t(27)}, 0xbe800000, v6
    v_mov_b32 {t(28)}, -1
    s_branch P1_COMMON
    P1_SPECIAL:
    v_lshlrev_b32 v7, 4, v4
    v_cmp_le_u32 vcc, 8, v4
    v_subrev_u32 {t(29)}, 120, v7
    v_mov_b32 {t(28)}, 0xffff
    v_mov_b32 {t(30)}, 0xffff0000
    v_cndmask_b32 v7, v7, {t(29)}, vcc
    v_cndmask_b32 {t(28)}, {t(28)}, {t(30)}, vcc
    v_cmp_eq_u32 vcc, 8, v{M}
    v_mov_b32 {t(29)}, 0x80
    v_mov_b32 {t(26)}, v6
    v_cndmask_b32 v7, v7, {t(29)}, vcc
    v_cndmask_b32 {t(26)}, {t(26)}, 0, vcc
    s_nop 0
    v_mov_b32 {t(27)}, {t(26)}
    P1_COMMON:
    v_cvt_f32_u32 v7, v7
    v_lshlrev_b32 {t(29)}, 2, v{H}
    v_cvt_f32_u32 {t(29)}, {t(29)}
    v_mul_f32 v7, 0x3b800000, v7
    v_fma_f32 {t(26)}, {t(29)}, v7, {t(26)}
    v_fma_f32 {t(27)}, {t(29)}, v7, {t(27)}
    v_mul_f32 {t(29)}, 4.0, v7
    """)
    for ks in range(2):
        for x in range(4):
            e(f"v_cos_f32 {t(30)}, {t(26)}\nv_cos_f32 {t(31)}, {t(27)}")
            if x<3: e(f"v_add_f32 {t(26)}, {t(26)}, v7\nv_add_f32 {t(27)}, {t(27)}, v7")
            elif ks==0: e(f"v_add_f32 {t(26)}, {t(26)}, v7\nv_add_f32 {t(27)}, {t(27)}, v7\nv_add_f32 {t(26)}, {t(26)}, {t(29)}\nv_add_f32 {t(27)}, {t(27)}, {t(29)}")
            else: e("s_nop 0")
            e(f"v_cvt_pk_bf16_f32 v{B2+4*ks+x}, {t(30)}, {t(31)}")
    for q in range(8): e(f"v_and_b32 v{B2+q}, v{B2+q}, {t(28)}")
    e(f"""
    v_bfe_u32 v4, v{L}, 2, 2
    v_lshl_or_b32 v4, v{H}, 3, v4
    v_lshlrev_b32 v4, 6, v4
    v_bfe_u32 v5, v{L}, 4, 1
    v_lshl_or_b32 v4, v5, 5, v4
    v_and_b32 v5, 3, v{L}
    v_lshl_or_b32 v4, v5, 3, v4
    v_add_u32 v{vTR}, s26, v4
    s_lshl_b32 s28, s20, 8
    s_add_u32 s28, s28, 16384
    v_lshlrev_b32 v4, 3, v{M}
    v_lshl_or_b32 v5, v{H}, 12, v4
    v_add_u32 v{vEW}, s28, v5
    s_add_u32 s28, s26, 16384
    v_lshl_or_b32 v5, v{H}, 9, v4
    v_add_u32 v{vER}, s28, v5
    v_and_b32 v4, 7, v{L}
    v_lshlrev_b32 v4, 14, v4
    v_bfe_u32 v5, v{L}, 3, 1
    v_lshl_or_b32 v4, v5, 6, v4
    v_bfe_u32 v5, v{L}, 4, 1
    v_lshl_or_b32 v4, v5, 5, v4
    v_lshl_or_b32 v{vZ}, v{H}, 4, v4
    s_lshl_b32 s28, s23, 21
    s_lshl_b32 s29, s20, 18
    s_add_u32 s28, s28, s29
    s_lshl_b32 s29, s21, 11
    s_add_u32 s28, s28, s29
    s_lshl_b32 s29, s22, 7
    s_add_u32 s28, s28, s29
    s_add_u32 s29, s28, 0x20000
    """)
def p1_main(e, st_flags):
    B0=DAT; B1=DAT+4; X=DAT; F=DAT
    NX=1 if OPT.get("sig") in ("tag","wtag") else 0
    if DIAG: e("s_waitcnt vmcnt(0)")
    stamp(e,2)
    e(f"""
    s_waitcnt vmcnt({1+NX})
    ds_read_b64_tr_b16 v[{B0}:{B0+1}], v{vTR} offset:0
    ds_read_b64_tr_b16 v[{B0+2}:{B0+3}], v{vTR} offset:256
    s_waitcnt vmcnt({NX})
    ds_read_b64_tr_b16 v[{B1}:{B1+1}], v{vTR} offset:1024
    ds_read_b64_tr_b16 v[{B1+2}:{B1+3}], v{vTR} offset:1280
    s_waitcnt lgkmcnt(2)
    v_mfma_f32_32x32x16_bf16 v[{Da}:{Da+15}], v[{A1}:{A1+3}], v[{B0}:{B0+3}], 0
    s_waitcnt lgkmcnt(0)
    v_mfma_f32_32x32x16_bf16 v[{Db}:{Db+15}], v[{A1}:{A1+3}], v[{B1}:{B1+3}], 0
    s_nop 10
    """)
    offs=[0,2048,8192,10240]
    for mu in range(4):
        e(f"v_cvt_pk_bf16_f32 v{X+2*mu}, v{Da+2*mu}, v{Da+2*mu+1}")
        e(f"v_cvt_pk_bf16_f32 v{X+2*mu+1}, v{Db+2*mu}, v{Db+2*mu+1}")
        e(f"ds_write_b64 v{vEW}, v[{X+2*mu}:{X+2*mu+1}] offset:{offs[mu]}")
    e("s_waitcnt vmcnt(0) lgkmcnt(0)\ns_barrier")
    stamp(e,3)
    for ks in range(2):
        for sg in range(2):
            e(f"ds_read_b64 v[{F+4*ks+2*sg}:{F+4*ks+2*sg+1}], v{vER} offset:{(4*ks+sg)*256}")
    e(f"""
    s_waitcnt lgkmcnt(2)
    v_mfma_f32_32x32x16_bf16 v[{Da}:{Da+15}], v[{F}:{F+3}], v[{B2}:{B2+3}], 0
    s_waitcnt lgkmcnt(0)
    v_mfma_f32_32x32x16_bf16 v[{Da}:{Da+15}], v[{F+4}:{F+7}], v[{B2+4}:{B2+7}], v[{Da}:{Da+15}]
    s_nop 10
    """)
    out_swaps(e,Da,X)
    e(f"""
    buffer_store_dwordx4 v[{X}:{X+3}], v{vZ}, s[16:19], s28 offen {st_flags}
    buffer_store_dwordx4 v[{X+4}:{X+7}], v{vZ}, s[16:19], s29 offen {st_flags}
    """)
PB1=8; TWC=40; TWS=48; A2=56; B3=64; vTR2=80; vXW=81; vXR=82; vO=86
def p2_consts_a(e):
    N=4; G=5
    e(f"""
    v_and_b32 v{N}, 15, v{L}
    v_lshrrev_b32 v{G}, 4, v{L}
    v_cvt_f32_u32 v6, v{N}
    v_cvt_f32_u32 v7, v{G}
    v_mul_f32 v87, 0x3d000000, v6
    v_add_f32 v88, v7, v7
    v_mul_f32 v88, v88, v87
    v_mul_f32 v89, 0x41000000, v87
    """)
    for ks in range(2):
        for i in range(2):
            fr=lambda eh,cp: PB1+((eh*2+cp)*2+ks)*4
            e(f"""
            v_add_f32 v90, v88, v87
            v_cos_f32 v91, v88
            v_cos_f32 v92, v90
            v_sin_f32 v93, v88
            v_sin_f32 v94, v90
            v_add_f32 v88, v88, v89
            v_cvt_pk_bf16_f32 v{fr(0,0)+2*i}, v91, v92
            v_cvt_pk_bf16_f32 v{fr(0,1)+2*i+1}, v91, v92
            v_cvt_pk_bf16_f32 v{fr(0,0)+2*i+1}, v93, v94
            v_cvt_pk_bf16_f32 v{fr(0,1)+2*i}, -v93, -v94
            v_cvt_pk_bf16_f32 v{fr(1,0)+2*i}, v91, -v92
            v_cvt_pk_bf16_f32 v{fr(1,1)+2*i+1}, v91, -v92
            v_cvt_pk_bf16_f32 v{fr(1,0)+2*i+1}, v93, -v94
            v_cvt_pk_bf16_f32 v{fr(1,1)+2*i}, -v93, v94
            """)
    e(f"""
    v_mul_f32 v87, 0x3b000000, v6
    v_mul_f32 v89, 4.0, v7
    """)
    for eh in range(2):
        if eh==1: e("v_add_f32 v87, 0x3d000000, v87")
        e("v_mul_f32 v88, v89, v87")
        for r in range(4):
            e(f"v_cos_f32 v{TWC+4*eh+r}, v88\nv_sin_f32 v{TWS+4*eh+r}, v88")
            if r<3: e("v_add_f32 v88, v88, v87")
    e(f"""
    v_mul_f32 v87, 0x3d800000, v6
    v_mul_f32 v88, v89, v87
    """)
    for r in range(4):
        e(f"v_cos_f32 v{90+r}, v88\nv_sin_f32 v{94+r}, v88")
        if r<3: e("v_add_f32 v88, v88, v87")
    e(f"""
    s_nop 0
    v_cvt_pk_bf16_f32 v{A2+0}, v90, v91
    v_cvt_pk_bf16_f32 v{A2+1}, v92, v93
    v_cvt_pk_bf16_f32 v{A2+2}, v94, v95
    v_cvt_pk_bf16_f32 v{A2+3}, v96, v97
    v_cvt_pk_bf16_f32 v{A2+4}, -v94, -v95
    v_cvt_pk_bf16_f32 v{A2+5}, -v96, -v97
    v_cvt_pk_bf16_f32 v{A2+6}, v90, v91
    v_cvt_pk_bf16_f32 v{A2+7}, v92, v93
    """)
def p2_consts_b(e):
    N=4; G=5
    e(f"""
    v_and_b32 v{N}, 15, v{L}
    v_lshrrev_b32 v{G}, 4, v{L}
    v_lshlrev_b32 v6, 3, v{L}
    v_add_u32 v{vTR2}, s26, v6
    s_add_u32 s40, s26, 16384
    v_lshlrev_b32 v6, 2, v{N}
    v_lshl_or_b32 v6, v{G}, 9, v6
    v_add_u32 v{vXW}, s40, v6
    v_and_b32 v6, 31, v{L}
    v_lshrrev_b32 v7, 5, v{L}
    s_and_b32 s43, s20, 3
    s_lshr_b32 s44, s20, 2
    s_lshl_b32 s45, s43, 7
    v_add_u32 v87, s45, v6
    v_lshlrev_b32 v88, 13, v7
    v_add_u32 v88, 16384, v88
    s_cmp_eq_u32 s44, 0
    s_cselect_b32 s46, 0, -1
    s_cselect_b32 s47, 0, 1
    """)
    for tau in range(4):
        e(f"""
        v_xor_b32 v89, s46, v87
        v_add_u32 v89, s47, v89
        v_and_b32 v89, 0x1ff, v89
        v_lshl_add_u32 v{vXR+tau}, v89, 2, v88
        """)
        if tau<3: e("v_add_u32 v87, 32, v87")
    e(f"""
    v_and_b32 v89, 7, v6
    v_lshlrev_b32 v89, 8, v89
    v_add_u32 v89, s33, v89
    v_cvt_f32_u32 v90, v89
    v_mul_f32 v90, 0x3a000000, v90
    v_lshlrev_b32 v91, 2, v7
    v_cvt_f32_u32 v91, v91
    v_mul_f32 v91, v91, v90
    v_lshrrev_b32 v92, 3, v6
    v_cmp_eq_u32 s[48:49], 0, v92
    v_cmp_eq_u32 s[50:51], 1, v92
    v_cmp_eq_u32 s[52:53], 2, v92
    v_cmp_eq_u32 s[54:55], 3, v92
    """)
    for x in range(4):
        e(f"v_cos_f32 v93, v91\nv_sin_f32 v94, v91")
        e("v_add_f32 v91, v91, v90" if x<3 else "s_nop 0")
        e(f"v_cvt_pk_bf16_f32 v95, v93, v94")
        for tau in range(4):
            e(f"v_cndmask_b32 v{B3+4*tau+x}, 0, v95, s[{48+2*tau}:{49+2*tau}]")
    e(f"""
    v_xor_b32 v89, s46, v89
    v_add_u32 v89, s47, v89
    v_and_b32 v89, 0x7ff, v89
    v_lshlrev_b32 v89, 11, v89
    v_bfe_u32 v90, v{L}, 3, 1
    v_lshl_or_b32 v89, v90, 6, v89
    v_bfe_u32 v90, v{L}, 4, 1
    v_lshl_or_b32 v89, v90, 5, v89
    v_lshl_or_b32 v{vO}, v7, 4, v89
    s_lshl_b32 s56, s30, 10
    s_lshl_b32 s57, s43, 8
    s_add_u32 s56, s56, s57
    s_add_u32 s57, s56, 128
    """)
def p2_setup(e, special):
    if special: e("s_and_b32 s30, s2, 1\ns_movk_i32 s31, 128")
    elif OPT.get("sig")=="wtag": e("s_lshr_b32 s30, s2, 7\ns_lshl_b32 s31, s21, 4\ns_or_b32 s31, s31, s22")
    else: e("s_lshr_b32 s30, s2, 7\ns_and_b32 s31, s2, 127")
    e("""
    s_and_b32 s32, s31, 127
    s_lshr_b32 s34, s32, 4
    s_and_b32 s35, s32, 15
    s_lshl_b32 s36, s35, 4
    s_add_u32 s33, s36, s34
    s_sub_u32 s37, s36, 120
    s_cmp_ge_u32 s35, 8
    s_cselect_b32 s37, s37, s36
    s_cmp_eq_u32 s34, 0
    s_cselect_b32 s33, s37, s33
    s_cmp_eq_u32 s31, 128
    s_cselect_b32 s33, 128, s33
    """)
def reset_shard(e):
    S=int(OPT.get("S","8")); lg=S.bit_length()-1
    e(f"""
    s_and_b32 s91, s2, {S-1}
    s_cmp_eq_u32 s20, 0
    s_cbranch_scc0 RESET_DONE
    s_andn2_b32 s67, s2, {S-1}
    s_add_u32 s92, s23, 256
    v_add_u32 v6, s67, v{L}
    v_mov_b32 v7, s92
    v_cmp_eq_u32 vcc, {S}, v{L}
    s_lshl_b32 s92, s91, 2
    s_add_u32 s92, s92, 0x400000
    v_cndmask_b32 v6, v6, v7, vcc
    v_lshlrev_b32 v6, 7, v6
    v_mov_b32 v7, 0
    s_mov_b64 exec, {hex((1<<(S+1))-1)}
    buffer_store_dword v7, v6, s[16:19], s92 offen sc1
    s_mov_b64 exec, -1
    RESET_DONE:
    """)
def signal_shard(e):
    S=int(OPT.get("S","8")); lg=S.bit_length()-1
    sp=int(OPT.get("sp",str(128//S)))
    e(f"""
    s_waitcnt vmcnt(0)
    s_barrier
    s_cmp_eq_u32 s20, 0
    s_cbranch_scc0 POLL_DONE
    s_lshl_b32 s64, s30, 7
    s_mul_i32 s65, s91, {sp}
    s_add_u32 s64, s64, s65
    v_mov_b32 v4, s64
    v_mov_b32 v5, 1
    s_mov_b64 exec, 1
    buffer_atomic_add v5, v4, s[60:63], 0 offen sc0 sc1
    s_waitcnt vmcnt(0)""")
    stamp(e,6)
    e(f"""
    v_readfirstlane_b32 s64, v5
    s_cmp_eq_u32 s64, {128//S-1}
    s_cbranch_scc0 POLL_PRE
    s_mov_b64 exec, -1
    v_lshlrev_b32 v4, 7, v2
    s_lshl_b32 s65, s30, 14
    s_lshl_b32 s66, s91, 2
    s_add_u32 s65, s65, s66
    s_add_u32 s65, s65, 0x400000
    s_add_u32 s64, s65, 8192
    v_mov_b32 v5, 1
    s_nop 0
    buffer_store_dword v5, v4, s[16:19], s65 offen sc1
    buffer_store_dword v5, v4, s[16:19], s64 offen sc1
    s_mov_b64 exec, 1
    s_lshl_b32 s65, s30, 7
    s_add_u32 s65, s65, s66
    s_add_u32 s65, s65, 0x408000
    buffer_store_dword v5, v4, s[16:19], s65 offen sc1
    s_branch POLL_PRE
    POLL_SPECIAL:
    s_cmp_eq_u32 s20, 0
    s_cbranch_scc0 POLL_DONE
    POLL_PRE:
    s_mov_b64 exec, -1
    s_lshl_b32 s67, s2, 7
    s_add_u32 s67, s67, 0x400000
    v_lshlrev_b32 v4, 2, v2
    s_mov_b32 s65, 0x40000
    s_mov_b64 exec, {hex((1<<S)-1)}
    POLL:
    buffer_load_dword v5, v4, s[16:19], s67 offen sc1
    s_sub_u32 s65, s65, 1
    s_cbranch_scc1 POLL_OUT
    s_waitcnt vmcnt(0)
    v_cmp_eq_u32 vcc, 1, v5
    s_nop 4
    s_cmp_eq_u32 vcc_lo, {hex((1<<S)-1)}
    s_cbranch_scc0 POLL
    POLL_OUT:
    s_mov_b64 exec, -1
    POLL_DONE:
    s_barrier
    """)
def tag_load(e,special):
    br="s2" if special else "s23"
    if special: e("s_and_b32 s93, s2, 1\ns_lshl_b32 s93, s93, 8")
    else: e("s_lshl_b32 s93, s23, 8")
    e("""
    s_add_u32 s93, s93, 0x408000
    buffer_load_dword v1, off, s[16:19], s93 sc1
    """)
def tag_addr(e):
    R=int(OPT.get("R","8"))
    e(f"""
    s_lshl_b32 s66, s30, 14
    s_add_u32 s66, s66, 0x400000
    s_and_b32 s64, s2, {R-1}
    s_lshl_b32 s64, s64, 11
    s_add_u32 s67, s66, s64
    v_lshrrev_b32 v6, 2, v{L}
    v_and_b32 v5, 3, v{L}
    v_lshlrev_b32 v6, 8, v6
    v_lshl_or_b32 v6, v5, 4, v6
    """)
def signal_tag(e):
    R=int(OPT.get("R","8"))
    tag_addr(e)
    e(f"""
    s_and_b32 s64, s2, 7
    s_lshl_b32 s65, s64, 8
    s_add_u32 s65, s65, s66
    s_bfe_u32 s64, s2, 0x40003
    s_lshl_b32 s64, s64, 2
    s_add_u32 s92, s65, s64
    v_lshlrev_b32 v4, 11, v{L}
    s_mov_b32 s65, 0x40000
    s_waitcnt vmcnt(0)
    v_add_u32 v1, 0x9e3779b9, v1
    s_barrier
    s_cmp_eq_u32 s20, 0
    s_cbranch_scc0 POLL_DONE
    s_mov_b64 exec, {hex((1<<R)-1)}
    buffer_atomic_swap v1, v4, s[16:19], s92 offen sc1
    s_branch POLL_PRE
    POLL_SPECIAL:""")
    tag_addr(e)
    e(f"""
    s_mov_b32 s65, 0x40000
    s_waitcnt vmcnt(0)
    v_add_u32 v1, 0x9e3779b9, v1
    s_cmp_eq_u32 s20, 0
    s_cbranch_scc0 POLL_DONE
    POLL_PRE:""")
    stamp(e,6)
    e(f"""
    s_mov_b32 exec_lo, -1
    s_mov_b32 exec_hi, 0
    POLL:
    buffer_load_dwordx4 v[88:91], v6, s[16:19], s67 offen sc1
    s_sub_u32 s65, s65, 1
    s_cbranch_scc1 POLL_OUT
    s_waitcnt vmcnt(0)
    v_xor_b32 v88, v88, v1
    v_xor_b32 v89, v89, v1
    v_xor_b32 v90, v90, v1
    v_xor_b32 v91, v91, v1
    v_or3_b32 v88, v88, v89, v90
    v_or_b32 v88, v88, v91
    v_cmp_ne_u32 vcc, 0, v88
    s_cbranch_vccnz POLL
    POLL_OUT:
    s_cmp_lt_u32 s2, 256
    s_cbranch_scc1 NO_EPOCH
    s_mov_b64 exec, 1
    s_lshl_b32 s64, s30, 8
    s_add_u32 s64, s64, 0x408000
    buffer_store_dword v1, off, s[16:19], s64 sc1
    NO_EPOCH:
    s_mov_b64 exec, -1
    POLL_DONE:
    s_barrier
    """)
def wtag_addr(e):
    e(f"""
    s_lshl_b32 s66, s30, 14
    s_add_u32 s66, s66, 0x400000
    s_lshl_b32 s64, s34, 11
    s_lshl_b32 s65, s20, 8
    s_add_u32 s67, s66, s64
    s_add_u32 s67, s67, s65
    v_and_b32 v6, 3, v{L}
    v_lshlrev_b32 v6, 4, v6
    """)
def signal_wtag(e):
    wtag_addr(e)
    e(f"""
    s_lshl_b32 s64, s21, 8
    s_lshl_b32 s65, s22, 2
    s_add_u32 s64, s64, s65
    s_add_u32 s64, s64, s26
    s_add_u32 s92, s64, s66
    s_mov_b32 s65, 0x40000
    s_waitcnt vmcnt(0)
    v_add_u32 v1, 0x9e3779b9, v1
    s_mov_b64 exec, 1
    buffer_atomic_swap v1, off, s[16:19], s92 sc1
    s_mov_b64 exec, -1""")
    if OPT.get("cbafter"):
        p2_consts_b(e)
        e(f"v_and_b32 v6, 3, v{L}\nv_lshlrev_b32 v6, 4, v6")
    e("""
    s_branch POLL_PRE
    POLL_SPECIAL:""")
    wtag_addr(e)
    e(f"""
    s_mov_b32 s65, 0x40000
    s_waitcnt vmcnt(0)
    v_add_u32 v1, 0x9e3779b9, v1
    POLL_PRE:""")
    stamp(e,6)
    e(f"""
    s_mov_b64 exec, 15
    POLL:
    buffer_load_dwordx4 v[88:91], v6, s[16:19], s67 offen sc1
    s_sub_u32 s65, s65, 1
    s_cbranch_scc1 POLL_OUT
    s_waitcnt vmcnt(0)
    v_xor_b32 v88, v88, v1
    v_xor_b32 v89, v89, v1
    v_xor_b32 v90, v90, v1
    v_xor_b32 v91, v91, v1
    v_or3_b32 v88, v88, v89, v90
    v_or_b32 v88, v88, v91
    v_cmp_ne_u32 vcc, 0, v88
    s_cbranch_vccnz POLL
    POLL_OUT:
    s_mov_b64 exec, -1
    """)
def epoch_update(e):
    e("""
    s_cmp_lt_u32 s2, 256
    s_cbranch_scc1 NO_EPOCH
    s_cmp_eq_u32 s20, 0
    s_cbranch_scc0 NO_EPOCH
    s_mov_b64 exec, 1
    s_lshl_b32 s64, s30, 8
    s_add_u32 s64, s64, 0x408000
    buffer_store_dword v1, off, s[16:19], s64 sc1
    s_mov_b64 exec, -1
    NO_EPOCH:
    """)
def reset_line(e,sfx=""):
    if OPT.get("sig") in ("tag","wtag"):
        tag_load(e,sfx!="")
        return
    if OPT.get("sig")=="shard":
        if sfx=="": reset_shard(e)
        return
    if OPT.get("sig")!="last": return
    e(f"""
    s_lshl_b32 s67, s2, 7
    s_add_u32 s67, s67, 0x400000
    s_cmp_eq_u32 s20, 0
    s_cbranch_scc0 RESET_DONE{sfx}
    v_mov_b32 v6, s67
    v_mov_b32 v7, 0
    s_mov_b64 exec, 1
    buffer_store_dword v7, v6, s[16:19], 0 offen sc1
    s_mov_b64 exec, -1
    RESET_DONE{sfx}:
    """)
def signal_last(e):
    e("""
    SIGNAL:
    s_waitcnt vmcnt(0)
    s_barrier
    s_cmp_eq_u32 s20, 0
    s_cbranch_scc0 POLL_DONE
    s_lshl_b32 s64, s30, 7
    v_mov_b32 v4, s64
    v_mov_b32 v5, 1
    s_mov_b64 exec, 1
    buffer_atomic_add v5, v4, s[60:63], 0 offen sc0 sc1
    s_waitcnt vmcnt(0)""")
    stamp(e,6)
    e("""
    v_readfirstlane_b32 s64, v5
    s_cmp_eq_u32 s64, 128
    s_cbranch_scc0 POLL_PRE
    s_mov_b64 exec, -1
    v_lshlrev_b32 v4, 7, v2
    s_lshl_b32 s65, s30, 14
    s_add_u32 s65, s65, 0x400000
    s_add_u32 s66, s65, 8192
    v_mov_b32 v5, 1
    s_nop 0
    buffer_store_dword v5, v4, s[16:19], s65 offen sc1
    buffer_store_dword v5, v4, s[16:19], s66 offen sc1
    s_mov_b64 exec, 1
    s_lshl_b32 s65, s30, 7
    s_add_u32 s65, s65, 0x408000
    buffer_store_dword v5, v4, s[16:19], s65 offen sc1
    s_branch POLL_OUT
    POLL_PRE:
    v_mov_b32 v4, s67
    s_mov_b32 s65, 0x40000
    POLL:
    buffer_load_dword v5, v4, s[16:19], 0 offen sc1
    s_sub_u32 s65, s65, 1
    s_cbranch_scc1 POLL_OUT
    s_waitcnt vmcnt(0)
    v_readfirstlane_b32 s64, v5
    s_cmp_eq_u32 s64, 1
    s_cbranch_scc0 POLL
    POLL_OUT:
    s_mov_b64 exec, -1
    POLL_DONE:
    s_barrier
    """)
def dma_addr(e,sfx=''):
    e(f"""
    v_lshlrev_b32 v3, 4, v{L}
    s_lshl_b32 s38, s30, 21
    s_lshl_b32 s39, s32, 14
    s_add_u32 s38, s38, s39
    s_add_u32 s38, s38, s26
    s_add_u32 s39, s38, 1024
    s_add_u32 s27, s26, 1024
    s_cmp_eq_u32 s32, 0
    s_cbranch_scc0 P2_REG{sfx}
    v_bfe_u32 v4, v{L}, 2, 1
    s_lshr_b32 s40, s31, 1
    v_lshlrev_b32 v4, 30, v4
    v_add_u32 v3, s40, v3
    v_add_u32 v3, v4, v3
    P2_REG{sfx}:
    """)
def dma_issue(e,ld_flags):
    e(f"""
    s_mov_b32 m0, s26
    s_nop 0
    buffer_load_dwordx4 v3, s[16:19], s38 offen {ld_flags} lds
    s_mov_b32 m0, s27
    s_nop 0
    buffer_load_dwordx4 v3, s[16:19], s39 offen {ld_flags} lds
    """)
def signal(e):
    sig=OPT.get("sig","atomic")
    e("""
    s_waitcnt vmcnt(0)
    s_barrier
    s_cmp_eq_u32 s20, 0
    s_cbranch_scc0 SIG_DONE""")
    if sig=="atomic":
        e("""
        s_lshl_b32 s64, s23, 7
        s_and_b32 s65, s21, 1
        s_lshl_b32 s65, s65, 6
        s_add_u32 s64, s64, s65
        v_mov_b32 v4, s64
        v_mov_b32 v5, 1
        s_mov_b64 exec, 1
        buffer_atomic_add v5, v4, s[60:63], 0 offen sc1
        s_mov_b64 exec, -1""")
    elif sig=="byte":
        e("""
        v_mov_b32 v4, s2
        v_mov_b32 v5, 1
        s_mov_b64 exec, 1
        buffer_store_byte v5, v4, s[60:63], 0 offen sc0 sc1
        s_mov_b64 exec, -1""")
    e("SIG_DONE:")
def poll(e):
    sig=OPT.get("sig","atomic")
    e("""
    s_cmp_eq_u32 s20, 0
    s_cbranch_scc0 POLL_DONE""")
    if sig=="atomic":
        e("""
        v_lshlrev_b32 v4, 6, v2
        s_lshl_b32 s64, s30, 7
        v_add_u32 v4, s64, v4
        s_mov_b32 s65, 0x40000
        s_mov_b64 exec, 3
        POLL:
        buffer_load_dword v5, v4, s[60:63], 0 offen sc1
        s_sub_u32 s65, s65, 1
        s_cbranch_scc1 POLL_OUT
        s_waitcnt vmcnt(0)
        v_cmp_le_u32 vcc, 64, v5
        s_nop 4
        s_cmp_eq_u32 vcc_lo, 3
        s_cbranch_scc0 POLL""")
    else:
        e("""
        v_lshlrev_b32 v4, 4, v2
        s_lshl_b32 s64, s30, 7
        v_add_u32 v4, s64, v4
        s_mov_b32 s65, 0x40000
        s_mov_b32 s66, 0x01010101
        s_mov_b64 exec, 0xff
        POLL:
        buffer_load_dwordx4 v[88:91], v4, s[60:63], 0 offen sc1
        s_sub_u32 s65, s65, 1
        s_cbranch_scc1 POLL_OUT
        s_waitcnt vmcnt(0)
        v_and_b32 v88, v88, v89
        v_and_b32 v90, v90, v91
        v_and_b32 v88, v88, v90
        v_cmp_eq_u32 vcc, s66, v88
        s_nop 4
        s_cmp_eq_u32 vcc_lo, 0xff
        s_cbranch_scc0 POLL""")
    e("""
    POLL_OUT:
    s_mov_b64 exec, -1
    POLL_DONE:
    s_barrier
    """)
def p2_main(e, st_flags=""):
    A=88; D1=96; BF=112; D2=96; X=120; F=96; D3=112; Q=88
    B1=PB1
    e("s_waitcnt vmcnt(0)")
    stamp(e,8)
    for ks in range(2):
        for i in range(2):
            e(f"ds_read_b64_tr_b16 v[{A+4*ks+2*i}:{A+4*ks+2*i+1}], v{vTR2} offset:{ks*1024+i*512}")
    e("s_waitcnt lgkmcnt(2)")
    for ks in range(2):
        if ks==1: e("s_waitcnt lgkmcnt(0)")
        for eh in range(2):
            for cp in range(2):
                d=D1+(eh*2+cp)*4; f=B1+((eh*2+cp)*2+ks)*4
                c="0" if ks==0 else f"v[{d}:{d+3}]"
                e(f"v_mfma_f32_16x16x32_bf16 v[{d}:{d+3}], v[{A+4*ks}:{A+4*ks+3}], v[{f}:{f+3}], {c}")
    e("s_nop 5")
    for eh in range(2):
        re=D1+eh*8; im=re+4
        for p in range(2):
            c=TWC+4*eh+2*p; s_=TWS+4*eh+2*p; t=A+4*p; u=A+4*p+2
            e(f"v_pk_mul_f32 v[{t}:{t+1}], v[{re+2*p}:{re+2*p+1}], v[{c}:{c+1}]")
            e(f"v_pk_mul_f32 v[{u}:{u+1}], v[{im+2*p}:{im+2*p+1}], v[{c}:{c+1}]")
            e(f"v_pk_fma_f32 v[{t}:{t+1}], v[{im+2*p}:{im+2*p+1}], v[{s_}:{s_+1}], v[{t}:{t+1}]")
            e(f"v_pk_fma_f32 v[{u}:{u+1}], v[{re+2*p}:{re+2*p+1}], v[{s_}:{s_+1}], v[{u}:{u+1}] neg_lo:[1,0,0] neg_hi:[1,0,0]")
        for p in range(2):
            t=A+4*p; u=t+2
            e(f"v_cvt_pk_bf16_f32 v{BF+4*eh+p}, v{t}, v{t+1}")
            e(f"v_cvt_pk_bf16_f32 v{BF+4*eh+2+p}, v{u}, v{u+1}")
    e("s_nop 1")
    for eh in range(2):
        for cpp in range(2):
            d=D2+(eh*2+cpp)*4
            e(f"v_mfma_f32_16x16x32_bf16 v[{d}:{d+3}], v[{A2+4*cpp}:{A2+4*cpp+3}], v[{BF+4*eh}:{BF+4*eh+3}], 0")
    e("s_nop 7")
    for r in range(4):
        e(f"v_cvt_pk_bf16_f32 v{X+2*r}, v{D2+r}, v{D2+4+r}")
        e(f"v_cvt_pk_bf16_f32 v{X+2*r+1}, v{D2+8+r}, v{D2+12+r}")
        e(f"ds_write2_b32 v{vXW}, v{X+2*r}, v{X+2*r+1} offset0:{32*r} offset1:{32*r+16}")
    e("s_waitcnt lgkmcnt(0)\ns_barrier")
    stamp(e,9)
    if OPT.get("sig")=="wtag": epoch_update(e)
    e("s_and_b32 s58, s32, 127\ns_cmp_eq_u32 s58, 0\ns_cselect_b32 s58, s44, 0\ns_cmp_lg_u32 s58, 0\ns_cbranch_scc1 P2_END")
    for tau in range(4):
        e(f"ds_read2st64_b32 v[{F+4*tau}:{F+4*tau+1}], v{vXR+tau} offset0:0 offset1:8")
        e(f"ds_read2st64_b32 v[{F+4*tau+2}:{F+4*tau+3}], v{vXR+tau} offset0:16 offset1:24")
    for tau in range(4):
        e(f"s_waitcnt lgkmcnt({6-2*tau})")
        c="0" if tau==0 else f"v[{D3}:{D3+15}]"
        e(f"v_mfma_f32_32x32x16_bf16 v[{D3}:{D3+15}], v[{F+4*tau}:{F+4*tau+3}], v[{B3+4*tau}:{B3+4*tau+3}], {c}")
    e("s_nop 11")
    out_swaps(e,D3,Q)
    e(f"""
    buffer_store_dwordx4 v[{Q}:{Q+3}], v{vO}, s[12:15], s56 offen {st_flags}
    buffer_store_dwordx4 v[{Q+4}:{Q+7}], v{vO}, s[12:15], s57 offen {st_flags}
    P2_END:
    """)
def fused(zst="sc1", zld="sc1", ost=""):
    k1=NAME+"_kernel"
    e=E()
    e("""s_cmp_ge_u32 s2, 258
    s_cbranch_scc1 K_END
    s_load_dwordx2 s[4:5], s[0:1], 0
    s_load_dwordx2 s[6:7], s[0:1], 40
    s_load_dwordx2 s[8:9], s[0:1], 96
    s_load_dwordx4 s[56:59], s[0:1], 80""")
    stamp(e,0)
    e(f"""
    v_lshrrev_b32 v1, 6, v0
    v_and_b32 v{L}, 63, v0
    s_nop 0
    v_readfirstlane_b32 s20, v1
    s_lshl_b32 s26, s20, 11
    s_cmp_ge_u32 s2, 256
    s_cbranch_scc1 SPECIAL_WG
    """)
    last=OPT.get("sig")=="last"
    shard=OPT.get("sig")=="shard"
    tag=OPT.get("sig") in ("tag","wtag")
    wtag=OPT.get("sig")=="wtag"
    ZS=0x410000 if (last or shard or tag) else 0x400000
    p1_issue(e)
    stamp(e,1)
    srd(e,16,8,9,ZS)
    srd(e,60,58,59,256)
    reset_line(e)
    p1_consts(e)
    p2_consts_a(e)
    p1_main(e,zst)
    stamp(e,4)
    srd(e,12,56,57,0x400000)
    p2_setup(e,False)
    if not OPT.get("cbafter"):
        p2_consts_b(e)
    dma_addr(e)
    stamp(e,5)
    if last: signal_last(e)
    elif shard: signal_shard(e)
    elif wtag: signal_wtag(e)
    elif tag: signal_tag(e)
    else:
        signal(e)
        e("POLL_START:")
        stamp(e,6)
        poll(e)
    stamp(e,7)
    dma_issue(e,zld)
    p2_main(e,ost)
    gen.stamp_out(e,0,0,0)
    e("K_END:\ns_endpgm")
    e("SPECIAL_WG:\ns_waitcnt lgkmcnt(0)")
    srd(e,16,8,9,ZS)
    srd(e,60,58,59,256)
    reset_line(e,"B")
    p2_consts_a(e)
    srd(e,12,56,57,0x400000)
    p2_setup(e,True)
    p2_consts_b(e)
    dma_addr(e,"B")
    e("s_branch SIGNAL" if last else ("s_branch POLL_SPECIAL" if (shard or tag) else "s_branch POLL_START"))
    s=HEADER+f"; @launch grid=(258,1,1) block=(512,1,1) lds=32768\n"
    s+='.amdgcn_target "amdgcn-amd-amdhsa--gfx950"\n.text\n'
    s+=func(k1,e.txt())
    s+='.section .rodata,"a"\n.p2align 6\n'+kd(k1,128,102)
    return s
if __name__=="__main__":
    mode=sys.argv[1]; out=sys.argv[2]
    args=[a for a in sys.argv[3:] if not a.startswith("-")]
    for a in sys.argv[3:]:
        if a.startswith("-"):
            k,_,v=a[1:].partition("="); OPT[k]=v or "1"
    if mode.endswith("_diag"):
        DIAG=True; gen.DIAG=True
    gen.FUSED=True
    open(out,"w").write(fused(*args))
```

```python
import sys
import gen
from gen import E, vr, srd, NAME, HEADER, func, kd, out_swaps
OPT={}
DIAG=False
def stamp(e,k):
    if DIAG: e(f"s_memrealtime s[70:71]\ns_waitcnt lgkmcnt(0)\ns_mov_b32 s{72+k}, s70")
L=2
A1=104; B2=108; vTR=124; vEW=125; vER=126; vZ=127; H=80; M=81; T=64-26
DAT=116; Da=64; Db=88
def t(k): return f"v{k+T}"
def p1_issue(e):
    e(f"""
    s_and_b32 s21, s2, 7
    s_bfe_u32 s22, s2, 0x40003
    s_bfe_u32 s23, s2, 0x10007
    v_lshrrev_b32 v3, 2, v{L}
    v_lshlrev_b32 v3, 17, v3
    v_and_b32 v4, 3, v{L}
    v_lshl_or_b32 v3, v4, 4, v3
    s_lshl_b32 s24, s20, 14
    s_lshl_b32 s25, s21, 10
    s_add_u32 s24, s24, s25
    s_lshl_b32 s25, s22, 6
    s_add_u32 s24, s24, s25
    s_add_u32 s25, s24, 8192
    s_add_u32 s27, s26, 1024
    s_mov_b32 s14, 0x200000
    s_mov_b32 s15, 0x20000
    s_mov_b32 m0, s26
    s_cmp_eq_u32 s23, 0
    s_waitcnt lgkmcnt(0)
    s_cselect_b32 s12, s4, s6
    s_cselect_b32 s13, s5, s7
    buffer_load_dwordx4 v3, s[12:15], s24 offen {OPT.get("xf","").replace("+"," ")} lds
    s_mov_b32 m0, s27
    s_nop 0
    buffer_load_dwordx4 v3, s[12:15], s25 offen {OPT.get("xf","").replace("+"," ")} lds
    """)
def p1_consts(e):
    e(f"""
    v_lshrrev_b32 v{H}, 5, v{L}
    v_and_b32 v{M}, 31, v{L}
    v_bfe_u32 v4, v{M}, 1, 3
    v_and_b32 v5, 1, v{M}
    v_and_b32 v6, 15, v{M}
    v_cmp_eq_u32 vcc, 1, v6
    v_cvt_f32_u32 v7, v4
    v_cvt_f32_u32 {t(26)}, v5
    v_mul_f32 v7, 0x3d800000, v7
    v_mul_f32 {t(26)}, 0x3e800000, {t(26)}
    v_cndmask_b32 v7, v7, 0.5, vcc
    v_cndmask_b32 {t(26)}, {t(26)}, 0, vcc
    v_lshlrev_b32 {t(27)}, 3, v{H}
    v_cvt_f32_u32 {t(27)}, {t(27)}
    v_fma_f32 {t(26)}, {t(27)}, v7, {t(26)}
    """)
    for jj in range(8):
        if jj>0: e(f"v_add_f32 {t(26)}, {t(26)}, v7")
        e(f"v_cos_f32 {t(28+jj)}, {t(26)}")
    e("s_nop 0")
    for q in range(4): e(f"v_cvt_pk_bf16_f32 v{A1+q}, {t(28+2*q)}, {t(29+2*q)}")
    e(f"""
    v_lshrrev_b32 v4, 4, v{M}
    v_and_b32 v5, 7, v{M}
    v_lshl_or_b32 v4, v4, 3, v5
    v_bfe_u32 v5, v{M}, 3, 1
    v_cvt_f32_u32 v6, v5
    v_mul_f32 v6, 0x3e800000, v6
    s_cmp_eq_u32 s20, 0
    s_cbranch_scc1 P1_SPECIAL
    v_lshlrev_b32 v7, 4, v4
    v_add_u32 v7, s20, v7
    v_mov_b32 {t(26)}, v6
    v_add_f32 {t(27)}, 0xbe800000, v6
    v_mov_b32 {t(28)}, -1
    s_branch P1_COMMON
    P1_SPECIAL:
    v_lshlrev_b32 v7, 4, v4
    v_cmp_le_u32 vcc, 8, v4
    v_subrev_u32 {t(29)}, 120, v7
    v_mov_b32 {t(28)}, 0xffff
    v_mov_b32 {t(30)}, 0xffff0000
    v_cndmask_b32 v7, v7, {t(29)}, vcc
    v_cndmask_b32 {t(28)}, {t(28)}, {t(30)}, vcc
    v_cmp_eq_u32 vcc, 8, v{M}
    v_mov_b32 {t(29)}, 0x80
    v_mov_b32 {t(26)}, v6
    v_cndmask_b32 v7, v7, {t(29)}, vcc
    v_cndmask_b32 {t(26)}, {t(26)}, 0, vcc
    s_nop 0
    v_mov_b32 {t(27)}, {t(26)}
    P1_COMMON:
    v_cvt_f32_u32 v7, v7
    v_lshlrev_b32 {t(29)}, 2, v{H}
    v_cvt_f32_u32 {t(29)}, {t(29)}
    v_mul_f32 v7, 0x3b800000, v7
    v_fma_f32 {t(26)}, {t(29)}, v7, {t(26)}
    v_fma_f32 {t(27)}, {t(29)}, v7, {t(27)}
    v_mul_f32 {t(29)}, 4.0, v7
    """)
    for ks in range(2):
        for x in range(4):
            e(f"v_cos_f32 {t(30)}, {t(26)}\nv_cos_f32 {t(31)}, {t(27)}")
            if x<3: e(f"v_add_f32 {t(26)}, {t(26)}, v7\nv_add_f32 {t(27)}, {t(27)}, v7")
            elif ks==0: e(f"v_add_f32 {t(26)}, {t(26)}, v7\nv_add_f32 {t(27)}, {t(27)}, v7\nv_add_f32 {t(26)}, {t(26)}, {t(29)}\nv_add_f32 {t(27)}, {t(27)}, {t(29)}")
            else: e("s_nop 0")
            e(f"v_cvt_pk_bf16_f32 v{B2+4*ks+x}, {t(30)}, {t(31)}")
    for q in range(8): e(f"v_and_b32 v{B2+q}, v{B2+q}, {t(28)}")
    e(f"""
    v_bfe_u32 v4, v{L}, 2, 2
    v_lshl_or_b32 v4, v{H}, 3, v4
    v_lshlrev_b32 v4, 6, v4
    v_bfe_u32 v5, v{L}, 4, 1
    v_lshl_or_b32 v4, v5, 5, v4
    v_and_b32 v5, 3, v{L}
    v_lshl_or_b32 v4, v5, 3, v4
    v_add_u32 v{vTR}, s26, v4
    s_lshl_b32 s28, s20, 8
    s_add_u32 s28, s28, 16384
    v_lshlrev_b32 v4, 3, v{M}
    v_lshl_or_b32 v5, v{H}, 12, v4
    v_add_u32 v{vEW}, s28, v5
    s_add_u32 s28, s26, 16384
    v_lshl_or_b32 v5, v{H}, 9, v4
    v_add_u32 v{vER}, s28, v5
    v_and_b32 v4, 7, v{L}
    v_lshlrev_b32 v4, 14, v4
    v_bfe_u32 v5, v{L}, 3, 1
    v_lshl_or_b32 v4, v5, 6, v4
    v_bfe_u32 v5, v{L}, 4, 1
    v_lshl_or_b32 v4, v5, 5, v4
    v_lshl_or_b32 v{vZ}, v{H}, 4, v4
    s_lshl_b32 s28, s23, 21
    s_lshl_b32 s29, s20, 18
    s_add_u32 s28, s28, s29
    s_lshl_b32 s29, s21, 11
    s_add_u32 s28, s28, s29
    s_lshl_b32 s29, s22, 7
    s_add_u32 s28, s28, s29
    s_add_u32 s29, s28, 0x20000
    """)
def p1_main(e, st_flags):
    B0=DAT; B1=DAT+4; X=DAT; F=DAT
    NX=1 if OPT.get("sig") in ("tag","wtag") else 0
    if DIAG: e("s_waitcnt vmcnt(0)")
    stamp(e,2)
    e(f"""
    s_waitcnt vmcnt({1+NX})
    ds_read_b64_tr_b16 v[{B0}:{B0+1}], v{vTR} offset:0
    ds_read_b64_tr_b16 v[{B0+2}:{B0+3}], v{vTR} offset:256
    s_waitcnt vmcnt({NX})
    ds_read_b64_tr_b16 v[{B1}:{B1+1}], v{vTR} offset:1024
    ds_read_b64_tr_b16 v[{B1+2}:{B1+3}], v{vTR} offset:1280
    s_waitcnt lgkmcnt(2)
    v_mfma_f32_32x32x16_bf16 v[{Da}:{Da+15}], v[{A1}:{A1+3}], v[{B0}:{B0+3}], 0
    s_waitcnt lgkmcnt(0)
    v_mfma_f32_32x32x16_bf16 v[{Db}:{Db+15}], v[{A1}:{A1+3}], v[{B1}:{B1+3}], 0
    s_nop 10
    """)
    offs=[0,2048,8192,10240]
    for mu in range(4):
        e(f"v_cvt_pk_bf16_f32 v{X+2*mu}, v{Da+2*mu}, v{Da+2*mu+1}")
        e(f"v_cvt_pk_bf16_f32 v{X+2*mu+1}, v{Db+2*mu}, v{Db+2*mu+1}")
        e(f"ds_write_b64 v{vEW}, v[{X+2*mu}:{X+2*mu+1}] offset:{offs[mu]}")
    e("s_waitcnt vmcnt(0) lgkmcnt(0)\ns_barrier")
    stamp(e,3)
    for ks in range(2):
        for sg in range(2):
            e(f"ds_read_b64 v[{F+4*ks+2*sg}:{F+4*ks+2*sg+1}], v{vER} offset:{(4*ks+sg)*256}")
    e(f"""
    s_waitcnt lgkmcnt(2)
    v_mfma_f32_32x32x16_bf16 v[{Da}:{Da+15}], v[{F}:{F+3}], v[{B2}:{B2+3}], 0
    s_waitcnt lgkmcnt(0)
    v_mfma_f32_32x32x16_bf16 v[{Da}:{Da+15}], v[{F+4}:{F+7}], v[{B2+4}:{B2+7}], v[{Da}:{Da+15}]
    s_nop 10
    """)
    out_swaps(e,Da,X)
    e(f"""
    buffer_store_dwordx4 v[{X}:{X+3}], v{vZ}, s[16:19], s28 offen {st_flags}
    buffer_store_dwordx4 v[{X+4}:{X+7}], v{vZ}, s[16:19], s29 offen {st_flags}
    """)
PB1=8; TWC=40; TWS=48; A2=56; B3=64; vTR2=80; vXW=81; vXR=82; vO=86
def b1_init(e):
    e(f"""
    v_and_b32 v99, 15, v{L}
    v_lshrrev_b32 v100, 4, v{L}
    v_cvt_f32_u32 v99, v99
    v_cvt_f32_u32 v100, v100
    v_mul_f32 v96, 0x3d000000, v99
    v_add_f32 v97, v100, v100
    v_mul_f32 v98, 0x41000000, v96
    v_mul_f32 v97, v97, v96
    """)
def b1_block(e,k):
    ks=k>>1; i=k&1
    fr=lambda eh,cp: PB1+((eh*2+cp)*2+ks)*4
    e(f"""
    v_add_f32 v99, v97, v96
    v_cos_f32 v100, v97
    v_cos_f32 v101, v99
    v_sin_f32 v102, v97
    v_sin_f32 v103, v99
    v_add_f32 v97, v97, v98
    v_cvt_pk_bf16_f32 v{fr(0,0)+2*i}, v100, v101
    v_cvt_pk_bf16_f32 v{fr(0,1)+2*i+1}, v100, v101
    v_cvt_pk_bf16_f32 v{fr(1,0)+2*i}, v100, -v101
    v_cvt_pk_bf16_f32 v{fr(1,1)+2*i+1}, v100, -v101
    v_cvt_pk_bf16_f32 v{fr(0,0)+2*i+1}, v102, v103
    v_cvt_pk_bf16_f32 v{fr(0,1)+2*i}, -v102, -v103
    v_cvt_pk_bf16_f32 v{fr(1,0)+2*i+1}, v102, -v103
    v_cvt_pk_bf16_f32 v{fr(1,1)+2*i}, -v102, v103
    """)
def b1_win(e,win,special=False):
    pl=OPT.get("b1","XXXX")
    order="XDSZ"
    first=min(order.index(c) for c in pl)
    if order[first]==win: b1_init(e)
    for k,c in enumerate(pl):
        if c==win: b1_block(e,k)
def p2_consts_a(e):
    N=4; G=5
    e(f"""
    v_and_b32 v{N}, 15, v{L}
    v_lshrrev_b32 v{G}, 4, v{L}
    v_cvt_f32_u32 v6, v{N}
    v_cvt_f32_u32 v7, v{G}
    v_mul_f32 v87, 0x3b000000, v6
    v_mul_f32 v89, 4.0, v7
    """)
    for eh in range(2):
        if eh==1: e("v_add_f32 v87, 0x3d000000, v87")
        e("v_mul_f32 v88, v89, v87")
        for r in range(4):
            e(f"v_cos_f32 v{TWC+4*eh+r}, v88\nv_sin_f32 v{TWS+4*eh+r}, v88")
            if r<3: e("v_add_f32 v88, v88, v87")
    e(f"""
    v_mul_f32 v87, 0x3d800000, v6
    v_mul_f32 v88, v89, v87
    """)
    for r in range(4):
        e(f"v_cos_f32 v{90+r}, v88\nv_sin_f32 v{94+r}, v88")
        if r<3: e("v_add_f32 v88, v88, v87")
    e(f"""
    s_nop 0
    v_cvt_pk_bf16_f32 v{A2+0}, v90, v91
    v_cvt_pk_bf16_f32 v{A2+1}, v92, v93
    v_cvt_pk_bf16_f32 v{A2+2}, v94, v95
    v_cvt_pk_bf16_f32 v{A2+3}, v96, v97
    v_cvt_pk_bf16_f32 v{A2+4}, -v94, -v95
    v_cvt_pk_bf16_f32 v{A2+5}, -v96, -v97
    v_cvt_pk_bf16_f32 v{A2+6}, v90, v91
    v_cvt_pk_bf16_f32 v{A2+7}, v92, v93
    """)
    b1_win(e,"X")
CB=32768
def share_compute(e):
    e(f"""
    v_lshlrev_b32 v0, 4, v{L}
    v_and_b32 v99, 15, v{L}
    v_lshrrev_b32 v100, 4, v{L}
    v_add_u32 v0, {CB}, v0
    v_cvt_f32_u32 v99, v99
    s_cmp_ge_u32 s20, 4
    s_cbranch_scc1 SH_W4
    s_lshl_b32 s40, s20, 3
    s_lshr_b32 s41, s20, 1
    v_lshl_add_u32 v100, v100, 1, s40
    v_mul_f32 v96, 0x3d000000, v99
    v_cvt_f32_u32 v100, v100
    s_lshl_b32 s41, s41, 10
    s_and_b32 s42, s20, 1
    v_mul_f32 v97, v100, v96
    s_lshl_b32 s42, s42, 3
    s_add_u32 s41, s41, s42
    v_add_f32 v99, v97, v96
    v_cos_f32 v100, v97
    v_cos_f32 v101, v99
    v_sin_f32 v102, v97
    v_sin_f32 v103, v99
    v_add_u32 v98, s41, v0
    v_cvt_pk_bf16_f32 v88, v100, v101
    v_cvt_pk_bf16_f32 v91, v100, v101
    v_cvt_pk_bf16_f32 v92, v100, -v101
    v_cvt_pk_bf16_f32 v95, v100, -v101
    v_cvt_pk_bf16_f32 v89, v102, v103
    v_cvt_pk_bf16_f32 v90, -v102, -v103
    v_cvt_pk_bf16_f32 v93, v102, -v103
    v_cvt_pk_bf16_f32 v94, -v102, v103
    ds_write_b64 v98, v[88:89] offset:0
    ds_write_b64 v98, v[90:91] offset:2048
    ds_write_b64 v98, v[92:93] offset:4096
    ds_write_b64 v98, v[94:95] offset:6144
    s_branch SH_DONE
    SH_W4:
    v_cvt_f32_u32 v100, v100
    s_cmp_ge_u32 s20, 6
    v_mul_f32 v89, 4.0, v100
    s_cbranch_scc1 SH_W6
    s_and_b32 s40, s20, 1
    s_mul_i32 s41, s40, 0x3d000000
    s_lshl_b32 s40, s40, 10
    v_mul_f32 v87, 0x3b000000, v99
    v_add_u32 v98, s40, v0
    v_add_f32 v87, s41, v87
    v_mul_f32 v88, v89, v87
    """)
    for r in range(4):
        e(f"v_cos_f32 v{92+r}, v88\nv_sin_f32 v{100+r}, v88")
        if r<3: e("v_add_f32 v88, v88, v87")
    e(f"""
    s_nop 0
    ds_write_b128 v98, v[92:95] offset:{8*1024}
    ds_write_b128 v98, v[100:103] offset:{10*1024}
    s_branch SH_DONE
    SH_W6:
    s_cmp_eq_u32 s20, 6
    s_cbranch_scc0 SH_DONE
    v_mul_f32 v87, 0x3d800000, v99
    v_mul_f32 v88, v89, v87
    """)
    for r in range(4):
        e(f"v_cos_f32 v{90+r}, v88\nv_sin_f32 v{94+r}, v88")
        if r<3: e("v_add_f32 v88, v88, v87")
    e(f"""
    s_nop 0
    v_cvt_pk_bf16_f32 v100, v90, v91
    v_cvt_pk_bf16_f32 v101, v92, v93
    v_cvt_pk_bf16_f32 v102, v94, v95
    v_cvt_pk_bf16_f32 v103, v96, v97
    v_cvt_pk_bf16_f32 v88, -v94, -v95
    v_cvt_pk_bf16_f32 v89, -v96, -v97
    v_cvt_pk_bf16_f32 v90, v90, v91
    v_cvt_pk_bf16_f32 v91, v92, v93
    ds_write_b128 v0, v[100:103] offset:{12*1024}
    ds_write_b128 v0, v[88:91] offset:{13*1024}
    SH_DONE:
    """)
def share_read_interleaved(e, gen_fn, every):
    t=E(); gen_fn(t)
    q=0; n=0
    for line in t.l:
        e.l.append(line)
        ls=line.strip()
        if ls and not ls.endswith(":") and ls.startswith("v_"):
            n+=1
            if n%every==0 and q<14:
                e(f"ds_read_b128 v[{8+4*q}:{11+4*q}], v0 offset:{q*1024}"); q+=1
    while q<14:
        e(f"ds_read_b128 v[{8+4*q}:{11+4*q}], v0 offset:{q*1024}"); q+=1
def p2_consts_b(e):
    N=4; G=5
    e(f"""
    v_and_b32 v{N}, 15, v{L}
    v_lshrrev_b32 v{G}, 4, v{L}
    v_lshlrev_b32 v6, 3, v{L}
    v_add_u32 v{vTR2}, s26, v6
    s_add_u32 s40, s26, 16384
    v_lshlrev_b32 v6, 2, v{N}
    v_lshl_or_b32 v6, v{G}, 9, v6
    v_add_u32 v{vXW}, s40, v6
    v_and_b32 v6, 31, v{L}
    v_lshrrev_b32 v7, 5, v{L}
    s_and_b32 s43, s20, 3
    s_lshr_b32 s44, s20, 2
    s_lshl_b32 s45, s43, 7
    v_add_u32 v87, s45, v6
    v_lshlrev_b32 v88, 13, v7
    v_add_u32 v88, 16384, v88
    s_cmp_eq_u32 s44, 0
    s_cselect_b32 s46, 0, -1
    s_cselect_b32 s47, 0, 1
    """)
    for tau in range(4):
        e(f"""
        v_xor_b32 v89, s46, v87
        v_add_u32 v89, s47, v89
        v_and_b32 v89, 0x1ff, v89
        v_lshl_add_u32 v{vXR+tau}, v89, 2, v88
        """)
        if tau<3: e("v_add_u32 v87, 32, v87")
    e(f"""
    v_and_b32 v89, 7, v6
    v_lshlrev_b32 v89, 8, v89
    v_add_u32 v89, s33, v89
    v_cvt_f32_u32 v90, v89
    v_mul_f32 v90, 0x3a000000, v90
    v_lshlrev_b32 v91, 2, v7
    v_cvt_f32_u32 v91, v91
    v_mul_f32 v91, v91, v90
    v_lshrrev_b32 v92, 3, v6
    v_cmp_eq_u32 s[48:49], 0, v92
    v_cmp_eq_u32 s[50:51], 1, v92
    v_cmp_eq_u32 s[52:53], 2, v92
    v_cmp_eq_u32 s[54:55], 3, v92
    """)
    for x in range(4):
        e(f"v_cos_f32 v93, v91\nv_sin_f32 v94, v91")
        e("v_add_f32 v91, v91, v90" if x<3 else "s_nop 0")
        e(f"v_cvt_pk_bf16_f32 v95, v93, v94")
        for tau in range(4):
            e(f"v_cndmask_b32 v{B3+4*tau+x}, 0, v95, s[{48+2*tau}:{49+2*tau}]")
    e(f"""
    v_xor_b32 v89, s46, v89
    v_add_u32 v89, s47, v89
    v_and_b32 v89, 0x7ff, v89
    v_lshlrev_b32 v89, 11, v89
    v_bfe_u32 v90, v{L}, 3, 1
    v_lshl_or_b32 v89, v90, 6, v89
    v_bfe_u32 v90, v{L}, 4, 1
    v_lshl_or_b32 v89, v90, 5, v89
    v_lshl_or_b32 v{vO}, v7, 4, v89
    s_lshl_b32 s56, s30, 10
    s_lshl_b32 s57, s43, 8
    s_add_u32 s56, s56, s57
    s_add_u32 s57, s56, 128
    """)
def p2_setup(e, special):
    if special: e("s_and_b32 s30, s2, 1\ns_movk_i32 s31, 128")
    elif OPT.get("sig")=="wtag": e("s_lshr_b32 s30, s2, 7\ns_lshl_b32 s31, s21, 4\ns_or_b32 s31, s31, s22")
    else: e("s_lshr_b32 s30, s2, 7\ns_and_b32 s31, s2, 127")
    e("""
    s_and_b32 s32, s31, 127
    s_lshr_b32 s34, s32, 4
    s_and_b32 s35, s32, 15
    s_lshl_b32 s36, s35, 4
    s_add_u32 s33, s36, s34
    s_sub_u32 s37, s36, 120
    s_cmp_ge_u32 s35, 8
    s_cselect_b32 s37, s37, s36
    s_cmp_eq_u32 s34, 0
    s_cselect_b32 s33, s37, s33
    s_cmp_eq_u32 s31, 128
    s_cselect_b32 s33, 128, s33
    """)
def reset_shard(e):
    S=int(OPT.get("S","8")); lg=S.bit_length()-1
    e(f"""
    s_and_b32 s91, s2, {S-1}
    s_cmp_eq_u32 s20, 0
    s_cbranch_scc0 RESET_DONE
    s_andn2_b32 s67, s2, {S-1}
    s_add_u32 s92, s23, 256
    v_add_u32 v6, s67, v{L}
    v_mov_b32 v7, s92
    v_cmp_eq_u32 vcc, {S}, v{L}
    s_lshl_b32 s92, s91, 2
    s_add_u32 s92, s92, 0x400000
    v_cndmask_b32 v6, v6, v7, vcc
    v_lshlrev_b32 v6, 7, v6
    v_mov_b32 v7, 0
    s_mov_b64 exec, {hex((1<<(S+1))-1)}
    buffer_store_dword v7, v6, s[16:19], s92 offen sc1
    s_mov_b64 exec, -1
    RESET_DONE:
    """)
def signal_shard(e):
    S=int(OPT.get("S","8")); lg=S.bit_length()-1
    sp=int(OPT.get("sp",str(128//S)))
    e(f"""
    s_waitcnt vmcnt(0)
    s_barrier
    s_cmp_eq_u32 s20, 0
    s_cbranch_scc0 POLL_DONE
    s_lshl_b32 s64, s30, 7
    s_mul_i32 s65, s91, {sp}
    s_add_u32 s64, s64, s65
    v_mov_b32 v4, s64
    v_mov_b32 v5, 1
    s_mov_b64 exec, 1
    buffer_atomic_add v5, v4, s[60:63], 0 offen sc0 sc1
    s_waitcnt vmcnt(0)""")
    stamp(e,6)
    e(f"""
    v_readfirstlane_b32 s64, v5
    s_cmp_eq_u32 s64, {128//S-1}
    s_cbranch_scc0 POLL_PRE
    s_mov_b64 exec, -1
    v_lshlrev_b32 v4, 7, v2
    s_lshl_b32 s65, s30, 14
    s_lshl_b32 s66, s91, 2
    s_add_u32 s65, s65, s66
    s_add_u32 s65, s65, 0x400000
    s_add_u32 s64, s65, 8192
    v_mov_b32 v5, 1
    s_nop 0
    buffer_store_dword v5, v4, s[16:19], s65 offen sc1
    buffer_store_dword v5, v4, s[16:19], s64 offen sc1
    s_mov_b64 exec, 1
    s_lshl_b32 s65, s30, 7
    s_add_u32 s65, s65, s66
    s_add_u32 s65, s65, 0x408000
    buffer_store_dword v5, v4, s[16:19], s65 offen sc1
    s_branch POLL_PRE
    POLL_SPECIAL:
    s_cmp_eq_u32 s20, 0
    s_cbranch_scc0 POLL_DONE
    POLL_PRE:
    s_mov_b64 exec, -1
    s_lshl_b32 s67, s2, 7
    s_add_u32 s67, s67, 0x400000
    v_lshlrev_b32 v4, 2, v2
    s_mov_b32 s65, 0x40000
    s_mov_b64 exec, {hex((1<<S)-1)}
    POLL:
    buffer_load_dword v5, v4, s[16:19], s67 offen sc1
    s_sub_u32 s65, s65, 1
    s_cbranch_scc1 POLL_OUT
    s_waitcnt vmcnt(0)
    v_cmp_eq_u32 vcc, 1, v5
    s_nop 4
    s_cmp_eq_u32 vcc_lo, {hex((1<<S)-1)}
    s_cbranch_scc0 POLL
    POLL_OUT:
    s_mov_b64 exec, -1
    POLL_DONE:
    s_barrier
    """)
def tag_load(e,special):
    br="s2" if special else "s23"
    if special: e("s_and_b32 s93, s2, 1\ns_lshl_b32 s93, s93, 8")
    else: e("s_lshl_b32 s93, s23, 8")
    e("""
    s_add_u32 s93, s93, 0x408000
    buffer_load_dword v1, off, s[16:19], s93 sc1
    """)
def tag_addr(e):
    R=int(OPT.get("R","8"))
    e(f"""
    s_lshl_b32 s66, s30, 14
    s_add_u32 s66, s66, 0x400000
    s_and_b32 s64, s2, {R-1}
    s_lshl_b32 s64, s64, 11
    s_add_u32 s67, s66, s64
    v_lshrrev_b32 v6, 2, v{L}
    v_and_b32 v5, 3, v{L}
    v_lshlrev_b32 v6, 8, v6
    v_lshl_or_b32 v6, v5, 4, v6
    """)
def signal_tag(e):
    R=int(OPT.get("R","8"))
    tag_addr(e)
    e(f"""
    s_and_b32 s64, s2, 7
    s_lshl_b32 s65, s64, 8
    s_add_u32 s65, s65, s66
    s_bfe_u32 s64, s2, 0x40003
    s_lshl_b32 s64, s64, 2
    s_add_u32 s92, s65, s64
    v_lshlrev_b32 v4, 11, v{L}
    s_mov_b32 s65, 0x40000
    s_waitcnt vmcnt(0)
    v_add_u32 v1, 0x9e3779b9, v1
    s_barrier
    s_cmp_eq_u32 s20, 0
    s_cbranch_scc0 POLL_DONE
    s_mov_b64 exec, {hex((1<<R)-1)}
    buffer_atomic_swap v1, v4, s[16:19], s92 offen sc1
    s_branch POLL_PRE
    POLL_SPECIAL:""")
    tag_addr(e)
    e(f"""
    s_mov_b32 s65, 0x40000
    s_waitcnt vmcnt(0)
    v_add_u32 v1, 0x9e3779b9, v1
    s_cmp_eq_u32 s20, 0
    s_cbranch_scc0 POLL_DONE
    POLL_PRE:""")
    stamp(e,6)
    e(f"""
    s_mov_b32 exec_lo, -1
    s_mov_b32 exec_hi, 0
    POLL:
    buffer_load_dwordx4 v[88:91], v6, s[16:19], s67 offen sc1
    s_sub_u32 s65, s65, 1
    s_cbranch_scc1 POLL_OUT
    s_waitcnt vmcnt(0)
    v_xor_b32 v88, v88, v1
    v_xor_b32 v89, v89, v1
    v_xor_b32 v90, v90, v1
    v_xor_b32 v91, v91, v1
    v_or3_b32 v88, v88, v89, v90
    v_or_b32 v88, v88, v91
    v_cmp_ne_u32 vcc, 0, v88
    s_cbranch_vccnz POLL
    POLL_OUT:
    s_cmp_lt_u32 s2, 256
    s_cbranch_scc1 NO_EPOCH
    s_mov_b64 exec, 1
    s_lshl_b32 s64, s30, 8
    s_add_u32 s64, s64, 0x408000
    buffer_store_dword v1, off, s[16:19], s64 sc1
    NO_EPOCH:
    s_mov_b64 exec, -1
    POLL_DONE:
    s_barrier
    """)
def wtag_addr(e):
    e(f"""
    s_lshl_b32 s66, s30, 14
    s_add_u32 s66, s66, 0x400000
    s_lshl_b32 s64, s34, 11
    s_lshl_b32 s65, s20, 8
    s_add_u32 s67, s66, s64
    s_add_u32 s67, s67, s65
    v_and_b32 v6, 3, v{L}
    v_lshlrev_b32 v6, 4, v6
    """)
def signal_wtag(e):
    wtag_addr(e)
    e(f"""
    s_lshl_b32 s64, s21, 8
    s_lshl_b32 s65, s22, 2
    s_add_u32 s64, s64, s65
    s_add_u32 s64, s64, s26
    s_add_u32 s92, s64, s66
    s_mov_b32 s65, 0x40000
    s_waitcnt vmcnt(0)
    v_add_u32 v1, 0x9e3779b9, v1
    s_mov_b64 exec, 1
    buffer_atomic_swap v1, off, s[16:19], s92 sc1
    s_mov_b64 exec, -1""")
    if OPT.get("share") and OPT.get("shpos")=="S":
        for q in range(14): e(f"ds_read_b128 v[{8+4*q}:{11+4*q}], v0 offset:{q*1024}")
    if OPT.get("cbafter"):
        p2_consts_b(e)
        e(f"v_and_b32 v6, 3, v{L}\nv_lshlrev_b32 v6, 4, v6")
    e("""
    s_branch POLL_PRE
    POLL_SPECIAL:""")
    wtag_addr(e)
    e(f"""
    s_mov_b32 s65, 0x40000
    s_waitcnt vmcnt(0)
    v_add_u32 v1, 0x9e3779b9, v1
    POLL_PRE:""")
    stamp(e,6)
    b1_win(e,"S")
    e(f"""
    s_mov_b64 exec, 15
    POLL:
    buffer_load_dwordx4 v[88:91], v6, s[16:19], s67 offen sc1
    s_sub_u32 s65, s65, 1
    s_cbranch_scc1 POLL_OUT
    s_waitcnt vmcnt(0)
    v_xor_b32 v88, v88, v1
    v_xor_b32 v89, v89, v1
    v_xor_b32 v90, v90, v1
    v_xor_b32 v91, v91, v1
    v_or3_b32 v88, v88, v89, v90
    v_or_b32 v88, v88, v91
    v_cmp_ne_u32 vcc, 0, v88
    s_cbranch_vccnz POLL
    POLL_OUT:
    s_mov_b64 exec, -1
    """)
def epoch_update(e):
    e("""
    s_cmp_lt_u32 s2, 256
    s_cbranch_scc1 NO_EPOCH
    s_cmp_eq_u32 s20, 0
    s_cbranch_scc0 NO_EPOCH
    s_mov_b64 exec, 1
    s_lshl_b32 s64, s30, 8
    s_add_u32 s64, s64, 0x408000
    buffer_store_dword v1, off, s[16:19], s64 sc1
    s_mov_b64 exec, -1
    NO_EPOCH:
    """)
def reset_line(e,sfx=""):
    if OPT.get("sig") in ("tag","wtag"):
        tag_load(e,sfx!="")
        return
    if OPT.get("sig")=="shard":
        if sfx=="": reset_shard(e)
        return
    if OPT.get("sig")!="last": return
    e(f"""
    s_lshl_b32 s67, s2, 7
    s_add_u32 s67, s67, 0x400000
    s_cmp_eq_u32 s20, 0
    s_cbranch_scc0 RESET_DONE{sfx}
    v_mov_b32 v6, s67
    v_mov_b32 v7, 0
    s_mov_b64 exec, 1
    buffer_store_dword v7, v6, s[16:19], 0 offen sc1
    s_mov_b64 exec, -1
    RESET_DONE{sfx}:
    """)
def signal_last(e):
    e("""
    SIGNAL:
    s_waitcnt vmcnt(0)
    s_barrier
    s_cmp_eq_u32 s20, 0
    s_cbranch_scc0 POLL_DONE
    s_lshl_b32 s64, s30, 7
    v_mov_b32 v4, s64
    v_mov_b32 v5, 1
    s_mov_b64 exec, 1
    buffer_atomic_add v5, v4, s[60:63], 0 offen sc0 sc1
    s_waitcnt vmcnt(0)""")
    stamp(e,6)
    e("""
    v_readfirstlane_b32 s64, v5
    s_cmp_eq_u32 s64, 128
    s_cbranch_scc0 POLL_PRE
    s_mov_b64 exec, -1
    v_lshlrev_b32 v4, 7, v2
    s_lshl_b32 s65, s30, 14
    s_add_u32 s65, s65, 0x400000
    s_add_u32 s66, s65, 8192
    v_mov_b32 v5, 1
    s_nop 0
    buffer_store_dword v5, v4, s[16:19], s65 offen sc1
    buffer_store_dword v5, v4, s[16:19], s66 offen sc1
    s_mov_b64 exec, 1
    s_lshl_b32 s65, s30, 7
    s_add_u32 s65, s65, 0x408000
    buffer_store_dword v5, v4, s[16:19], s65 offen sc1
    s_branch POLL_OUT
    POLL_PRE:
    v_mov_b32 v4, s67
    s_mov_b32 s65, 0x40000
    POLL:
    buffer_load_dword v5, v4, s[16:19], 0 offen sc1
    s_sub_u32 s65, s65, 1
    s_cbranch_scc1 POLL_OUT
    s_waitcnt vmcnt(0)
    v_readfirstlane_b32 s64, v5
    s_cmp_eq_u32 s64, 1
    s_cbranch_scc0 POLL
    POLL_OUT:
    s_mov_b64 exec, -1
    POLL_DONE:
    s_barrier
    """)
def dma_addr(e,sfx=''):
    e(f"""
    v_lshlrev_b32 v3, 4, v{L}
    s_lshl_b32 s38, s30, 21
    s_lshl_b32 s39, s32, 14
    s_add_u32 s38, s38, s39
    s_add_u32 s38, s38, s26
    s_add_u32 s39, s38, 1024
    s_add_u32 s27, s26, 1024
    s_cmp_eq_u32 s32, 0
    s_cbranch_scc0 P2_REG{sfx}
    v_bfe_u32 v4, v{L}, 2, 1
    s_lshr_b32 s40, s31, 1
    v_lshlrev_b32 v4, 30, v4
    v_add_u32 v3, s40, v3
    v_add_u32 v3, v4, v3
    P2_REG{sfx}:
    """)
def dma_issue(e,ld_flags):
    e(f"""
    s_mov_b32 m0, s26
    s_nop 0
    buffer_load_dwordx4 v3, s[16:19], s38 offen {ld_flags} lds
    s_mov_b32 m0, s27
    s_nop 0
    buffer_load_dwordx4 v3, s[16:19], s39 offen {ld_flags} lds
    """)
def signal(e):
    sig=OPT.get("sig","atomic")
    e("""
    s_waitcnt vmcnt(0)
    s_barrier
    s_cmp_eq_u32 s20, 0
    s_cbranch_scc0 SIG_DONE""")
    if sig=="atomic":
        e("""
        s_lshl_b32 s64, s23, 7
        s_and_b32 s65, s21, 1
        s_lshl_b32 s65, s65, 6
        s_add_u32 s64, s64, s65
        v_mov_b32 v4, s64
        v_mov_b32 v5, 1
        s_mov_b64 exec, 1
        buffer_atomic_add v5, v4, s[60:63], 0 offen sc1
        s_mov_b64 exec, -1""")
    elif sig=="byte":
        e("""
        v_mov_b32 v4, s2
        v_mov_b32 v5, 1
        s_mov_b64 exec, 1
        buffer_store_byte v5, v4, s[60:63], 0 offen sc0 sc1
        s_mov_b64 exec, -1""")
    e("SIG_DONE:")
def poll(e):
    sig=OPT.get("sig","atomic")
    e("""
    s_cmp_eq_u32 s20, 0
    s_cbranch_scc0 POLL_DONE""")
    if sig=="atomic":
        e("""
        v_lshlrev_b32 v4, 6, v2
        s_lshl_b32 s64, s30, 7
        v_add_u32 v4, s64, v4
        s_mov_b32 s65, 0x40000
        s_mov_b64 exec, 3
        POLL:
        buffer_load_dword v5, v4, s[60:63], 0 offen sc1
        s_sub_u32 s65, s65, 1
        s_cbranch_scc1 POLL_OUT
        s_waitcnt vmcnt(0)
        v_cmp_le_u32 vcc, 64, v5
        s_nop 4
        s_cmp_eq_u32 vcc_lo, 3
        s_cbranch_scc0 POLL""")
    else:
        e("""
        v_lshlrev_b32 v4, 4, v2
        s_lshl_b32 s64, s30, 7
        v_add_u32 v4, s64, v4
        s_mov_b32 s65, 0x40000
        s_mov_b32 s66, 0x01010101
        s_mov_b64 exec, 0xff
        POLL:
        buffer_load_dwordx4 v[88:91], v4, s[60:63], 0 offen sc1
        s_sub_u32 s65, s65, 1
        s_cbranch_scc1 POLL_OUT
        s_waitcnt vmcnt(0)
        v_and_b32 v88, v88, v89
        v_and_b32 v90, v90, v91
        v_and_b32 v88, v88, v90
        v_cmp_eq_u32 vcc, s66, v88
        s_nop 4
        s_cmp_eq_u32 vcc_lo, 0xff
        s_cbranch_scc0 POLL""")
    e("""
    POLL_OUT:
    s_mov_b64 exec, -1
    POLL_DONE:
    s_barrier
    """)
def p2_main(e, st_flags=""):
    A=88; D1=96; BF=112; D2=96; X=120; F=96; D3=112; Q=88
    B1=PB1
    e("s_waitcnt vmcnt(0)")
    stamp(e,8)
    for ks in range(2):
        for i in range(2):
            e(f"ds_read_b64_tr_b16 v[{A+4*ks+2*i}:{A+4*ks+2*i+1}], v{vTR2} offset:{ks*1024+i*512}")
    e("s_waitcnt lgkmcnt(2)")
    for ks in range(2):
        if ks==1: e("s_waitcnt lgkmcnt(0)")
        for eh in range(2):
            for cp in range(2):
                d=D1+(eh*2+cp)*4; f=B1+((eh*2+cp)*2+ks)*4
                c="0" if ks==0 else f"v[{d}:{d+3}]"
                e(f"v_mfma_f32_16x16x32_bf16 v[{d}:{d+3}], v[{A+4*ks}:{A+4*ks+3}], v[{f}:{f+3}], {c}")
    e("s_nop 5")
    for eh in range(2):
        re=D1+eh*8; im=re+4
        for p in range(2):
            c=TWC+4*eh+2*p; s_=TWS+4*eh+2*p; t=A+4*p; u=A+4*p+2
            e(f"v_pk_mul_f32 v[{t}:{t+1}], v[{re+2*p}:{re+2*p+1}], v[{c}:{c+1}]")
            e(f"v_pk_mul_f32 v[{u}:{u+1}], v[{im+2*p}:{im+2*p+1}], v[{c}:{c+1}]")
            e(f"v_pk_fma_f32 v[{t}:{t+1}], v[{im+2*p}:{im+2*p+1}], v[{s_}:{s_+1}], v[{t}:{t+1}]")
            e(f"v_pk_fma_f32 v[{u}:{u+1}], v[{re+2*p}:{re+2*p+1}], v[{s_}:{s_+1}], v[{u}:{u+1}] neg_lo:[1,0,0] neg_hi:[1,0,0]")
        for p in range(2):
            t=A+4*p; u=t+2
            e(f"v_cvt_pk_bf16_f32 v{BF+4*eh+p}, v{t}, v{t+1}")
            e(f"v_cvt_pk_bf16_f32 v{BF+4*eh+2+p}, v{u}, v{u+1}")
    e("s_nop 1")
    for eh in range(2):
        for cpp in range(2):
            d=D2+(eh*2+cpp)*4
            e(f"v_mfma_f32_16x16x32_bf16 v[{d}:{d+3}], v[{A2+4*cpp}:{A2+4*cpp+3}], v[{BF+4*eh}:{BF+4*eh+3}], 0")
    e("s_nop 7")
    for r in range(4):
        e(f"v_cvt_pk_bf16_f32 v{X+2*r}, v{D2+r}, v{D2+4+r}")
        e(f"v_cvt_pk_bf16_f32 v{X+2*r+1}, v{D2+8+r}, v{D2+12+r}")
        e(f"ds_write2_b32 v{vXW}, v{X+2*r}, v{X+2*r+1} offset0:{32*r} offset1:{32*r+16}")
    e("s_waitcnt lgkmcnt(0)\ns_barrier")
    stamp(e,9)
    if OPT.get("sig")=="wtag": epoch_update(e)
    e("s_and_b32 s58, s32, 127\ns_cmp_eq_u32 s58, 0\ns_cselect_b32 s58, s44, 0\ns_cmp_lg_u32 s58, 0\ns_cbranch_scc1 P2_END")
    for tau in range(4):
        e(f"ds_read2st64_b32 v[{F+4*tau}:{F+4*tau+1}], v{vXR+tau} offset0:0 offset1:8")
        e(f"ds_read2st64_b32 v[{F+4*tau+2}:{F+4*tau+3}], v{vXR+tau} offset0:16 offset1:24")
    for tau in range(4):
        e(f"s_waitcnt lgkmcnt({6-2*tau})")
        c="0" if tau==0 else f"v[{D3}:{D3+15}]"
        e(f"v_mfma_f32_32x32x16_bf16 v[{D3}:{D3+15}], v[{F+4*tau}:{F+4*tau+3}], v[{B3+4*tau}:{B3+4*tau+3}], {c}")
    e("s_nop 11")
    out_swaps(e,D3,Q)
    e(f"""
    buffer_store_dwordx4 v[{Q}:{Q+3}], v{vO}, s[12:15], s56 offen {st_flags}
    buffer_store_dwordx4 v[{Q+4}:{Q+7}], v{vO}, s[12:15], s57 offen {st_flags}
    P2_END:
    """)
def fused(zst="sc1", zld="sc1", ost=""):
    k1=NAME+"_kernel"
    e=E()
    e("""s_cmp_ge_u32 s2, 258
    s_cbranch_scc1 K_END
    s_load_dwordx2 s[4:5], s[0:1], 0
    s_load_dwordx2 s[6:7], s[0:1], 40
    s_load_dwordx2 s[8:9], s[0:1], 96
    s_load_dwordx2 s[56:57], s[0:1], 80""")
    stamp(e,0)
    e(f"""
    v_lshrrev_b32 v1, 6, v0
    v_and_b32 v{L}, 63, v0
    s_nop 0
    v_readfirstlane_b32 s20, v1
    s_lshl_b32 s26, s20, 11
    s_cmp_ge_u32 s2, 256
    s_cbranch_scc1 SPECIAL_WG
    """)
    last=OPT.get("sig")=="last"
    shard=OPT.get("sig")=="shard"
    tag=OPT.get("sig") in ("tag","wtag")
    wtag=OPT.get("sig")=="wtag"
    ZS=0x410000 if (last or shard or tag) else 0x400000
    p1_issue(e)
    stamp(e,1)
    srd(e,16,8,9,ZS)
    if not wtag: srd(e,60,58,59,256)
    reset_line(e)
    p1_consts(e)
    if OPT.get("share"): share_compute(e)
    else: p2_consts_a(e)
    if OPT.get('st5'): stamp(e,5)
    p1_main(e,zst)
    stamp(e,4)
    srd(e,12,56,57,0x400000)
    p2_setup(e,False)
    b1_win(e,"D")
    if OPT.get("share") and OPT.get("shpos","D")=="D":
        share_read_interleaved(e,p2_consts_b,int(OPT["share"]))
    elif not OPT.get("cbafter"):
        p2_consts_b(e)
    dma_addr(e)
    if not OPT.get('st5'): stamp(e,5)
    if last: signal_last(e)
    elif shard: signal_shard(e)
    elif wtag: signal_wtag(e)
    elif tag: signal_tag(e)
    else:
        signal(e)
        e("POLL_START:")
        stamp(e,6)
        poll(e)
    stamp(e,7)
    dma_issue(e,zld)
    b1_win(e,"Z")
    p2_main(e,ost)
    gen.stamp_out(e,0,0,0)
    e("K_END:\ns_endpgm")
    e("SPECIAL_WG:\ns_waitcnt lgkmcnt(0)")
    srd(e,16,8,9,ZS)
    if not wtag: srd(e,60,58,59,256)
    reset_line(e,"B")
    p2_consts_a(e)
    srd(e,12,56,57,0x400000)
    p2_setup(e,True)
    b1_win(e,"D")
    p2_consts_b(e)
    dma_addr(e,"B")
    e("s_branch SIGNAL" if last else ("s_branch POLL_SPECIAL" if (shard or tag) else "s_branch POLL_START"))
    s=HEADER+f"; @launch grid=(258,1,1) block=(512,1,1) lds={47104 if OPT.get('share') else 32768}\n"
    s+='.amdgcn_target "amdgcn-amd-amdhsa--gfx950"\n.text\n'
    s+=func(k1,e.txt())
    s+='.section .rodata,"a"\n.p2align 6\n'+kd(k1,128,102)
    return s
if __name__=="__main__":
    mode=sys.argv[1]; out=sys.argv[2]
    args=[a for a in sys.argv[3:] if not a.startswith("-")]
    for a in sys.argv[3:]:
        if a.startswith("-"):
            k,_,v=a[1:].partition("="); OPT[k]=v or "1"
    if mode.endswith("_diag"):
        DIAG=True; gen.DIAG=True
    gen.FUSED=True
    open(out,"w").write(fused(*args))
```

```python
import sys
import gen
from gen import E, vr, srd, NAME, HEADER, func, kd, out_swaps
OPT={}
DIAG=False
def stamp(e,k):
    if DIAG: e(f"s_memrealtime s[70:71]\ns_waitcnt lgkmcnt(0)\ns_mov_b32 s{72+k}, s70")
L=2
A1=104; B2=108; vTR=124; vEW=125; vER=126; vZ=127; H=80; M=81; T=64-26
DAT=116; Da=64; Db=88
def t(k): return f"v{k+T}"
def p1_issue(e):
    e(f"""
    s_and_b32 s21, s2, 7
    s_bfe_u32 s22, s2, 0x40003
    s_bfe_u32 s23, s2, 0x10007
    v_lshrrev_b32 v3, 2, v{L}
    v_lshlrev_b32 v3, 17, v3
    v_and_b32 v4, 3, v{L}
    v_lshl_or_b32 v3, v4, 4, v3
    s_lshl_b32 s24, s20, 14
    s_lshl_b32 s25, s21, 10
    s_add_u32 s24, s24, s25
    s_lshl_b32 s25, s22, 6
    s_add_u32 s24, s24, s25
    s_add_u32 s25, s24, 8192
    s_add_u32 s27, s26, 1024
    s_mov_b32 s14, 0x200000
    s_mov_b32 s15, 0x20000
    s_mov_b32 m0, s26
    s_cmp_eq_u32 s23, 0
    s_waitcnt lgkmcnt(0)
    s_cselect_b32 s12, s4, s6
    s_cselect_b32 s13, s5, s7
    buffer_load_dwordx4 v3, s[12:15], s24 offen {OPT.get("xf","").replace("+"," ")} lds
    s_mov_b32 m0, s27
    s_nop 0
    buffer_load_dwordx4 v3, s[12:15], s25 offen {OPT.get("xf","").replace("+"," ")} lds
    """)
def p1_consts(e):
    e(f"""
    v_lshrrev_b32 v{H}, 5, v{L}
    v_and_b32 v{M}, 31, v{L}
    v_bfe_u32 v4, v{M}, 1, 3
    v_and_b32 v5, 1, v{M}
    v_and_b32 v6, 15, v{M}
    v_cmp_eq_u32 vcc, 1, v6
    v_cvt_f32_u32 v7, v4
    v_cvt_f32_u32 {t(26)}, v5
    v_mul_f32 v7, 0x3d800000, v7
    v_mul_f32 {t(26)}, 0x3e800000, {t(26)}
    v_cndmask_b32 v7, v7, 0.5, vcc
    v_cndmask_b32 {t(26)}, {t(26)}, 0, vcc
    v_lshlrev_b32 {t(27)}, 3, v{H}
    v_cvt_f32_u32 {t(27)}, {t(27)}
    v_fma_f32 {t(26)}, {t(27)}, v7, {t(26)}
    """)
    if OPT.get("cheb"):
        e(f"""
        v_cos_f32 {t(28)}, {t(26)}
        v_add_f32 {t(27)}, {t(26)}, v7
        v_cos_f32 {t(36)}, v7
        v_cos_f32 {t(29)}, {t(27)}
        s_nop 0
        v_add_f32 {t(36)}, {t(36)}, {t(36)}
        """)
        for jj in range(2,8):
            e(f"v_fma_f32 {t(28+jj)}, {t(36)}, {t(27+jj)}, -{t(26+jj)}")
            if jj%2==1: e(f"v_cvt_pk_bf16_f32 v{A1+jj//2-1}, {t(28+jj-3)}, {t(29+jj-3)}")
        e(f"v_cvt_pk_bf16_f32 v{A1+3}, {t(34)}, {t(35)}")
    else:
        for jj in range(8):
            if jj>0: e(f"v_add_f32 {t(26)}, {t(26)}, v7")
            e(f"v_cos_f32 {t(28+jj)}, {t(26)}")
        e("s_nop 0")
        for q in range(4): e(f"v_cvt_pk_bf16_f32 v{A1+q}, {t(28+2*q)}, {t(29+2*q)}")
    e(f"""
    v_lshrrev_b32 v4, 4, v{M}
    v_and_b32 v5, 7, v{M}
    v_lshl_or_b32 v4, v4, 3, v5
    v_bfe_u32 v5, v{M}, 3, 1
    v_cvt_f32_u32 v6, v5
    v_mul_f32 v6, 0x3e800000, v6
    s_cmp_eq_u32 s20, 0
    s_cbranch_scc1 P1_SPECIAL
    v_lshlrev_b32 v7, 4, v4
    v_add_u32 v7, s20, v7
    v_mov_b32 {t(26)}, v6
    v_add_f32 {t(27)}, 0xbe800000, v6
    v_mov_b32 {t(28)}, -1
    s_branch P1_COMMON
    P1_SPECIAL:
    v_lshlrev_b32 v7, 4, v4
    v_cmp_le_u32 vcc, 8, v4
    v_subrev_u32 {t(29)}, 120, v7
    v_mov_b32 {t(28)}, 0xffff
    v_mov_b32 {t(30)}, 0xffff0000
    v_cndmask_b32 v7, v7, {t(29)}, vcc
    v_cndmask_b32 {t(28)}, {t(28)}, {t(30)}, vcc
    v_cmp_eq_u32 vcc, 8, v{M}
    v_mov_b32 {t(29)}, 0x80
    v_mov_b32 {t(26)}, v6
    v_cndmask_b32 v7, v7, {t(29)}, vcc
    v_cndmask_b32 {t(26)}, {t(26)}, 0, vcc
    s_nop 0
    v_mov_b32 {t(27)}, {t(26)}
    P1_COMMON:
    v_cvt_f32_u32 v7, v7
    v_lshlrev_b32 {t(29)}, 2, v{H}
    v_cvt_f32_u32 {t(29)}, {t(29)}
    v_mul_f32 v7, 0x3b800000, v7
    v_fma_f32 {t(26)}, {t(29)}, v7, {t(26)}
    v_fma_f32 {t(27)}, {t(29)}, v7, {t(27)}
    """)
    if not OPT.get("cheb"): e(f"v_mul_f32 {t(29)}, 4.0, v7")
    if OPT.get("cheb"):
        P=[72,74,76]; m=78
        def cv(n,dst):
            p=P[n%3]
            e(f"v_cvt_pk_bf16_f32 v{dst}, v{p}, v{p+1}")
        e(f"""
        v_cos_f32 v72, {t(26)}
        v_cos_f32 v73, {t(27)}
        v_add_f32 {t(26)}, {t(26)}, v7
        v_add_f32 {t(27)}, {t(27)}, v7
        v_cos_f32 v78, v7
        v_cos_f32 v74, {t(26)}
        v_cos_f32 v75, {t(27)}
        """)
        cv(0,B2+0)
        e("v_add_f32 v78, v78, v78")
        cv(1,B2+1)
        for n in range(2,12):
            d=P[n%3]; a_=P[(n-1)%3]; b_=P[(n-2)%3]
            e(f"v_pk_fma_f32 v[{d}:{d+1}], v[{a_}:{a_+1}], v[{m}:{m+1}], v[{b_}:{b_+1}] op_sel_hi:[1,0,1] neg_lo:[0,0,1] neg_hi:[0,0,1]")
            if n<4: cv(n,B2+n)
            if n>=8: cv(n,B2+n-4)
        e("s_cmp_eq_u32 s20, 0\ns_cbranch_scc0 P1_NOMASK")
        for q in range(8): e(f"v_and_b32 v{B2+q}, v{B2+q}, {t(28)}")
        e("P1_NOMASK:")
    else:
        for ks in range(2):
            for x in range(4):
                e(f"v_cos_f32 {t(30)}, {t(26)}\nv_cos_f32 {t(31)}, {t(27)}")
                if x<3: e(f"v_add_f32 {t(26)}, {t(26)}, v7\nv_add_f32 {t(27)}, {t(27)}, v7")
                elif ks==0: e(f"v_add_f32 {t(26)}, {t(26)}, v7\nv_add_f32 {t(27)}, {t(27)}, v7\nv_add_f32 {t(26)}, {t(26)}, {t(29)}\nv_add_f32 {t(27)}, {t(27)}, {t(29)}")
                else: e("s_nop 0")
                e(f"v_cvt_pk_bf16_f32 v{B2+4*ks+x}, {t(30)}, {t(31)}")
        for q in range(8): e(f"v_and_b32 v{B2+q}, v{B2+q}, {t(28)}")
    e(f"""
    v_bfe_u32 v4, v{L}, 2, 2
    v_lshl_or_b32 v4, v{H}, 3, v4
    v_lshlrev_b32 v4, 6, v4
    v_bfe_u32 v5, v{L}, 4, 1
    v_lshl_or_b32 v4, v5, 5, v4
    v_and_b32 v5, 3, v{L}
    v_lshl_or_b32 v4, v5, 3, v4
    v_add_u32 v{vTR}, s26, v4
    s_lshl_b32 s28, s20, 8
    s_add_u32 s28, s28, 16384
    v_lshlrev_b32 v4, 3, v{M}
    v_lshl_or_b32 v5, v{H}, 12, v4
    v_add_u32 v{vEW}, s28, v5
    s_add_u32 s28, s26, 16384
    v_lshl_or_b32 v5, v{H}, 9, v4
    v_add_u32 v{vER}, s28, v5
    v_and_b32 v4, 7, v{L}
    v_lshlrev_b32 v4, 14, v4
    v_bfe_u32 v5, v{L}, 3, 1
    v_lshl_or_b32 v4, v5, 6, v4
    v_bfe_u32 v5, v{L}, 4, 1
    v_lshl_or_b32 v4, v5, 5, v4
    v_lshl_or_b32 v{vZ}, v{H}, 4, v4
    s_lshl_b32 s28, s23, 21
    s_lshl_b32 s29, s20, 18
    s_add_u32 s28, s28, s29
    s_lshl_b32 s29, s21, 11
    s_add_u32 s28, s28, s29
    s_lshl_b32 s29, s22, 7
    s_add_u32 s28, s28, s29
    s_add_u32 s29, s28, 0x20000
    """)
def p1_main(e, st_flags):
    B0=DAT; B1=DAT+4; X=DAT; F=DAT
    NX=1 if OPT.get("sig") in ("tag","wtag") else 0
    if DIAG: e("s_waitcnt vmcnt(0)")
    stamp(e,2)
    e(f"""
    s_waitcnt vmcnt({1+NX})
    ds_read_b64_tr_b16 v[{B0}:{B0+1}], v{vTR} offset:0
    ds_read_b64_tr_b16 v[{B0+2}:{B0+3}], v{vTR} offset:256
    s_waitcnt vmcnt({NX})
    ds_read_b64_tr_b16 v[{B1}:{B1+1}], v{vTR} offset:1024
    ds_read_b64_tr_b16 v[{B1+2}:{B1+3}], v{vTR} offset:1280
    s_waitcnt lgkmcnt(2)
    v_mfma_f32_32x32x16_bf16 v[{Da}:{Da+15}], v[{A1}:{A1+3}], v[{B0}:{B0+3}], 0
    s_waitcnt lgkmcnt(0)
    v_mfma_f32_32x32x16_bf16 v[{Db}:{Db+15}], v[{A1}:{A1+3}], v[{B1}:{B1+3}], 0
    s_nop 10
    """)
    offs=[0,2048,8192,10240]
    for mu in range(4):
        e(f"v_cvt_pk_bf16_f32 v{X+2*mu}, v{Da+2*mu}, v{Da+2*mu+1}")
        e(f"v_cvt_pk_bf16_f32 v{X+2*mu+1}, v{Db+2*mu}, v{Db+2*mu+1}")
        e(f"ds_write_b64 v{vEW}, v[{X+2*mu}:{X+2*mu+1}] offset:{offs[mu]}")
    e("s_waitcnt vmcnt(0) lgkmcnt(0)\ns_barrier")
    stamp(e,3)
    for ks in range(2):
        for sg in range(2):
            e(f"ds_read_b64 v[{F+4*ks+2*sg}:{F+4*ks+2*sg+1}], v{vER} offset:{(4*ks+sg)*256}")
    e(f"""
    s_waitcnt lgkmcnt(2)
    v_mfma_f32_32x32x16_bf16 v[{Da}:{Da+15}], v[{F}:{F+3}], v[{B2}:{B2+3}], 0
    s_waitcnt lgkmcnt(0)
    v_mfma_f32_32x32x16_bf16 v[{Da}:{Da+15}], v[{F+4}:{F+7}], v[{B2+4}:{B2+7}], v[{Da}:{Da+15}]
    s_nop 10
    """)
    out_swaps(e,Da,X)
    e(f"""
    buffer_store_dwordx4 v[{X}:{X+3}], v{vZ}, s[16:19], s28 offen {st_flags}
    buffer_store_dwordx4 v[{X+4}:{X+7}], v{vZ}, s[16:19], s29 offen {st_flags}
    """)
PB1=8; TWC=40; TWS=48; A2=56; B3=64; vTR2=80; vXW=81; vXR=82; vO=86
def b1_init(e):
    e(f"""
    v_and_b32 v99, 15, v{L}
    v_lshrrev_b32 v100, 4, v{L}
    v_cvt_f32_u32 v99, v99
    v_cvt_f32_u32 v100, v100
    v_mul_f32 v96, 0x3d000000, v99
    v_add_f32 v97, v100, v100
    v_mul_f32 v98, 0x41000000, v96
    v_mul_f32 v97, v97, v96
    """)
def b1_block(e,k):
    ks=k>>1; i=k&1
    fr=lambda eh,cp: PB1+((eh*2+cp)*2+ks)*4
    e(f"""
    v_add_f32 v99, v97, v96
    v_cos_f32 v100, v97
    v_cos_f32 v101, v99
    v_sin_f32 v102, v97
    v_sin_f32 v103, v99
    v_add_f32 v97, v97, v98
    v_cvt_pk_bf16_f32 v{fr(0,0)+2*i}, v100, v101
    v_cvt_pk_bf16_f32 v{fr(0,1)+2*i+1}, v100, v101
    v_cvt_pk_bf16_f32 v{fr(1,0)+2*i}, v100, -v101
    v_cvt_pk_bf16_f32 v{fr(1,1)+2*i+1}, v100, -v101
    v_cvt_pk_bf16_f32 v{fr(0,0)+2*i+1}, v102, v103
    v_cvt_pk_bf16_f32 v{fr(0,1)+2*i}, -v102, -v103
    v_cvt_pk_bf16_f32 v{fr(1,0)+2*i+1}, v102, -v103
    v_cvt_pk_bf16_f32 v{fr(1,1)+2*i}, -v102, v103
    """)
def b1_win(e,win,special=False):
    pl=OPT.get("b1","XXXX")
    order="XDSZ"
    first=min(order.index(c) for c in pl)
    if order[first]==win: b1_init(e)
    for k,c in enumerate(pl):
        if c==win: b1_block(e,k)
def p2_consts_a(e):
    N=4; G=5
    e(f"""
    v_and_b32 v{N}, 15, v{L}
    v_lshrrev_b32 v{G}, 4, v{L}
    v_cvt_f32_u32 v6, v{N}
    v_cvt_f32_u32 v7, v{G}
    v_mul_f32 v87, 0x3b000000, v6
    v_mul_f32 v89, 4.0, v7
    """)
    for eh in range(2):
        if eh==1: e("v_add_f32 v87, 0x3d000000, v87")
        e("v_mul_f32 v88, v89, v87")
        for r in range(4):
            e(f"v_cos_f32 v{TWC+4*eh+r}, v88\nv_sin_f32 v{TWS+4*eh+r}, v88")
            if r<3: e("v_add_f32 v88, v88, v87")
    e(f"""
    v_mul_f32 v87, 0x3d800000, v6
    v_mul_f32 v88, v89, v87
    """)
    for r in range(4):
        e(f"v_cos_f32 v{90+r}, v88\nv_sin_f32 v{94+r}, v88")
        if r<3: e("v_add_f32 v88, v88, v87")
    e(f"""
    s_nop 0
    v_cvt_pk_bf16_f32 v{A2+0}, v90, v91
    v_cvt_pk_bf16_f32 v{A2+1}, v92, v93
    v_cvt_pk_bf16_f32 v{A2+2}, v94, v95
    v_cvt_pk_bf16_f32 v{A2+3}, v96, v97
    v_cvt_pk_bf16_f32 v{A2+4}, -v94, -v95
    v_cvt_pk_bf16_f32 v{A2+5}, -v96, -v97
    v_cvt_pk_bf16_f32 v{A2+6}, v90, v91
    v_cvt_pk_bf16_f32 v{A2+7}, v92, v93
    """)
    b1_win(e,"X")
CB=32768
def share_compute(e):
    e(f"""
    v_lshlrev_b32 v0, 4, v{L}
    v_and_b32 v99, 15, v{L}
    v_lshrrev_b32 v100, 4, v{L}
    v_add_u32 v0, {CB}, v0
    v_cvt_f32_u32 v99, v99
    s_cmp_ge_u32 s20, 4
    s_cbranch_scc1 SH_W4
    s_lshl_b32 s40, s20, 3
    s_lshr_b32 s41, s20, 1
    v_lshl_add_u32 v100, v100, 1, s40
    v_mul_f32 v96, 0x3d000000, v99
    v_cvt_f32_u32 v100, v100
    s_lshl_b32 s41, s41, 10
    s_and_b32 s42, s20, 1
    v_mul_f32 v97, v100, v96
    s_lshl_b32 s42, s42, 3
    s_add_u32 s41, s41, s42
    v_add_f32 v99, v97, v96
    v_cos_f32 v100, v97
    v_cos_f32 v101, v99
    v_sin_f32 v102, v97
    v_sin_f32 v103, v99
    v_add_u32 v98, s41, v0
    v_cvt_pk_bf16_f32 v88, v100, v101
    v_cvt_pk_bf16_f32 v91, v100, v101
    v_cvt_pk_bf16_f32 v92, v100, -v101
    v_cvt_pk_bf16_f32 v95, v100, -v101
    v_cvt_pk_bf16_f32 v89, v102, v103
    v_cvt_pk_bf16_f32 v90, -v102, -v103
    v_cvt_pk_bf16_f32 v93, v102, -v103
    v_cvt_pk_bf16_f32 v94, -v102, v103
    ds_write_b64 v98, v[88:89] offset:0
    ds_write_b64 v98, v[90:91] offset:2048
    ds_write_b64 v98, v[92:93] offset:4096
    ds_write_b64 v98, v[94:95] offset:6144
    s_branch SH_DONE
    SH_W4:
    v_cvt_f32_u32 v100, v100
    s_cmp_ge_u32 s20, 6
    v_mul_f32 v89, 4.0, v100
    s_cbranch_scc1 SH_W6
    s_and_b32 s40, s20, 1
    s_mul_i32 s41, s40, 0x3d000000
    s_lshl_b32 s40, s40, 10
    v_mul_f32 v87, 0x3b000000, v99
    v_add_u32 v98, s40, v0
    v_add_f32 v87, s41, v87
    v_mul_f32 v88, v89, v87
    """)
    for r in range(4):
        e(f"v_cos_f32 v{92+r}, v88\nv_sin_f32 v{100+r}, v88")
        if r<3: e("v_add_f32 v88, v88, v87")
    e(f"""
    s_nop 0
    ds_write_b128 v98, v[92:95] offset:{8*1024}
    ds_write_b128 v98, v[100:103] offset:{10*1024}
    s_branch SH_DONE
    SH_W6:
    s_cmp_eq_u32 s20, 6
    s_cbranch_scc0 SH_DONE
    v_mul_f32 v87, 0x3d800000, v99
    v_mul_f32 v88, v89, v87
    """)
    for r in range(4):
        e(f"v_cos_f32 v{90+r}, v88\nv_sin_f32 v{94+r}, v88")
        if r<3: e("v_add_f32 v88, v88, v87")
    e(f"""
    s_nop 0
    v_cvt_pk_bf16_f32 v100, v90, v91
    v_cvt_pk_bf16_f32 v101, v92, v93
    v_cvt_pk_bf16_f32 v102, v94, v95
    v_cvt_pk_bf16_f32 v103, v96, v97
    v_cvt_pk_bf16_f32 v88, -v94, -v95
    v_cvt_pk_bf16_f32 v89, -v96, -v97
    v_cvt_pk_bf16_f32 v90, v90, v91
    v_cvt_pk_bf16_f32 v91, v92, v93
    ds_write_b128 v0, v[100:103] offset:{12*1024}
    ds_write_b128 v0, v[88:91] offset:{13*1024}
    SH_DONE:
    """)
def share_read_interleaved(e, gen_fn, every):
    t=E(); gen_fn(t)
    q=0; n=0
    for line in t.l:
        e.l.append(line)
        ls=line.strip()
        if ls and not ls.endswith(":") and ls.startswith("v_"):
            n+=1
            if n%every==0 and q<14:
                e(f"ds_read_b128 v[{8+4*q}:{11+4*q}], v0 offset:{q*1024}"); q+=1
    while q<14:
        e(f"ds_read_b128 v[{8+4*q}:{11+4*q}], v0 offset:{q*1024}"); q+=1
def p2_consts_b(e):
    N=4; G=5
    e(f"""
    v_and_b32 v{N}, 15, v{L}
    v_lshrrev_b32 v{G}, 4, v{L}
    v_lshlrev_b32 v6, 3, v{L}
    v_add_u32 v{vTR2}, s26, v6
    s_add_u32 s40, s26, 16384
    v_lshlrev_b32 v6, 2, v{N}
    v_lshl_or_b32 v6, v{G}, 9, v6
    v_add_u32 v{vXW}, s40, v6
    v_and_b32 v6, 31, v{L}
    v_lshrrev_b32 v7, 5, v{L}
    s_and_b32 s43, s20, 3
    s_lshr_b32 s44, s20, 2
    s_lshl_b32 s45, s43, 7
    v_add_u32 v87, s45, v6
    v_lshlrev_b32 v88, 13, v7
    v_add_u32 v88, 16384, v88
    s_cmp_eq_u32 s44, 0
    s_cselect_b32 s46, 0, -1
    s_cselect_b32 s47, 0, 1
    """)
    for tau in range(4):
        e(f"""
        v_xor_b32 v89, s46, v87
        v_add_u32 v89, s47, v89
        v_and_b32 v89, 0x1ff, v89
        v_lshl_add_u32 v{vXR+tau}, v89, 2, v88
        """)
        if tau<3: e("v_add_u32 v87, 32, v87")
    e(f"""
    v_and_b32 v89, 7, v6
    v_lshlrev_b32 v89, 8, v89
    v_add_u32 v89, s33, v89
    v_cvt_f32_u32 v90, v89
    v_mul_f32 v90, 0x3a000000, v90
    v_lshlrev_b32 v91, 2, v7
    v_cvt_f32_u32 v91, v91
    v_mul_f32 v91, v91, v90
    v_lshrrev_b32 v92, 3, v6
    v_cmp_eq_u32 s[48:49], 0, v92
    v_cmp_eq_u32 s[50:51], 1, v92
    v_cmp_eq_u32 s[52:53], 2, v92
    v_cmp_eq_u32 s[54:55], 3, v92
    """)
    for x in range(4):
        e(f"v_cos_f32 v93, v91\nv_sin_f32 v94, v91")
        e("v_add_f32 v91, v91, v90" if x<3 else "s_nop 0")
        e(f"v_cvt_pk_bf16_f32 v95, v93, v94")
        for tau in range(4):
            e(f"v_cndmask_b32 v{B3+4*tau+x}, 0, v95, s[{48+2*tau}:{49+2*tau}]")
    e(f"""
    v_xor_b32 v89, s46, v89
    v_add_u32 v89, s47, v89
    v_and_b32 v89, 0x7ff, v89
    v_lshlrev_b32 v89, 11, v89
    v_bfe_u32 v90, v{L}, 3, 1
    v_lshl_or_b32 v89, v90, 6, v89
    v_bfe_u32 v90, v{L}, 4, 1
    v_lshl_or_b32 v89, v90, 5, v89
    v_lshl_or_b32 v{vO}, v7, 4, v89
    s_lshl_b32 s56, s30, 10
    s_lshl_b32 s57, s43, 8
    s_add_u32 s56, s56, s57
    s_add_u32 s57, s56, 128
    """)
def p2_addr_b(e):
    N=4; G=5
    e(f"""
    v_and_b32 v{N}, 15, v{L}
    v_lshrrev_b32 v{G}, 4, v{L}
    v_lshlrev_b32 v6, 3, v{L}
    v_add_u32 v{vTR2}, s26, v6
    s_add_u32 s40, s26, 16384
    v_lshlrev_b32 v6, 2, v{N}
    v_lshl_or_b32 v6, v{G}, 9, v6
    v_add_u32 v{vXW}, s40, v6
    v_and_b32 v6, 31, v{L}
    v_lshrrev_b32 v7, 5, v{L}
    s_and_b32 s43, s20, 3
    s_lshr_b32 s44, s20, 2
    s_lshl_b32 s45, s43, 7
    v_add_u32 v87, s45, v6
    v_lshlrev_b32 v88, 13, v7
    v_add_u32 v88, 16384, v88
    s_cmp_eq_u32 s44, 0
    s_cselect_b32 s46, 0, -1
    s_cselect_b32 s47, 0, 1
    """)
    for tau in range(4):
        e(f"""
        v_xor_b32 v89, s46, v87
        v_add_u32 v89, s47, v89
        v_and_b32 v89, 0x1ff, v89
        v_lshl_add_u32 v{vXR+tau}, v89, 2, v88
        """)
        if tau<3: e("v_add_u32 v87, 32, v87")
    e(f"""
    v_and_b32 v89, 7, v6
    v_lshlrev_b32 v89, 8, v89
    v_add_u32 v89, s33, v89
    v_xor_b32 v89, s46, v89
    v_add_u32 v89, s47, v89
    v_and_b32 v89, 0x7ff, v89
    v_lshlrev_b32 v89, 11, v89
    v_bfe_u32 v90, v{L}, 3, 1
    v_lshl_or_b32 v89, v90, 6, v89
    v_bfe_u32 v90, v{L}, 4, 1
    v_lshl_or_b32 v89, v90, 5, v89
    v_lshl_or_b32 v{vO}, v7, 4, v89
    s_lshl_b32 s56, s30, 10
    s_lshl_b32 s57, s43, 8
    s_add_u32 s56, s56, s57
    s_add_u32 s57, s56, 128
    """)
def p2_b3(e):
    e(f"""
    v_and_b32 v87, 31, v{L}
    v_lshrrev_b32 v88, 5, v{L}
    v_and_b32 v89, 7, v87
    v_lshlrev_b32 v89, 8, v89
    v_add_u32 v89, s33, v89
    v_cvt_f32_u32 v90, v89
    v_mul_f32 v90, 0x3a000000, v90
    v_lshlrev_b32 v91, 2, v88
    v_cvt_f32_u32 v91, v91
    v_lshrrev_b32 v92, 3, v87
    v_mul_f32 v91, v91, v90
    v_cmp_eq_u32 s[48:49], 0, v92
    v_cmp_eq_u32 s[50:51], 1, v92
    v_cmp_eq_u32 s[52:53], 2, v92
    v_cmp_eq_u32 s[54:55], 3, v92
    """)
    for x in range(4):
        e(f"v_cos_f32 v93, v91\nv_sin_f32 v94, v91")
        e("v_add_f32 v91, v91, v90" if x<3 else "s_nop 0")
        e(f"v_cvt_pk_bf16_f32 v95, v93, v94")
        for tau in range(4):
            e(f"v_cndmask_b32 v{B3+4*tau+x}, 0, v95, s[{48+2*tau}:{49+2*tau}]")
def p2_setup(e, special):
    if special: e("s_and_b32 s30, s2, 1\ns_movk_i32 s31, 128")
    elif OPT.get("sig")=="wtag": e("s_lshr_b32 s30, s2, 7\ns_lshl_b32 s31, s21, 4\ns_or_b32 s31, s31, s22")
    else: e("s_lshr_b32 s30, s2, 7\ns_and_b32 s31, s2, 127")
    e("""
    s_and_b32 s32, s31, 127
    s_lshr_b32 s34, s32, 4
    s_and_b32 s35, s32, 15
    s_lshl_b32 s36, s35, 4
    s_add_u32 s33, s36, s34
    s_sub_u32 s37, s36, 120
    s_cmp_ge_u32 s35, 8
    s_cselect_b32 s37, s37, s36
    s_cmp_eq_u32 s34, 0
    s_cselect_b32 s33, s37, s33
    s_cmp_eq_u32 s31, 128
    s_cselect_b32 s33, 128, s33
    """)
def reset_shard(e):
    S=int(OPT.get("S","8")); lg=S.bit_length()-1
    e(f"""
    s_and_b32 s91, s2, {S-1}
    s_cmp_eq_u32 s20, 0
    s_cbranch_scc0 RESET_DONE
    s_andn2_b32 s67, s2, {S-1}
    s_add_u32 s92, s23, 256
    v_add_u32 v6, s67, v{L}
    v_mov_b32 v7, s92
    v_cmp_eq_u32 vcc, {S}, v{L}
    s_lshl_b32 s92, s91, 2
    s_add_u32 s92, s92, 0x400000
    v_cndmask_b32 v6, v6, v7, vcc
    v_lshlrev_b32 v6, 7, v6
    v_mov_b32 v7, 0
    s_mov_b64 exec, {hex((1<<(S+1))-1)}
    buffer_store_dword v7, v6, s[16:19], s92 offen sc1
    s_mov_b64 exec, -1
    RESET_DONE:
    """)
def signal_shard(e):
    S=int(OPT.get("S","8")); lg=S.bit_length()-1
    sp=int(OPT.get("sp",str(128//S)))
    e(f"""
    s_waitcnt vmcnt(0)
    s_barrier
    s_cmp_eq_u32 s20, 0
    s_cbranch_scc0 POLL_DONE
    s_lshl_b32 s64, s30, 7
    s_mul_i32 s65, s91, {sp}
    s_add_u32 s64, s64, s65
    v_mov_b32 v4, s64
    v_mov_b32 v5, 1
    s_mov_b64 exec, 1
    buffer_atomic_add v5, v4, s[60:63], 0 offen sc0 sc1
    s_waitcnt vmcnt(0)""")
    stamp(e,6)
    e(f"""
    v_readfirstlane_b32 s64, v5
    s_cmp_eq_u32 s64, {128//S-1}
    s_cbranch_scc0 POLL_PRE
    s_mov_b64 exec, -1
    v_lshlrev_b32 v4, 7, v2
    s_lshl_b32 s65, s30, 14
    s_lshl_b32 s66, s91, 2
    s_add_u32 s65, s65, s66
    s_add_u32 s65, s65, 0x400000
    s_add_u32 s64, s65, 8192
    v_mov_b32 v5, 1
    s_nop 0
    buffer_store_dword v5, v4, s[16:19], s65 offen sc1
    buffer_store_dword v5, v4, s[16:19], s64 offen sc1
    s_mov_b64 exec, 1
    s_lshl_b32 s65, s30, 7
    s_add_u32 s65, s65, s66
    s_add_u32 s65, s65, 0x408000
    buffer_store_dword v5, v4, s[16:19], s65 offen sc1
    s_branch POLL_PRE
    POLL_SPECIAL:
    s_cmp_eq_u32 s20, 0
    s_cbranch_scc0 POLL_DONE
    POLL_PRE:
    s_mov_b64 exec, -1
    s_lshl_b32 s67, s2, 7
    s_add_u32 s67, s67, 0x400000
    v_lshlrev_b32 v4, 2, v2
    s_mov_b32 s65, 0x40000
    s_mov_b64 exec, {hex((1<<S)-1)}
    POLL:
    buffer_load_dword v5, v4, s[16:19], s67 offen sc1
    s_sub_u32 s65, s65, 1
    s_cbranch_scc1 POLL_OUT
    s_waitcnt vmcnt(0)
    v_cmp_eq_u32 vcc, 1, v5
    s_nop 4
    s_cmp_eq_u32 vcc_lo, {hex((1<<S)-1)}
    s_cbranch_scc0 POLL
    POLL_OUT:
    s_mov_b64 exec, -1
    POLL_DONE:
    s_barrier
    """)
def tag_load(e,special):
    br="s2" if special else "s23"
    if special: e("s_and_b32 s93, s2, 1\ns_lshl_b32 s93, s93, 8")
    else: e("s_lshl_b32 s93, s23, 8")
    e("""
    s_add_u32 s93, s93, %d
    buffer_load_dword v1, off, s[16:19], s93 sc1
    """%(EOFF() if OPT.get("sig")=="wtag" else 0x408000))
def tag_addr(e):
    R=int(OPT.get("R","8"))
    e(f"""
    s_lshl_b32 s66, s30, 14
    s_add_u32 s66, s66, 0x400000
    s_and_b32 s64, s2, {R-1}
    s_lshl_b32 s64, s64, 11
    s_add_u32 s67, s66, s64
    v_lshrrev_b32 v6, 2, v{L}
    v_and_b32 v5, 3, v{L}
    v_lshlrev_b32 v6, 8, v6
    v_lshl_or_b32 v6, v5, 4, v6
    """)
def signal_tag(e):
    R=int(OPT.get("R","8"))
    tag_addr(e)
    e(f"""
    s_and_b32 s64, s2, 7
    s_lshl_b32 s65, s64, 8
    s_add_u32 s65, s65, s66
    s_bfe_u32 s64, s2, 0x40003
    s_lshl_b32 s64, s64, 2
    s_add_u32 s92, s65, s64
    v_lshlrev_b32 v4, 11, v{L}
    s_mov_b32 s65, 0x40000
    s_waitcnt vmcnt(0)
    v_add_u32 v1, 0x9e3779b9, v1
    s_barrier
    s_cmp_eq_u32 s20, 0
    s_cbranch_scc0 POLL_DONE
    s_mov_b64 exec, {hex((1<<R)-1)}
    buffer_atomic_swap v1, v4, s[16:19], s92 offen sc1
    s_branch POLL_PRE
    POLL_SPECIAL:""")
    tag_addr(e)
    e(f"""
    s_mov_b32 s65, 0x40000
    s_waitcnt vmcnt(0)
    v_add_u32 v1, 0x9e3779b9, v1
    s_cmp_eq_u32 s20, 0
    s_cbranch_scc0 POLL_DONE
    POLL_PRE:""")
    stamp(e,6)
    e(f"""
    s_mov_b32 exec_lo, -1
    s_mov_b32 exec_hi, 0
    POLL:
    buffer_load_dwordx4 v[88:91], v6, s[16:19], s67 offen sc1
    s_sub_u32 s65, s65, 1
    s_cbranch_scc1 POLL_OUT
    s_waitcnt vmcnt(0)
    v_xor_b32 v88, v88, v1
    v_xor_b32 v89, v89, v1
    v_xor_b32 v90, v90, v1
    v_xor_b32 v91, v91, v1
    v_or3_b32 v88, v88, v89, v90
    v_or_b32 v88, v88, v91
    v_cmp_ne_u32 vcc, 0, v88
    s_cbranch_vccnz POLL
    POLL_OUT:
    s_cmp_lt_u32 s2, 256
    s_cbranch_scc1 NO_EPOCH
    s_mov_b64 exec, 1
    s_lshl_b32 s64, s30, 8
    s_add_u32 s64, s64, 0x408000
    buffer_store_dword v1, off, s[16:19], s64 sc1
    NO_EPOCH:
    s_mov_b64 exec, -1
    POLL_DONE:
    s_barrier
    """)
def NLp():
    NL=int(OPT.get("NL","1")); sp=int(OPT.get("sp","256")); return NL,sp
def EOFF():
    NL,sp=NLp(); return 0x400000+128*NL*sp
def vq(e):
    NL,sp=NLp()
    if NL==1: e(f"v_and_b32 v6, 3, v{L}\nv_lshlrev_b32 v6, 4, v6")
    elif NL==4: e(f"v_and_b32 v6, 3, v{L}\nv_mul_u32_u24 v6, {sp}, v6")
    elif NL==2: e(f"v_bfe_u32 v6, v{L}, 1, 1\nv_and_b32 v5, 1, v{L}\nv_mul_u32_u24 v6, {sp}, v6\nv_lshl_add_u32 v6, v5, 4, v6")
def wtag_addr(e):
    NL,sp=NLp(); G=NL*sp
    e(f"""
    s_mul_i32 s66, s30, {64*G}
    s_add_u32 s66, s66, 0x400000
    s_lshl_b32 s64, s34, 3
    s_add_u32 s64, s64, s20
    s_mul_i32 s64, s64, {G}
    s_add_u32 s67, s66, s64
    """)
    vq(e)
def signal_wtag(e):
    NL,sp=NLp(); G=NL*sp; per=16//NL
    wtag_addr(e)
    e(f"""
    s_lshl_b32 s64, s20, 3
    s_add_u32 s64, s64, s21
    s_mul_i32 s64, s64, {G}
    s_lshr_b32 s65, s22, {per.bit_length()-1}
    s_mul_i32 s65, s65, {sp}
    s_add_u32 s64, s64, s65
    s_and_b32 s65, s22, {per-1}
    s_lshl_b32 s65, s65, 2
    s_add_u32 s64, s64, s65
    s_add_u32 s92, s64, s66
    s_mov_b32 s65, 0x40000
    s_waitcnt vmcnt(0)
    v_add_u32 v1, 0x9e3779b9, v1
    s_mov_b64 exec, 1
    buffer_atomic_swap v1, off, s[16:19], s92 sc1
    s_mov_b64 exec, -1""")
    if OPT.get("b3s"): p2_b3(e)
    if OPT.get("share") and OPT.get("shpos")=="S":
        for q in range(14): e(f"ds_read_b128 v[{8+4*q}:{11+4*q}], v0 offset:{q*1024}")
    if OPT.get("cbafter"):
        p2_consts_b(e)
        vq(e)
    e("""
    s_branch POLL_PRE
    POLL_SPECIAL:""")
    wtag_addr(e)
    e(f"""
    s_mov_b32 s65, 0x40000
    s_waitcnt vmcnt(0)
    v_add_u32 v1, 0x9e3779b9, v1
    POLL_PRE:""")
    stamp(e,6)
    b1_win(e,"S")
    e(f"""
    s_mov_b64 exec, 15
    POLL:
    buffer_load_dwordx4 v[88:91], v6, s[16:19], s67 offen sc1
    s_sub_u32 s65, s65, 1
    s_cbranch_scc1 POLL_OUT
    s_waitcnt vmcnt(0)
    v_xor_b32 v88, v88, v1
    v_xor_b32 v89, v89, v1
    v_xor_b32 v90, v90, v1
    v_xor_b32 v91, v91, v1
    v_or3_b32 v88, v88, v89, v90
    v_or_b32 v88, v88, v91
    v_cmp_ne_u32 vcc, 0, v88
    s_cbranch_vccnz POLL
    POLL_OUT:
    s_mov_b64 exec, -1
    """)
def epoch_update(e):
    e("""
    s_cmp_lt_u32 s2, 256
    s_cbranch_scc1 NO_EPOCH
    s_cmp_eq_u32 s20, 0
    s_cbranch_scc0 NO_EPOCH
    s_mov_b64 exec, 1
    s_lshl_b32 s64, s30, 8
    s_add_u32 s64, s64, %d
    buffer_store_dword v1, off, s[16:19], s64 sc1
    s_mov_b64 exec, -1
    NO_EPOCH:
    """%EOFF())
def reset_line(e,sfx=""):
    if OPT.get("sig") in ("tag","wtag"):
        tag_load(e,sfx!="")
        return
    if OPT.get("sig")=="shard":
        if sfx=="": reset_shard(e)
        return
    if OPT.get("sig")!="last": return
    e(f"""
    s_lshl_b32 s67, s2, 7
    s_add_u32 s67, s67, 0x400000
    s_cmp_eq_u32 s20, 0
    s_cbranch_scc0 RESET_DONE{sfx}
    v_mov_b32 v6, s67
    v_mov_b32 v7, 0
    s_mov_b64 exec, 1
    buffer_store_dword v7, v6, s[16:19], 0 offen sc1
    s_mov_b64 exec, -1
    RESET_DONE{sfx}:
    """)
def signal_last(e):
    e("""
    SIGNAL:
    s_waitcnt vmcnt(0)
    s_barrier
    s_cmp_eq_u32 s20, 0
    s_cbranch_scc0 POLL_DONE
    s_lshl_b32 s64, s30, 7
    v_mov_b32 v4, s64
    v_mov_b32 v5, 1
    s_mov_b64 exec, 1
    buffer_atomic_add v5, v4, s[60:63], 0 offen sc0 sc1
    s_waitcnt vmcnt(0)""")
    stamp(e,6)
    e("""
    v_readfirstlane_b32 s64, v5
    s_cmp_eq_u32 s64, 128
    s_cbranch_scc0 POLL_PRE
    s_mov_b64 exec, -1
    v_lshlrev_b32 v4, 7, v2
    s_lshl_b32 s65, s30, 14
    s_add_u32 s65, s65, 0x400000
    s_add_u32 s66, s65, 8192
    v_mov_b32 v5, 1
    s_nop 0
    buffer_store_dword v5, v4, s[16:19], s65 offen sc1
    buffer_store_dword v5, v4, s[16:19], s66 offen sc1
    s_mov_b64 exec, 1
    s_lshl_b32 s65, s30, 7
    s_add_u32 s65, s65, 0x408000
    buffer_store_dword v5, v4, s[16:19], s65 offen sc1
    s_branch POLL_OUT
    POLL_PRE:
    v_mov_b32 v4, s67
    s_mov_b32 s65, 0x40000
    POLL:
    buffer_load_dword v5, v4, s[16:19], 0 offen sc1
    s_sub_u32 s65, s65, 1
    s_cbranch_scc1 POLL_OUT
    s_waitcnt vmcnt(0)
    v_readfirstlane_b32 s64, v5
    s_cmp_eq_u32 s64, 1
    s_cbranch_scc0 POLL
    POLL_OUT:
    s_mov_b64 exec, -1
    POLL_DONE:
    s_barrier
    """)
def dma_addr(e,sfx=''):
    e(f"""
    v_lshlrev_b32 v3, 4, v{L}
    s_lshl_b32 s38, s30, 21
    s_lshl_b32 s39, s32, 14
    s_add_u32 s38, s38, s39
    s_add_u32 s38, s38, s26
    s_add_u32 s39, s38, 1024
    s_add_u32 s27, s26, 1024
    s_cmp_eq_u32 s32, 0
    s_cbranch_scc0 P2_REG{sfx}
    v_bfe_u32 v4, v{L}, 2, 1
    s_lshr_b32 s40, s31, 1
    v_lshlrev_b32 v4, 30, v4
    v_add_u32 v3, s40, v3
    v_add_u32 v3, v4, v3
    P2_REG{sfx}:
    """)
def dma_issue(e,ld_flags):
    e(f"""
    s_mov_b32 m0, s26
    s_nop 0
    buffer_load_dwordx4 v3, s[16:19], s38 offen {ld_flags} lds
    s_mov_b32 m0, s27
    s_nop 0
    buffer_load_dwordx4 v3, s[16:19], s39 offen {ld_flags} lds
    """)
def signal(e):
    sig=OPT.get("sig","atomic")
    e("""
    s_waitcnt vmcnt(0)
    s_barrier
    s_cmp_eq_u32 s20, 0
    s_cbranch_scc0 SIG_DONE""")
    if sig=="atomic":
        e("""
        s_lshl_b32 s64, s23, 7
        s_and_b32 s65, s21, 1
        s_lshl_b32 s65, s65, 6
        s_add_u32 s64, s64, s65
        v_mov_b32 v4, s64
        v_mov_b32 v5, 1
        s_mov_b64 exec, 1
        buffer_atomic_add v5, v4, s[60:63], 0 offen sc1
        s_mov_b64 exec, -1""")
    elif sig=="byte":
        e("""
        v_mov_b32 v4, s2
        v_mov_b32 v5, 1
        s_mov_b64 exec, 1
        buffer_store_byte v5, v4, s[60:63], 0 offen sc0 sc1
        s_mov_b64 exec, -1""")
    e("SIG_DONE:")
def poll(e):
    sig=OPT.get("sig","atomic")
    e("""
    s_cmp_eq_u32 s20, 0
    s_cbranch_scc0 POLL_DONE""")
    if sig=="atomic":
        e("""
        v_lshlrev_b32 v4, 6, v2
        s_lshl_b32 s64, s30, 7
        v_add_u32 v4, s64, v4
        s_mov_b32 s65, 0x40000
        s_mov_b64 exec, 3
        POLL:
        buffer_load_dword v5, v4, s[60:63], 0 offen sc1
        s_sub_u32 s65, s65, 1
        s_cbranch_scc1 POLL_OUT
        s_waitcnt vmcnt(0)
        v_cmp_le_u32 vcc, 64, v5
        s_nop 4
        s_cmp_eq_u32 vcc_lo, 3
        s_cbranch_scc0 POLL""")
    else:
        e("""
        v_lshlrev_b32 v4, 4, v2
        s_lshl_b32 s64, s30, 7
        v_add_u32 v4, s64, v4
        s_mov_b32 s65, 0x40000
        s_mov_b32 s66, 0x01010101
        s_mov_b64 exec, 0xff
        POLL:
        buffer_load_dwordx4 v[88:91], v4, s[60:63], 0 offen sc1
        s_sub_u32 s65, s65, 1
        s_cbranch_scc1 POLL_OUT
        s_waitcnt vmcnt(0)
        v_and_b32 v88, v88, v89
        v_and_b32 v90, v90, v91
        v_and_b32 v88, v88, v90
        v_cmp_eq_u32 vcc, s66, v88
        s_nop 4
        s_cmp_eq_u32 vcc_lo, 0xff
        s_cbranch_scc0 POLL""")
    e("""
    POLL_OUT:
    s_mov_b64 exec, -1
    POLL_DONE:
    s_barrier
    """)
def p2_main(e, st_flags=""):
    A=88; D1=96; BF=112; D2=96; X=120; F=96; D3=112; Q=88
    B1=PB1
    e("s_waitcnt vmcnt(0)")
    stamp(e,8)
    for ks in range(2):
        for i in range(2):
            e(f"ds_read_b64_tr_b16 v[{A+4*ks+2*i}:{A+4*ks+2*i+1}], v{vTR2} offset:{ks*1024+i*512}")
    e("s_waitcnt lgkmcnt(2)")
    for ks in range(2):
        if ks==1: e("s_waitcnt lgkmcnt(0)")
        for eh in range(2):
            for cp in range(2):
                d=D1+(eh*2+cp)*4; f=B1+((eh*2+cp)*2+ks)*4
                c="0" if ks==0 else f"v[{d}:{d+3}]"
                e(f"v_mfma_f32_16x16x32_bf16 v[{d}:{d+3}], v[{A+4*ks}:{A+4*ks+3}], v[{f}:{f+3}], {c}")
    e("s_nop 5")
    for eh in range(2):
        re=D1+eh*8; im=re+4
        for p in range(2):
            c=TWC+4*eh+2*p; s_=TWS+4*eh+2*p; t=A+4*p; u=A+4*p+2
            e(f"v_pk_mul_f32 v[{t}:{t+1}], v[{re+2*p}:{re+2*p+1}], v[{c}:{c+1}]")
            e(f"v_pk_mul_f32 v[{u}:{u+1}], v[{im+2*p}:{im+2*p+1}], v[{c}:{c+1}]")
            e(f"v_pk_fma_f32 v[{t}:{t+1}], v[{im+2*p}:{im+2*p+1}], v[{s_}:{s_+1}], v[{t}:{t+1}]")
            e(f"v_pk_fma_f32 v[{u}:{u+1}], v[{re+2*p}:{re+2*p+1}], v[{s_}:{s_+1}], v[{u}:{u+1}] neg_lo:[1,0,0] neg_hi:[1,0,0]")
        for p in range(2):
            t=A+4*p; u=t+2
            e(f"v_cvt_pk_bf16_f32 v{BF+4*eh+p}, v{t}, v{t+1}")
            e(f"v_cvt_pk_bf16_f32 v{BF+4*eh+2+p}, v{u}, v{u+1}")
    e("s_nop 1")
    for eh in range(2):
        for cpp in range(2):
            d=D2+(eh*2+cpp)*4
            e(f"v_mfma_f32_16x16x32_bf16 v[{d}:{d+3}], v[{A2+4*cpp}:{A2+4*cpp+3}], v[{BF+4*eh}:{BF+4*eh+3}], 0")
    e("s_nop 7")
    for r in range(4):
        e(f"v_cvt_pk_bf16_f32 v{X+2*r}, v{D2+r}, v{D2+4+r}")
        e(f"v_cvt_pk_bf16_f32 v{X+2*r+1}, v{D2+8+r}, v{D2+12+r}")
        e(f"ds_write2_b32 v{vXW}, v{X+2*r}, v{X+2*r+1} offset0:{32*r} offset1:{32*r+16}")
    e("s_waitcnt lgkmcnt(0)\ns_barrier")
    stamp(e,9)
    if OPT.get("sig")=="wtag": epoch_update(e)
    e("s_and_b32 s58, s32, 127\ns_cmp_eq_u32 s58, 0\ns_cselect_b32 s58, s44, 0\ns_cmp_lg_u32 s58, 0\ns_cbranch_scc1 P2_END")
    for tau in range(4):
        e(f"ds_read2st64_b32 v[{F+4*tau}:{F+4*tau+1}], v{vXR+tau} offset0:0 offset1:8")
        e(f"ds_read2st64_b32 v[{F+4*tau+2}:{F+4*tau+3}], v{vXR+tau} offset0:16 offset1:24")
    for tau in range(4):
        e(f"s_waitcnt lgkmcnt({6-2*tau})")
        c="0" if tau==0 else f"v[{D3}:{D3+15}]"
        e(f"v_mfma_f32_32x32x16_bf16 v[{D3}:{D3+15}], v[{F+4*tau}:{F+4*tau+3}], v[{B3+4*tau}:{B3+4*tau+3}], {c}")
    e("s_nop 11")
    out_swaps(e,D3,Q)
    e(f"""
    buffer_store_dwordx4 v[{Q}:{Q+3}], v{vO}, s[12:15], s56 offen {st_flags}
    buffer_store_dwordx4 v[{Q+4}:{Q+7}], v{vO}, s[12:15], s57 offen {st_flags}
    P2_END:
    """)
def fused(zst="sc1", zld="sc1", ost=""):
    k1=NAME+"_kernel"
    e=E()
    e("""s_cmp_ge_u32 s2, 258
    s_cbranch_scc1 K_END
    s_load_dwordx2 s[4:5], s[0:1], 0
    s_load_dwordx2 s[6:7], s[0:1], 40
    s_load_dwordx2 s[8:9], s[0:1], 96
    s_load_dwordx2 s[56:57], s[0:1], 80""")
    stamp(e,0)
    e(f"""
    v_lshrrev_b32 v1, 6, v0
    v_and_b32 v{L}, 63, v0
    s_nop 0
    v_readfirstlane_b32 s20, v1
    s_lshl_b32 s26, s20, 11
    s_cmp_ge_u32 s2, 256
    s_cbranch_scc1 SPECIAL_WG
    """)
    last=OPT.get("sig")=="last"
    shard=OPT.get("sig")=="shard"
    tag=OPT.get("sig") in ("tag","wtag")
    wtag=OPT.get("sig")=="wtag"
    ZS=(EOFF()+0x1000) if wtag else (0x410000 if (last or shard or tag) else 0x400000)
    p1_issue(e)
    stamp(e,1)
    srd(e,16,8,9,ZS)
    if not wtag: srd(e,60,58,59,256)
    reset_line(e)
    p1_consts(e)
    if OPT.get("share"): share_compute(e)
    else: p2_consts_a(e)
    if OPT.get('st5'): stamp(e,5)
    p1_main(e,zst)
    stamp(e,4)
    srd(e,12,56,57,0x400000)
    p2_setup(e,False)
    b1_win(e,"D")
    if OPT.get("share") and OPT.get("b3s"):
        share_read_interleaved(e,p2_addr_b,int(OPT["share"]))
    elif OPT.get("share") and OPT.get("shpos","D")=="D":
        share_read_interleaved(e,p2_consts_b,int(OPT["share"]))
    elif not OPT.get("cbafter"):
        p2_consts_b(e)
    dma_addr(e)
    if not OPT.get('st5'): stamp(e,5)
    if last: signal_last(e)
    elif shard: signal_shard(e)
    elif wtag: signal_wtag(e)
    elif tag: signal_tag(e)
    else:
        signal(e)
        e("POLL_START:")
        stamp(e,6)
        poll(e)
    stamp(e,7)
    dma_issue(e,zld)
    b1_win(e,"Z")
    p2_main(e,ost)
    gen.stamp_out(e,0,0,0)
    e("K_END:\ns_endpgm")
    e("SPECIAL_WG:\ns_waitcnt lgkmcnt(0)")
    srd(e,16,8,9,ZS)
    if not wtag: srd(e,60,58,59,256)
    reset_line(e,"B")
    p2_consts_a(e)
    srd(e,12,56,57,0x400000)
    p2_setup(e,True)
    b1_win(e,"D")
    p2_consts_b(e)
    dma_addr(e,"B")
    e("s_branch SIGNAL" if last else ("s_branch POLL_SPECIAL" if (shard or tag) else "s_branch POLL_START"))
    s=HEADER+f"; @launch grid=(258,1,1) block=(512,1,1) lds={47104 if OPT.get('share') else 32768}\n"
    s+='.amdgcn_target "amdgcn-amd-amdhsa--gfx950"\n.text\n'
    s+=func(k1,e.txt())
    s+='.section .rodata,"a"\n.p2align 6\n'+kd(k1,128,102)
    return s
if __name__=="__main__":
    mode=sys.argv[1]; out=sys.argv[2]
    args=[a for a in sys.argv[3:] if not a.startswith("-")]
    for a in sys.argv[3:]:
        if a.startswith("-"):
            k,_,v=a[1:].partition("="); OPT[k]=v or "1"
    if mode.endswith("_diag"):
        DIAG=True; gen.DIAG=True
    gen.FUSED=True
    open(out,"w").write(fused(*args))
```

```python
import sys
import gen
from gen import E, vr, srd, NAME, HEADER, func, kd, out_swaps
OPT={}
DIAG=False
def stamp(e,k):
    if DIAG: e(f"s_memrealtime s[70:71]\ns_waitcnt lgkmcnt(0)\ns_mov_b32 s{72+k}, s70")
L=2
A1=104; B2=108; vTR=124; vEW=125; vER=126; vZ=127; H=80; M=81; T=64-26
DAT=116; Da=64; Db=88
def t(k): return f"v{k+T}"
def p1_issue(e):
    e(f"""
    s_and_b32 s21, s2, 7
    s_bfe_u32 s22, s2, 0x40003
    s_bfe_u32 s23, s2, 0x10007
    v_lshrrev_b32 v3, 2, v{L}
    v_lshlrev_b32 v3, 17, v3
    v_and_b32 v4, 3, v{L}
    v_lshl_or_b32 v3, v4, 4, v3
    s_lshl_b32 s24, s20, 14
    s_lshl_b32 s25, s21, 10
    s_add_u32 s24, s24, s25
    s_lshl_b32 s25, s22, 6
    s_add_u32 s24, s24, s25
    s_add_u32 s25, s24, 8192
    s_add_u32 s27, s26, 1024
    s_mov_b32 s14, 0x200000
    s_mov_b32 s15, 0x20000
    s_mov_b32 m0, s26
    s_cmp_eq_u32 s23, 0
    s_waitcnt lgkmcnt(0)
    s_cselect_b32 s12, s4, s6
    s_cselect_b32 s13, s5, s7
    buffer_load_dwordx4 v3, s[12:15], s24 offen {OPT.get("xf","").replace("+"," ")} lds
    s_mov_b32 m0, s27
    s_nop 0
    buffer_load_dwordx4 v3, s[12:15], s25 offen {OPT.get("xf","").replace("+"," ")} lds
    """)
def p1_consts(e):
    e(f"""
    v_lshrrev_b32 v{H}, 5, v{L}
    v_and_b32 v{M}, 31, v{L}
    v_bfe_u32 v4, v{M}, 1, 3
    v_and_b32 v5, 1, v{M}
    v_and_b32 v6, 15, v{M}
    v_cmp_eq_u32 vcc, 1, v6
    v_cvt_f32_u32 v7, v4
    v_cvt_f32_u32 {t(26)}, v5
    v_mul_f32 v7, 0x3d800000, v7
    v_mul_f32 {t(26)}, 0x3e800000, {t(26)}
    v_cndmask_b32 v7, v7, 0.5, vcc
    v_cndmask_b32 {t(26)}, {t(26)}, 0, vcc
    v_lshlrev_b32 {t(27)}, 3, v{H}
    v_cvt_f32_u32 {t(27)}, {t(27)}
    v_fma_f32 {t(26)}, {t(27)}, v7, {t(26)}
    """)
    if OPT.get("cheb"):
        e(f"""
        v_cos_f32 {t(28)}, {t(26)}
        v_add_f32 {t(27)}, {t(26)}, v7
        v_cos_f32 {t(36)}, v7
        v_cos_f32 {t(29)}, {t(27)}
        s_nop 0
        v_add_f32 {t(36)}, {t(36)}, {t(36)}
        """)
        for jj in range(2,8):
            e(f"v_fma_f32 {t(28+jj)}, {t(36)}, {t(27+jj)}, -{t(26+jj)}")
            if jj%2==1: e(f"v_cvt_pk_bf16_f32 v{A1+jj//2-1}, {t(28+jj-3)}, {t(29+jj-3)}")
        e(f"v_cvt_pk_bf16_f32 v{A1+3}, {t(34)}, {t(35)}")
    else:
        for jj in range(8):
            if jj>0: e(f"v_add_f32 {t(26)}, {t(26)}, v7")
            e(f"v_cos_f32 {t(28+jj)}, {t(26)}")
        e("s_nop 0")
        for q in range(4): e(f"v_cvt_pk_bf16_f32 v{A1+q}, {t(28+2*q)}, {t(29+2*q)}")
    e(f"""
    v_lshrrev_b32 v4, 4, v{M}
    v_and_b32 v5, 7, v{M}
    v_lshl_or_b32 v4, v4, 3, v5
    v_bfe_u32 v5, v{M}, 3, 1
    v_cvt_f32_u32 v6, v5
    v_mul_f32 v6, 0x3e800000, v6
    s_cmp_eq_u32 s20, 0
    s_cbranch_scc1 P1_SPECIAL
    v_lshlrev_b32 v7, 4, v4
    v_add_u32 v7, s20, v7
    v_mov_b32 {t(26)}, v6
    v_add_f32 {t(27)}, 0xbe800000, v6
    v_mov_b32 {t(28)}, -1
    s_branch P1_COMMON
    P1_SPECIAL:
    v_lshlrev_b32 v7, 4, v4
    v_cmp_le_u32 vcc, 8, v4
    v_subrev_u32 {t(29)}, 120, v7
    v_mov_b32 {t(28)}, 0xffff
    v_mov_b32 {t(30)}, 0xffff0000
    v_cndmask_b32 v7, v7, {t(29)}, vcc
    v_cndmask_b32 {t(28)}, {t(28)}, {t(30)}, vcc
    v_cmp_eq_u32 vcc, 8, v{M}
    v_mov_b32 {t(29)}, 0x80
    v_mov_b32 {t(26)}, v6
    v_cndmask_b32 v7, v7, {t(29)}, vcc
    v_cndmask_b32 {t(26)}, {t(26)}, 0, vcc
    s_nop 0
    v_mov_b32 {t(27)}, {t(26)}
    P1_COMMON:
    v_cvt_f32_u32 v7, v7
    v_lshlrev_b32 {t(29)}, 2, v{H}
    v_cvt_f32_u32 {t(29)}, {t(29)}
    v_mul_f32 v7, 0x3b800000, v7
    v_fma_f32 {t(26)}, {t(29)}, v7, {t(26)}
    v_fma_f32 {t(27)}, {t(29)}, v7, {t(27)}
    """)
    if not OPT.get("cheb"): e(f"v_mul_f32 {t(29)}, 4.0, v7")
    if OPT.get("cheb"):
        P=[72,74,76]; m=78
        def cv(n,dst):
            p=P[n%3]
            e(f"v_cvt_pk_bf16_f32 v{dst}, v{p}, v{p+1}")
        e(f"""
        v_cos_f32 v72, {t(26)}
        v_cos_f32 v73, {t(27)}
        v_add_f32 {t(26)}, {t(26)}, v7
        v_add_f32 {t(27)}, {t(27)}, v7
        v_cos_f32 v78, v7
        v_cos_f32 v74, {t(26)}
        v_cos_f32 v75, {t(27)}
        """)
        cv(0,B2+0)
        e("v_add_f32 v78, v78, v78")
        cv(1,B2+1)
        for n in range(2,12):
            d=P[n%3]; a_=P[(n-1)%3]; b_=P[(n-2)%3]
            e(f"v_pk_fma_f32 v[{d}:{d+1}], v[{a_}:{a_+1}], v[{m}:{m+1}], v[{b_}:{b_+1}] op_sel_hi:[1,0,1] neg_lo:[0,0,1] neg_hi:[0,0,1]")
            if n<4: cv(n,B2+n)
            if n>=8: cv(n,B2+n-4)
        e("s_cmp_eq_u32 s20, 0\ns_cbranch_scc0 P1_NOMASK")
        for q in range(8): e(f"v_and_b32 v{B2+q}, v{B2+q}, {t(28)}")
        e("P1_NOMASK:")
    else:
        for ks in range(2):
            for x in range(4):
                e(f"v_cos_f32 {t(30)}, {t(26)}\nv_cos_f32 {t(31)}, {t(27)}")
                if x<3: e(f"v_add_f32 {t(26)}, {t(26)}, v7\nv_add_f32 {t(27)}, {t(27)}, v7")
                elif ks==0: e(f"v_add_f32 {t(26)}, {t(26)}, v7\nv_add_f32 {t(27)}, {t(27)}, v7\nv_add_f32 {t(26)}, {t(26)}, {t(29)}\nv_add_f32 {t(27)}, {t(27)}, {t(29)}")
                else: e("s_nop 0")
                e(f"v_cvt_pk_bf16_f32 v{B2+4*ks+x}, {t(30)}, {t(31)}")
        for q in range(8): e(f"v_and_b32 v{B2+q}, v{B2+q}, {t(28)}")
    e(f"""
    v_bfe_u32 v4, v{L}, 2, 2
    v_lshl_or_b32 v4, v{H}, 3, v4
    v_lshlrev_b32 v4, 6, v4
    v_bfe_u32 v5, v{L}, 4, 1
    v_lshl_or_b32 v4, v5, 5, v4
    v_and_b32 v5, 3, v{L}
    v_lshl_or_b32 v4, v5, 3, v4
    v_add_u32 v{vTR}, s26, v4
    s_lshl_b32 s28, s20, 8
    s_add_u32 s28, s28, 16384
    v_lshlrev_b32 v4, 3, v{M}
    v_lshl_or_b32 v5, v{H}, 12, v4
    v_add_u32 v{vEW}, s28, v5
    s_add_u32 s28, s26, 16384
    v_lshl_or_b32 v5, v{H}, 9, v4
    v_add_u32 v{vER}, s28, v5
    v_and_b32 v4, 7, v{L}
    v_lshlrev_b32 v4, 14, v4
    v_bfe_u32 v5, v{L}, 3, 1
    v_lshl_or_b32 v4, v5, 6, v4
    v_bfe_u32 v5, v{L}, 4, 1
    v_lshl_or_b32 v4, v5, 5, v4
    v_lshl_or_b32 v{vZ}, v{H}, 4, v4
    s_lshl_b32 s28, s23, 21
    s_lshl_b32 s29, s20, 18
    s_add_u32 s28, s28, s29
    s_lshl_b32 s29, s21, 11
    s_add_u32 s28, s28, s29
    s_lshl_b32 s29, s22, 7
    s_add_u32 s28, s28, s29
    s_add_u32 s29, s28, 0x20000
    """)
def p1_main(e, st_flags):
    B0=DAT; B1=DAT+4; X=DAT; F=DAT
    NX=1 if OPT.get("sig") in ("tag","wtag") else 0
    if DIAG: e("s_waitcnt vmcnt(0)")
    stamp(e,2)
    e(f"""
    s_waitcnt vmcnt({1+NX})
    ds_read_b64_tr_b16 v[{B0}:{B0+1}], v{vTR} offset:0
    ds_read_b64_tr_b16 v[{B0+2}:{B0+3}], v{vTR} offset:256
    s_waitcnt vmcnt({NX})
    ds_read_b64_tr_b16 v[{B1}:{B1+1}], v{vTR} offset:1024
    ds_read_b64_tr_b16 v[{B1+2}:{B1+3}], v{vTR} offset:1280
    s_waitcnt lgkmcnt(2)
    v_mfma_f32_32x32x16_bf16 v[{Da}:{Da+15}], v[{A1}:{A1+3}], v[{B0}:{B0+3}], 0
    s_waitcnt lgkmcnt(0)
    v_mfma_f32_32x32x16_bf16 v[{Db}:{Db+15}], v[{A1}:{A1+3}], v[{B1}:{B1+3}], 0
    s_nop 10
    """)
    offs=[0,2048,8192,10240]
    for mu in range(4):
        e(f"v_cvt_pk_bf16_f32 v{X+2*mu}, v{Da+2*mu}, v{Da+2*mu+1}")
        e(f"v_cvt_pk_bf16_f32 v{X+2*mu+1}, v{Db+2*mu}, v{Db+2*mu+1}")
        e(f"ds_write_b64 v{vEW}, v[{X+2*mu}:{X+2*mu+1}] offset:{offs[mu]}")
    e("s_waitcnt vmcnt(0) lgkmcnt(0)\ns_barrier")
    stamp(e,3)
    for ks in range(2):
        for sg in range(2):
            e(f"ds_read_b64 v[{F+4*ks+2*sg}:{F+4*ks+2*sg+1}], v{vER} offset:{(4*ks+sg)*256}")
    e(f"""
    s_waitcnt lgkmcnt(2)
    v_mfma_f32_32x32x16_bf16 v[{Da}:{Da+15}], v[{F}:{F+3}], v[{B2}:{B2+3}], 0
    s_waitcnt lgkmcnt(0)
    v_mfma_f32_32x32x16_bf16 v[{Da}:{Da+15}], v[{F+4}:{F+7}], v[{B2+4}:{B2+7}], v[{Da}:{Da+15}]
    s_nop 10
    """)
    out_swaps(e,Da,X)
    e(f"""
    buffer_store_dwordx4 v[{X}:{X+3}], v{vZ}, s[16:19], s28 offen {st_flags}
    buffer_store_dwordx4 v[{X+4}:{X+7}], v{vZ}, s[16:19], s29 offen {st_flags}
    """)
PB1=8; TWC=40; TWS=48; A2=56; B3=64; vTR2=80; vXW=81; vXR=82; vO=86
def b1_init(e):
    e(f"""
    v_and_b32 v99, 15, v{L}
    v_lshrrev_b32 v100, 4, v{L}
    v_cvt_f32_u32 v99, v99
    v_cvt_f32_u32 v100, v100
    v_mul_f32 v96, 0x3d000000, v99
    v_add_f32 v97, v100, v100
    v_mul_f32 v98, 0x41000000, v96
    v_mul_f32 v97, v97, v96
    """)
def b1_block(e,k):
    ks=k>>1; i=k&1
    fr=lambda eh,cp: PB1+((eh*2+cp)*2+ks)*4
    e(f"""
    v_add_f32 v99, v97, v96
    v_cos_f32 v100, v97
    v_cos_f32 v101, v99
    v_sin_f32 v102, v97
    v_sin_f32 v103, v99
    v_add_f32 v97, v97, v98
    v_cvt_pk_bf16_f32 v{fr(0,0)+2*i}, v100, v101
    v_cvt_pk_bf16_f32 v{fr(0,1)+2*i+1}, v100, v101
    v_cvt_pk_bf16_f32 v{fr(1,0)+2*i}, v100, -v101
    v_cvt_pk_bf16_f32 v{fr(1,1)+2*i+1}, v100, -v101
    v_cvt_pk_bf16_f32 v{fr(0,0)+2*i+1}, v102, v103
    v_cvt_pk_bf16_f32 v{fr(0,1)+2*i}, -v102, -v103
    v_cvt_pk_bf16_f32 v{fr(1,0)+2*i+1}, v102, -v103
    v_cvt_pk_bf16_f32 v{fr(1,1)+2*i}, -v102, v103
    """)
def b1_win(e,win,special=False):
    pl=OPT.get("b1","XXXX")
    order="XDSZ"
    first=min(order.index(c) for c in pl)
    if order[first]==win: b1_init(e)
    for k,c in enumerate(pl):
        if c==win: b1_block(e,k)
def p2_consts_a(e):
    N=4; G=5
    e(f"""
    v_and_b32 v{N}, 15, v{L}
    v_lshrrev_b32 v{G}, 4, v{L}
    v_cvt_f32_u32 v6, v{N}
    v_cvt_f32_u32 v7, v{G}
    v_mul_f32 v87, 0x3b000000, v6
    v_mul_f32 v89, 4.0, v7
    """)
    for eh in range(2):
        if eh==1: e("v_add_f32 v87, 0x3d000000, v87")
        e("v_mul_f32 v88, v89, v87")
        for r in range(4):
            e(f"v_cos_f32 v{TWC+4*eh+r}, v88\nv_sin_f32 v{TWS+4*eh+r}, v88")
            if r<3: e("v_add_f32 v88, v88, v87")
    e(f"""
    v_mul_f32 v87, 0x3d800000, v6
    v_mul_f32 v88, v89, v87
    """)
    for r in range(4):
        e(f"v_cos_f32 v{90+r}, v88\nv_sin_f32 v{94+r}, v88")
        if r<3: e("v_add_f32 v88, v88, v87")
    e(f"""
    s_nop 0
    v_cvt_pk_bf16_f32 v{A2+0}, v90, v91
    v_cvt_pk_bf16_f32 v{A2+1}, v92, v93
    v_cvt_pk_bf16_f32 v{A2+2}, v94, v95
    v_cvt_pk_bf16_f32 v{A2+3}, v96, v97
    v_cvt_pk_bf16_f32 v{A2+4}, -v94, -v95
    v_cvt_pk_bf16_f32 v{A2+5}, -v96, -v97
    v_cvt_pk_bf16_f32 v{A2+6}, v90, v91
    v_cvt_pk_bf16_f32 v{A2+7}, v92, v93
    """)
    b1_win(e,"X")
CB=32768
def share_compute(e):
    e(f"""
    v_lshlrev_b32 v0, 4, v{L}
    v_and_b32 v99, 15, v{L}
    v_lshrrev_b32 v100, 4, v{L}
    v_add_u32 v0, {CB}, v0
    v_cvt_f32_u32 v99, v99
    s_cmp_ge_u32 s20, 4
    s_cbranch_scc1 SH_W4
    s_lshl_b32 s40, s20, 3
    s_lshr_b32 s41, s20, 1
    v_lshl_add_u32 v100, v100, 1, s40
    v_mul_f32 v96, 0x3d000000, v99
    v_cvt_f32_u32 v100, v100
    s_lshl_b32 s41, s41, 10
    s_and_b32 s42, s20, 1
    v_mul_f32 v97, v100, v96
    s_lshl_b32 s42, s42, 3
    s_add_u32 s41, s41, s42
    v_add_f32 v99, v97, v96
    v_cos_f32 v100, v97
    v_cos_f32 v101, v99
    v_sin_f32 v102, v97
    v_sin_f32 v103, v99
    v_add_u32 v98, s41, v0
    v_cvt_pk_bf16_f32 v88, v100, v101
    v_cvt_pk_bf16_f32 v91, v100, v101
    v_cvt_pk_bf16_f32 v92, v100, -v101
    v_cvt_pk_bf16_f32 v95, v100, -v101
    v_cvt_pk_bf16_f32 v89, v102, v103
    v_cvt_pk_bf16_f32 v90, -v102, -v103
    v_cvt_pk_bf16_f32 v93, v102, -v103
    v_cvt_pk_bf16_f32 v94, -v102, v103
    ds_write_b64 v98, v[88:89] offset:0
    ds_write_b64 v98, v[90:91] offset:2048
    ds_write_b64 v98, v[92:93] offset:4096
    ds_write_b64 v98, v[94:95] offset:6144
    s_branch SH_DONE
    SH_W4:
    v_cvt_f32_u32 v100, v100
    s_cmp_ge_u32 s20, 6
    v_mul_f32 v89, 4.0, v100
    s_cbranch_scc1 SH_W6
    s_and_b32 s40, s20, 1
    s_mul_i32 s41, s40, 0x3d000000
    s_lshl_b32 s40, s40, 10
    v_mul_f32 v87, 0x3b000000, v99
    v_add_u32 v98, s40, v0
    v_add_f32 v87, s41, v87
    v_mul_f32 v88, v89, v87
    """)
    for r in range(4):
        e(f"v_cos_f32 v{92+r}, v88\nv_sin_f32 v{100+r}, v88")
        if r<3: e("v_add_f32 v88, v88, v87")
    e(f"""
    s_nop 0
    ds_write_b128 v98, v[92:95] offset:{8*1024}
    ds_write_b128 v98, v[100:103] offset:{10*1024}
    s_branch SH_DONE
    SH_W6:
    s_cmp_eq_u32 s20, 6
    s_cbranch_scc0 SH_DONE
    v_mul_f32 v87, 0x3d800000, v99
    v_mul_f32 v88, v89, v87
    """)
    for r in range(4):
        e(f"v_cos_f32 v{90+r}, v88\nv_sin_f32 v{94+r}, v88")
        if r<3: e("v_add_f32 v88, v88, v87")
    e(f"""
    s_nop 0
    v_cvt_pk_bf16_f32 v100, v90, v91
    v_cvt_pk_bf16_f32 v101, v92, v93
    v_cvt_pk_bf16_f32 v102, v94, v95
    v_cvt_pk_bf16_f32 v103, v96, v97
    v_cvt_pk_bf16_f32 v88, -v94, -v95
    v_cvt_pk_bf16_f32 v89, -v96, -v97
    v_cvt_pk_bf16_f32 v90, v90, v91
    v_cvt_pk_bf16_f32 v91, v92, v93
    ds_write_b128 v0, v[100:103] offset:{12*1024}
    ds_write_b128 v0, v[88:91] offset:{13*1024}
    SH_DONE:
    """)
def share_read_interleaved(e, gen_fn, every):
    t=E(); gen_fn(t)
    q=0; n=0
    for line in t.l:
        e.l.append(line)
        ls=line.strip()
        if ls and not ls.endswith(":") and ls.startswith("v_"):
            n+=1
            if n%every==0 and q<14:
                e(f"ds_read_b128 v[{8+4*q}:{11+4*q}], v0 offset:{q*1024}"); q+=1
    while q<14:
        e(f"ds_read_b128 v[{8+4*q}:{11+4*q}], v0 offset:{q*1024}"); q+=1
def p2_consts_b(e):
    N=4; G=5
    e(f"""
    v_and_b32 v{N}, 15, v{L}
    v_lshrrev_b32 v{G}, 4, v{L}
    v_lshlrev_b32 v6, 3, v{L}
    v_add_u32 v{vTR2}, s26, v6
    s_add_u32 s40, s26, 16384
    v_lshlrev_b32 v6, 2, v{N}
    v_lshl_or_b32 v6, v{G}, 9, v6
    v_add_u32 v{vXW}, s40, v6
    v_and_b32 v6, 31, v{L}
    v_lshrrev_b32 v7, 5, v{L}
    s_and_b32 s43, s20, 3
    s_lshr_b32 s44, s20, 2
    s_lshl_b32 s45, s43, 7
    v_add_u32 v87, s45, v6
    v_lshlrev_b32 v88, 13, v7
    v_add_u32 v88, 16384, v88
    s_cmp_eq_u32 s44, 0
    s_cselect_b32 s46, 0, -1
    s_cselect_b32 s47, 0, 1
    """)
    for tau in range(4):
        e(f"""
        v_xor_b32 v89, s46, v87
        v_add_u32 v89, s47, v89
        v_and_b32 v89, 0x1ff, v89
        v_lshl_add_u32 v{vXR+tau}, v89, 2, v88
        """)
        if tau<3: e("v_add_u32 v87, 32, v87")
    e(f"""
    v_and_b32 v89, 7, v6
    v_lshlrev_b32 v89, 8, v89
    v_add_u32 v89, s33, v89
    v_cvt_f32_u32 v90, v89
    v_mul_f32 v90, 0x3a000000, v90
    v_lshlrev_b32 v91, 2, v7
    v_cvt_f32_u32 v91, v91
    v_mul_f32 v91, v91, v90
    v_lshrrev_b32 v92, 3, v6
    v_cmp_eq_u32 s[48:49], 0, v92
    v_cmp_eq_u32 s[50:51], 1, v92
    v_cmp_eq_u32 s[52:53], 2, v92
    v_cmp_eq_u32 s[54:55], 3, v92
    """)
    for x in range(4):
        e(f"v_cos_f32 v93, v91\nv_sin_f32 v94, v91")
        e("v_add_f32 v91, v91, v90" if x<3 else "s_nop 0")
        e(f"v_cvt_pk_bf16_f32 v95, v93, v94")
        for tau in range(4):
            e(f"v_cndmask_b32 v{B3+4*tau+x}, 0, v95, s[{48+2*tau}:{49+2*tau}]")
    e(f"""
    v_xor_b32 v89, s46, v89
    v_add_u32 v89, s47, v89
    v_and_b32 v89, 0x7ff, v89
    v_lshlrev_b32 v89, 11, v89
    v_bfe_u32 v90, v{L}, 3, 1
    v_lshl_or_b32 v89, v90, 6, v89
    v_bfe_u32 v90, v{L}, 4, 1
    v_lshl_or_b32 v89, v90, 5, v89
    v_lshl_or_b32 v{vO}, v7, 4, v89
    s_lshl_b32 s56, s30, 10
    s_lshl_b32 s57, s43, 8
    s_add_u32 s56, s56, s57
    s_add_u32 s57, s56, 128
    """)
def p2_addr_b(e):
    N=4; G=5
    e(f"""
    v_and_b32 v{N}, 15, v{L}
    v_lshrrev_b32 v{G}, 4, v{L}
    v_lshlrev_b32 v6, 3, v{L}
    v_add_u32 v{vTR2}, s26, v6
    s_add_u32 s40, s26, 16384
    v_lshlrev_b32 v6, 2, v{N}
    v_lshl_or_b32 v6, v{G}, 9, v6
    v_add_u32 v{vXW}, s40, v6
    v_and_b32 v6, 31, v{L}
    v_lshrrev_b32 v7, 5, v{L}
    s_and_b32 s43, s20, 3
    s_lshr_b32 s44, s20, 2
    s_lshl_b32 s45, s43, 7
    v_add_u32 v87, s45, v6
    v_lshlrev_b32 v88, 13, v7
    v_add_u32 v88, 16384, v88
    s_cmp_eq_u32 s44, 0
    s_cselect_b32 s46, 0, -1
    s_cselect_b32 s47, 0, 1
    """)
    for tau in range(4):
        e(f"""
        v_xor_b32 v89, s46, v87
        v_add_u32 v89, s47, v89
        v_and_b32 v89, 0x1ff, v89
        v_lshl_add_u32 v{vXR+tau}, v89, 2, v88
        """)
        if tau<3: e("v_add_u32 v87, 32, v87")
    e(f"""
    v_and_b32 v89, 7, v6
    v_lshlrev_b32 v89, 8, v89
    v_add_u32 v89, s33, v89
    v_xor_b32 v89, s46, v89
    v_add_u32 v89, s47, v89
    v_and_b32 v89, 0x7ff, v89
    v_lshlrev_b32 v89, 11, v89
    v_bfe_u32 v90, v{L}, 3, 1
    v_lshl_or_b32 v89, v90, 6, v89
    v_bfe_u32 v90, v{L}, 4, 1
    v_lshl_or_b32 v89, v90, 5, v89
    v_lshl_or_b32 v{vO}, v7, 4, v89
    s_lshl_b32 s56, s30, 10
    s_lshl_b32 s57, s43, 8
    s_add_u32 s56, s56, s57
    s_add_u32 s57, s56, 128
    """)
def p2_b3(e):
    e(f"""
    v_and_b32 v87, 31, v{L}
    v_lshrrev_b32 v88, 5, v{L}
    v_and_b32 v89, 7, v87
    v_lshlrev_b32 v89, 8, v89
    v_add_u32 v89, s33, v89
    v_cvt_f32_u32 v90, v89
    v_mul_f32 v90, 0x3a000000, v90
    v_lshlrev_b32 v91, 2, v88
    v_cvt_f32_u32 v91, v91
    v_lshrrev_b32 v92, 3, v87
    v_mul_f32 v91, v91, v90
    v_cmp_eq_u32 s[48:49], 0, v92
    v_cmp_eq_u32 s[50:51], 1, v92
    v_cmp_eq_u32 s[52:53], 2, v92
    v_cmp_eq_u32 s[54:55], 3, v92
    """)
    for x in range(4):
        e(f"v_cos_f32 v93, v91\nv_sin_f32 v94, v91")
        e("v_add_f32 v91, v91, v90" if x<3 else "s_nop 0")
        e(f"v_cvt_pk_bf16_f32 v95, v93, v94")
        for tau in range(4):
            e(f"v_cndmask_b32 v{B3+4*tau+x}, 0, v95, s[{48+2*tau}:{49+2*tau}]")
def p2_setup(e, special):
    if special: e("s_and_b32 s30, s2, 1\ns_movk_i32 s31, 128")
    elif OPT.get("sig")=="wtag": e("s_lshr_b32 s30, s2, 7\ns_lshl_b32 s31, s21, 4\ns_or_b32 s31, s31, s22")
    else: e("s_lshr_b32 s30, s2, 7\ns_and_b32 s31, s2, 127")
    e("""
    s_and_b32 s32, s31, 127
    s_lshr_b32 s34, s32, 4
    s_and_b32 s35, s32, 15
    s_lshl_b32 s36, s35, 4
    s_add_u32 s33, s36, s34
    s_sub_u32 s37, s36, 120
    s_cmp_ge_u32 s35, 8
    s_cselect_b32 s37, s37, s36
    s_cmp_eq_u32 s34, 0
    s_cselect_b32 s33, s37, s33
    s_cmp_eq_u32 s31, 128
    s_cselect_b32 s33, 128, s33
    """)
def reset_shard(e):
    S=int(OPT.get("S","8")); lg=S.bit_length()-1
    e(f"""
    s_and_b32 s91, s2, {S-1}
    s_cmp_eq_u32 s20, 0
    s_cbranch_scc0 RESET_DONE
    s_andn2_b32 s67, s2, {S-1}
    s_add_u32 s92, s23, 256
    v_add_u32 v6, s67, v{L}
    v_mov_b32 v7, s92
    v_cmp_eq_u32 vcc, {S}, v{L}
    s_lshl_b32 s92, s91, 2
    s_add_u32 s92, s92, 0x400000
    v_cndmask_b32 v6, v6, v7, vcc
    v_lshlrev_b32 v6, 7, v6
    v_mov_b32 v7, 0
    s_mov_b64 exec, {hex((1<<(S+1))-1)}
    buffer_store_dword v7, v6, s[16:19], s92 offen sc1
    s_mov_b64 exec, -1
    RESET_DONE:
    """)
def signal_shard(e):
    S=int(OPT.get("S","8")); lg=S.bit_length()-1
    sp=int(OPT.get("sp",str(128//S)))
    e(f"""
    s_waitcnt vmcnt(0)
    s_barrier
    s_cmp_eq_u32 s20, 0
    s_cbranch_scc0 POLL_DONE
    s_lshl_b32 s64, s30, 7
    s_mul_i32 s65, s91, {sp}
    s_add_u32 s64, s64, s65
    v_mov_b32 v4, s64
    v_mov_b32 v5, 1
    s_mov_b64 exec, 1
    buffer_atomic_add v5, v4, s[60:63], 0 offen sc0 sc1
    s_waitcnt vmcnt(0)""")
    stamp(e,6)
    e(f"""
    v_readfirstlane_b32 s64, v5
    s_cmp_eq_u32 s64, {128//S-1}
    s_cbranch_scc0 POLL_PRE
    s_mov_b64 exec, -1
    v_lshlrev_b32 v4, 7, v2
    s_lshl_b32 s65, s30, 14
    s_lshl_b32 s66, s91, 2
    s_add_u32 s65, s65, s66
    s_add_u32 s65, s65, 0x400000
    s_add_u32 s64, s65, 8192
    v_mov_b32 v5, 1
    s_nop 0
    buffer_store_dword v5, v4, s[16:19], s65 offen sc1
    buffer_store_dword v5, v4, s[16:19], s64 offen sc1
    s_mov_b64 exec, 1
    s_lshl_b32 s65, s30, 7
    s_add_u32 s65, s65, s66
    s_add_u32 s65, s65, 0x408000
    buffer_store_dword v5, v4, s[16:19], s65 offen sc1
    s_branch POLL_PRE
    POLL_SPECIAL:
    s_cmp_eq_u32 s20, 0
    s_cbranch_scc0 POLL_DONE
    POLL_PRE:
    s_mov_b64 exec, -1
    s_lshl_b32 s67, s2, 7
    s_add_u32 s67, s67, 0x400000
    v_lshlrev_b32 v4, 2, v2
    s_mov_b32 s65, 0x40000
    s_mov_b64 exec, {hex((1<<S)-1)}
    POLL:
    buffer_load_dword v5, v4, s[16:19], s67 offen sc1
    s_sub_u32 s65, s65, 1
    s_cbranch_scc1 POLL_OUT
    s_waitcnt vmcnt(0)
    v_cmp_eq_u32 vcc, 1, v5
    s_nop 4
    s_cmp_eq_u32 vcc_lo, {hex((1<<S)-1)}
    s_cbranch_scc0 POLL
    POLL_OUT:
    s_mov_b64 exec, -1
    POLL_DONE:
    s_barrier
    """)
def tag_load(e,special):
    br="s2" if special else "s23"
    if special: e("s_and_b32 s93, s2, 1\ns_lshl_b32 s93, s93, 8")
    else: e("s_lshl_b32 s93, s23, 8")
    e("""
    s_add_u32 s93, s93, %d
    buffer_load_dword v1, off, s[16:19], s93 sc1
    """%(EOFF() if OPT.get("sig")=="wtag" else 0x408000))
def tag_addr(e):
    R=int(OPT.get("R","8"))
    e(f"""
    s_lshl_b32 s66, s30, 14
    s_add_u32 s66, s66, 0x400000
    s_and_b32 s64, s2, {R-1}
    s_lshl_b32 s64, s64, 11
    s_add_u32 s67, s66, s64
    v_lshrrev_b32 v6, 2, v{L}
    v_and_b32 v5, 3, v{L}
    v_lshlrev_b32 v6, 8, v6
    v_lshl_or_b32 v6, v5, 4, v6
    """)
def signal_tag(e):
    R=int(OPT.get("R","8"))
    tag_addr(e)
    e(f"""
    s_and_b32 s64, s2, 7
    s_lshl_b32 s65, s64, 8
    s_add_u32 s65, s65, s66
    s_bfe_u32 s64, s2, 0x40003
    s_lshl_b32 s64, s64, 2
    s_add_u32 s92, s65, s64
    v_lshlrev_b32 v4, 11, v{L}
    s_mov_b32 s65, 0x40000
    s_waitcnt vmcnt(0)
    v_add_u32 v1, 0x9e3779b9, v1
    s_barrier
    s_cmp_eq_u32 s20, 0
    s_cbranch_scc0 POLL_DONE
    s_mov_b64 exec, {hex((1<<R)-1)}
    buffer_atomic_swap v1, v4, s[16:19], s92 offen sc1
    s_branch POLL_PRE
    POLL_SPECIAL:""")
    tag_addr(e)
    e(f"""
    s_mov_b32 s65, 0x40000
    s_waitcnt vmcnt(0)
    v_add_u32 v1, 0x9e3779b9, v1
    s_cmp_eq_u32 s20, 0
    s_cbranch_scc0 POLL_DONE
    POLL_PRE:""")
    stamp(e,6)
    e(f"""
    s_mov_b32 exec_lo, -1
    s_mov_b32 exec_hi, 0
    POLL:
    buffer_load_dwordx4 v[88:91], v6, s[16:19], s67 offen sc1
    s_sub_u32 s65, s65, 1
    s_cbranch_scc1 POLL_OUT
    s_waitcnt vmcnt(0)
    v_xor_b32 v88, v88, v1
    v_xor_b32 v89, v89, v1
    v_xor_b32 v90, v90, v1
    v_xor_b32 v91, v91, v1
    v_or3_b32 v88, v88, v89, v90
    v_or_b32 v88, v88, v91
    v_cmp_ne_u32 vcc, 0, v88
    s_cbranch_vccnz POLL
    POLL_OUT:
    s_cmp_lt_u32 s2, 256
    s_cbranch_scc1 NO_EPOCH
    s_mov_b64 exec, 1
    s_lshl_b32 s64, s30, 8
    s_add_u32 s64, s64, 0x408000
    buffer_store_dword v1, off, s[16:19], s64 sc1
    NO_EPOCH:
    s_mov_b64 exec, -1
    POLL_DONE:
    s_barrier
    """)
def NLp():
    NL=int(OPT.get("NL","1")); sp=int(OPT.get("sp","256")); return NL,sp
def EOFF():
    NL,sp=NLp(); return 0x400000+128*NL*sp
def vq(e):
    NL,sp=NLp()
    if NL==1: e(f"v_and_b32 v6, 3, v{L}\nv_lshlrev_b32 v6, 4, v6")
    elif NL==4: e(f"v_and_b32 v6, 3, v{L}\nv_mul_u32_u24 v6, {sp}, v6")
    elif NL==2: e(f"v_bfe_u32 v6, v{L}, 1, 1\nv_and_b32 v5, 1, v{L}\nv_mul_u32_u24 v6, {sp}, v6\nv_lshl_add_u32 v6, v5, 4, v6")
def wtag_addr(e):
    NL,sp=NLp(); G=NL*sp
    e(f"""
    s_mul_i32 s66, s30, {64*G}
    s_add_u32 s66, s66, 0x400000
    s_lshl_b32 s64, s34, 3
    s_add_u32 s64, s64, s20
    s_mul_i32 s64, s64, {G}
    s_add_u32 s67, s66, s64
    """)
    vq(e)
def signal_wtag(e):
    NL,sp=NLp(); G=NL*sp; per=16//NL
    wtag_addr(e)
    e(f"""
    s_lshl_b32 s64, s20, 3
    s_add_u32 s64, s64, s21
    s_mul_i32 s64, s64, {G}
    s_lshr_b32 s65, s22, {per.bit_length()-1}
    s_mul_i32 s65, s65, {sp}
    s_add_u32 s64, s64, s65
    s_and_b32 s65, s22, {per-1}
    s_lshl_b32 s65, s65, 2
    s_add_u32 s64, s64, s65
    s_add_u32 s92, s64, s66
    s_mov_b32 s65, 0x40000
    s_waitcnt vmcnt(0)
    v_add_u32 v1, 0x9e3779b9, v1
    s_mov_b64 exec, 1
    buffer_atomic_swap v1, off, s[16:19], s92 sc1
    s_mov_b64 exec, -1""")
    if OPT.get("b3s"): p2_b3(e)
    if OPT.get("share") and OPT.get("shpos")=="S":
        for q in range(14): e(f"ds_read_b128 v[{8+4*q}:{11+4*q}], v0 offset:{q*1024}")
    if OPT.get("cbafter"):
        p2_consts_b(e)
        vq(e)
    e("""
    s_branch POLL_PRE
    POLL_SPECIAL:""")
    wtag_addr(e)
    e(f"""
    s_mov_b32 s65, 0x40000
    s_waitcnt vmcnt(0)
    v_add_u32 v1, 0x9e3779b9, v1
    POLL_PRE:""")
    stamp(e,6)
    b1_win(e,"S")
    e(f"""
    s_mov_b64 exec, 15
    POLL:
    buffer_load_dwordx4 v[88:91], v6, s[16:19], s67 offen sc1
    s_sub_u32 s65, s65, 1
    s_cbranch_scc1 POLL_OUT
    s_waitcnt vmcnt(0)
    v_xor_b32 v88, v88, v1
    v_xor_b32 v89, v89, v1
    v_xor_b32 v90, v90, v1
    v_xor_b32 v91, v91, v1
    v_or3_b32 v88, v88, v89, v90
    v_or_b32 v88, v88, v91
    v_cmp_ne_u32 vcc, 0, v88
    s_cbranch_vccnz POLL
    POLL_OUT:
    s_mov_b64 exec, -1
    """)
OOL=[]
def signal_wtag2(e):
    def addr(x):
        x(f"""
        s_lshl_b32 s66, s30, 14
        s_add_u32 s66, s66, 0x400000
        s_lshl_b32 s64, s34, 11
        s_lshl_b32 s65, s20, 8
        s_add_u32 s67, s66, s64
        s_add_u32 s67, s67, s65
        v_lshlrev_b32 v6, 2, v{L}
        """)
    addr(e)
    e(f"""
    s_lshl_b32 s64, s21, 8
    s_lshl_b32 s65, s22, 2
    s_add_u32 s64, s64, s65
    s_add_u32 s64, s64, s26
    s_add_u32 s92, s64, s66
    s_mov_b32 s65, 0x40000
    s_waitcnt vmcnt(0)
    v_add_u32 v1, 0x9e3779b9, v1
    s_mov_b64 exec, 1
    buffer_atomic_swap v1, off, s[16:19], s92 sc1
    s_mov_b64 exec, -1""")
    if OPT.get("b3s"): p2_b3(e)
    e("POLL_PRE:")
    stamp(e,6)
    e(f"""
    s_mov_b32 m0, s26
    s_mov_b64 exec, 0xffff
    POLL:
    buffer_load_dword v88, v6, s[16:19], s67 offen sc1
    s_sub_u32 s65, s65, 1
    s_cbranch_scc1 POLL_OUT
    s_waitcnt vmcnt(0)
    v_cmp_ne_u32 vcc, v88, v1
    s_cbranch_vccnz POLL
    POLL_OUT:
    s_mov_b64 exec, -1
    """)
    o=E()
    o("POLL_SPECIAL:")
    addr(o)
    o(f"""
    s_mov_b32 s65, 0x40000
    s_waitcnt vmcnt(0)
    v_add_u32 v1, 0x9e3779b9, v1
    s_branch POLL_PRE
    """)
    OOL.append(o)
def epoch_update2(e):
    e("""
    s_cmp_ge_u32 s2, 256
    s_cbranch_scc1 EPOCH_OOL
    EPOCH_RET:
    """)
    o=E()
    o("""
    EPOCH_OOL:
    s_cmp_eq_u32 s20, 0
    s_cbranch_scc0 EPOCH_RET
    s_mov_b64 exec, 1
    s_lshl_b32 s64, s30, 8
    s_add_u32 s64, s64, %d
    buffer_store_dword v1, off, s[16:19], s64 sc1
    s_mov_b64 exec, -1
    s_branch EPOCH_RET
    """%EOFF())
    OOL.append(o)
def epoch_update(e):
    e("""
    s_cmp_lt_u32 s2, 256
    s_cbranch_scc1 NO_EPOCH
    s_cmp_eq_u32 s20, 0
    s_cbranch_scc0 NO_EPOCH
    s_mov_b64 exec, 1
    s_lshl_b32 s64, s30, 8
    s_add_u32 s64, s64, %d
    buffer_store_dword v1, off, s[16:19], s64 sc1
    s_mov_b64 exec, -1
    NO_EPOCH:
    """%EOFF())
def reset_line(e,sfx=""):
    if OPT.get("sig") in ("tag","wtag"):
        tag_load(e,sfx!="")
        return
    if OPT.get("sig")=="shard":
        if sfx=="": reset_shard(e)
        return
    if OPT.get("sig")!="last": return
    e(f"""
    s_lshl_b32 s67, s2, 7
    s_add_u32 s67, s67, 0x400000
    s_cmp_eq_u32 s20, 0
    s_cbranch_scc0 RESET_DONE{sfx}
    v_mov_b32 v6, s67
    v_mov_b32 v7, 0
    s_mov_b64 exec, 1
    buffer_store_dword v7, v6, s[16:19], 0 offen sc1
    s_mov_b64 exec, -1
    RESET_DONE{sfx}:
    """)
def signal_last(e):
    e("""
    SIGNAL:
    s_waitcnt vmcnt(0)
    s_barrier
    s_cmp_eq_u32 s20, 0
    s_cbranch_scc0 POLL_DONE
    s_lshl_b32 s64, s30, 7
    v_mov_b32 v4, s64
    v_mov_b32 v5, 1
    s_mov_b64 exec, 1
    buffer_atomic_add v5, v4, s[60:63], 0 offen sc0 sc1
    s_waitcnt vmcnt(0)""")
    stamp(e,6)
    e("""
    v_readfirstlane_b32 s64, v5
    s_cmp_eq_u32 s64, 128
    s_cbranch_scc0 POLL_PRE
    s_mov_b64 exec, -1
    v_lshlrev_b32 v4, 7, v2
    s_lshl_b32 s65, s30, 14
    s_add_u32 s65, s65, 0x400000
    s_add_u32 s66, s65, 8192
    v_mov_b32 v5, 1
    s_nop 0
    buffer_store_dword v5, v4, s[16:19], s65 offen sc1
    buffer_store_dword v5, v4, s[16:19], s66 offen sc1
    s_mov_b64 exec, 1
    s_lshl_b32 s65, s30, 7
    s_add_u32 s65, s65, 0x408000
    buffer_store_dword v5, v4, s[16:19], s65 offen sc1
    s_branch POLL_OUT
    POLL_PRE:
    v_mov_b32 v4, s67
    s_mov_b32 s65, 0x40000
    POLL:
    buffer_load_dword v5, v4, s[16:19], 0 offen sc1
    s_sub_u32 s65, s65, 1
    s_cbranch_scc1 POLL_OUT
    s_waitcnt vmcnt(0)
    v_readfirstlane_b32 s64, v5
    s_cmp_eq_u32 s64, 1
    s_cbranch_scc0 POLL
    POLL_OUT:
    s_mov_b64 exec, -1
    POLL_DONE:
    s_barrier
    """)
def dma_addr(e,sfx=''):
    e(f"""
    v_lshlrev_b32 v3, 4, v{L}
    s_lshl_b32 s38, s30, 21
    s_lshl_b32 s39, s32, 14
    s_add_u32 s38, s38, s39
    s_add_u32 s38, s38, s26
    s_add_u32 s39, s38, 1024
    s_add_u32 s27, s26, 1024
    s_cmp_eq_u32 s32, 0
    s_cbranch_scc0 P2_REG{sfx}
    v_bfe_u32 v4, v{L}, 2, 1
    s_lshr_b32 s40, s31, 1
    v_lshlrev_b32 v4, 30, v4
    v_add_u32 v3, s40, v3
    v_add_u32 v3, v4, v3
    P2_REG{sfx}:
    """)
def dma_addr2(e):
    e(f"""
    v_lshlrev_b32 v3, 4, v{L}
    s_lshl_b32 s38, s30, 21
    s_lshl_b32 s39, s32, 14
    s_add_u32 s38, s38, s39
    s_add_u32 s38, s38, s26
    s_add_u32 s39, s38, 1024
    s_add_u32 s27, s26, 1024
    s_cmp_eq_u32 s32, 0
    s_cbranch_scc1 P2_SPEC_OOL
    P2_SPEC_RET:
    """)
    o=E()
    o(f"""
    P2_SPEC_OOL:
    v_bfe_u32 v4, v{L}, 2, 1
    s_lshr_b32 s40, s31, 1
    v_lshlrev_b32 v4, 30, v4
    v_add_u32 v3, s40, v3
    v_add_u32 v3, v4, v3
    s_branch P2_SPEC_RET
    """)
    OOL.append(o)
def dma_issue(e,ld_flags):
    if OPT.get("t2"):
        e(f"""
        buffer_load_dwordx4 v3, s[16:19], s38 offen {ld_flags} lds
        s_mov_b32 m0, s27
        s_nop 0
        buffer_load_dwordx4 v3, s[16:19], s39 offen {ld_flags} lds
        """)
        return
    e(f"""
    s_mov_b32 m0, s26
    s_nop 0
    buffer_load_dwordx4 v3, s[16:19], s38 offen {ld_flags} lds
    s_mov_b32 m0, s27
    s_nop 0
    buffer_load_dwordx4 v3, s[16:19], s39 offen {ld_flags} lds
    """)
def signal(e):
    sig=OPT.get("sig","atomic")
    e("""
    s_waitcnt vmcnt(0)
    s_barrier
    s_cmp_eq_u32 s20, 0
    s_cbranch_scc0 SIG_DONE""")
    if sig=="atomic":
        e("""
        s_lshl_b32 s64, s23, 7
        s_and_b32 s65, s21, 1
        s_lshl_b32 s65, s65, 6
        s_add_u32 s64, s64, s65
        v_mov_b32 v4, s64
        v_mov_b32 v5, 1
        s_mov_b64 exec, 1
        buffer_atomic_add v5, v4, s[60:63], 0 offen sc1
        s_mov_b64 exec, -1""")
    elif sig=="byte":
        e("""
        v_mov_b32 v4, s2
        v_mov_b32 v5, 1
        s_mov_b64 exec, 1
        buffer_store_byte v5, v4, s[60:63], 0 offen sc0 sc1
        s_mov_b64 exec, -1""")
    e("SIG_DONE:")
def poll(e):
    sig=OPT.get("sig","atomic")
    e("""
    s_cmp_eq_u32 s20, 0
    s_cbranch_scc0 POLL_DONE""")
    if sig=="atomic":
        e("""
        v_lshlrev_b32 v4, 6, v2
        s_lshl_b32 s64, s30, 7
        v_add_u32 v4, s64, v4
        s_mov_b32 s65, 0x40000
        s_mov_b64 exec, 3
        POLL:
        buffer_load_dword v5, v4, s[60:63], 0 offen sc1
        s_sub_u32 s65, s65, 1
        s_cbranch_scc1 POLL_OUT
        s_waitcnt vmcnt(0)
        v_cmp_le_u32 vcc, 64, v5
        s_nop 4
        s_cmp_eq_u32 vcc_lo, 3
        s_cbranch_scc0 POLL""")
    else:
        e("""
        v_lshlrev_b32 v4, 4, v2
        s_lshl_b32 s64, s30, 7
        v_add_u32 v4, s64, v4
        s_mov_b32 s65, 0x40000
        s_mov_b32 s66, 0x01010101
        s_mov_b64 exec, 0xff
        POLL:
        buffer_load_dwordx4 v[88:91], v4, s[60:63], 0 offen sc1
        s_sub_u32 s65, s65, 1
        s_cbranch_scc1 POLL_OUT
        s_waitcnt vmcnt(0)
        v_and_b32 v88, v88, v89
        v_and_b32 v90, v90, v91
        v_and_b32 v88, v88, v90
        v_cmp_eq_u32 vcc, s66, v88
        s_nop 4
        s_cmp_eq_u32 vcc_lo, 0xff
        s_cbranch_scc0 POLL""")
    e("""
    POLL_OUT:
    s_mov_b64 exec, -1
    POLL_DONE:
    s_barrier
    """)
def p2_main(e, st_flags=""):
    A=88; D1=96; BF=112; D2=96; X=120; F=96; D3=112; Q=88
    B1=PB1
    if DIAG or not OPT.get("t2"): e("s_waitcnt vmcnt(0)")
    stamp(e,8)
    for ks in range(2):
        if OPT.get("t2"): e(f"s_waitcnt vmcnt({1-ks})")
        for i in range(2):
            e(f"ds_read_b64_tr_b16 v[{A+4*ks+2*i}:{A+4*ks+2*i+1}], v{vTR2} offset:{ks*1024+i*512}")
    e("s_waitcnt lgkmcnt(2)")
    for ks in range(2):
        if ks==1: e("s_waitcnt lgkmcnt(0)")
        for eh in range(2):
            for cp in range(2):
                d=D1+(eh*2+cp)*4; f=B1+((eh*2+cp)*2+ks)*4
                c="0" if ks==0 else f"v[{d}:{d+3}]"
                e(f"v_mfma_f32_16x16x32_bf16 v[{d}:{d+3}], v[{A+4*ks}:{A+4*ks+3}], v[{f}:{f+3}], {c}")
    e("s_nop 5")
    for eh in range(2):
        re=D1+eh*8; im=re+4
        for p in range(2):
            c=TWC+4*eh+2*p; s_=TWS+4*eh+2*p; t=A+4*p; u=A+4*p+2
            e(f"v_pk_mul_f32 v[{t}:{t+1}], v[{re+2*p}:{re+2*p+1}], v[{c}:{c+1}]")
            e(f"v_pk_mul_f32 v[{u}:{u+1}], v[{im+2*p}:{im+2*p+1}], v[{c}:{c+1}]")
            e(f"v_pk_fma_f32 v[{t}:{t+1}], v[{im+2*p}:{im+2*p+1}], v[{s_}:{s_+1}], v[{t}:{t+1}]")
            e(f"v_pk_fma_f32 v[{u}:{u+1}], v[{re+2*p}:{re+2*p+1}], v[{s_}:{s_+1}], v[{u}:{u+1}] neg_lo:[1,0,0] neg_hi:[1,0,0]")
        for p in range(2):
            t=A+4*p; u=t+2
            e(f"v_cvt_pk_bf16_f32 v{BF+4*eh+p}, v{t}, v{t+1}")
            e(f"v_cvt_pk_bf16_f32 v{BF+4*eh+2+p}, v{u}, v{u+1}")
    e("s_nop 1")
    for eh in range(2):
        for cpp in range(2):
            d=D2+(eh*2+cpp)*4
            e(f"v_mfma_f32_16x16x32_bf16 v[{d}:{d+3}], v[{A2+4*cpp}:{A2+4*cpp+3}], v[{BF+4*eh}:{BF+4*eh+3}], 0")
    e("s_nop 7")
    for r in range(4):
        e(f"v_cvt_pk_bf16_f32 v{X+2*r}, v{D2+r}, v{D2+4+r}")
        e(f"v_cvt_pk_bf16_f32 v{X+2*r+1}, v{D2+8+r}, v{D2+12+r}")
        e(f"ds_write2_b32 v{vXW}, v{X+2*r}, v{X+2*r+1} offset0:{32*r} offset1:{32*r+16}")
    e("s_waitcnt lgkmcnt(0)\ns_barrier")
    stamp(e,9)
    if OPT.get("t2"): epoch_update2(e)
    elif OPT.get("sig")=="wtag": epoch_update(e)
    e("s_and_b32 s58, s32, 127\ns_cmp_eq_u32 s58, 0\ns_cselect_b32 s58, s44, 0\ns_cmp_lg_u32 s58, 0\ns_cbranch_scc1 P2_END")
    for tau in range(4):
        e(f"ds_read2st64_b32 v[{F+4*tau}:{F+4*tau+1}], v{vXR+tau} offset0:0 offset1:8")
        e(f"ds_read2st64_b32 v[{F+4*tau+2}:{F+4*tau+3}], v{vXR+tau} offset0:16 offset1:24")
    for tau in range(4):
        e(f"s_waitcnt lgkmcnt({6-2*tau})")
        c="0" if tau==0 else f"v[{D3}:{D3+15}]"
        e(f"v_mfma_f32_32x32x16_bf16 v[{D3}:{D3+15}], v[{F+4*tau}:{F+4*tau+3}], v[{B3+4*tau}:{B3+4*tau+3}], {c}")
    e("s_nop 11")
    out_swaps(e,D3,Q)
    e(f"""
    buffer_store_dwordx4 v[{Q}:{Q+3}], v{vO}, s[12:15], s56 offen {st_flags}
    buffer_store_dwordx4 v[{Q+4}:{Q+7}], v{vO}, s[12:15], s57 offen {st_flags}
    P2_END:
    """)
def fused(zst="sc1", zld="sc1", ost=""):
    k1=NAME+"_kernel"
    e=E()
    e("""s_cmp_ge_u32 s2, 258
    s_cbranch_scc1 K_END
    s_load_dwordx2 s[4:5], s[0:1], 0
    s_load_dwordx2 s[6:7], s[0:1], 40
    s_load_dwordx2 s[8:9], s[0:1], 96
    s_load_dwordx2 s[56:57], s[0:1], 80""")
    stamp(e,0)
    e(f"""
    v_lshrrev_b32 v1, 6, v0
    v_and_b32 v{L}, 63, v0
    s_nop 0
    v_readfirstlane_b32 s20, v1
    s_lshl_b32 s26, s20, 11
    s_cmp_ge_u32 s2, 256
    s_cbranch_scc1 SPECIAL_WG
    """)
    last=OPT.get("sig")=="last"
    shard=OPT.get("sig")=="shard"
    tag=OPT.get("sig") in ("tag","wtag")
    wtag=OPT.get("sig")=="wtag"
    ZS=(EOFF()+0x1000) if wtag else (0x410000 if (last or shard or tag) else 0x400000)
    p1_issue(e)
    stamp(e,1)
    srd(e,16,8,9,ZS)
    if not wtag: srd(e,60,58,59,256)
    reset_line(e)
    p1_consts(e)
    if OPT.get("share"): share_compute(e)
    else: p2_consts_a(e)
    if OPT.get('st5'): stamp(e,5)
    p1_main(e,zst)
    stamp(e,4)
    srd(e,12,56,57,0x400000)
    p2_setup(e,False)
    b1_win(e,"D")
    if OPT.get("share") and OPT.get("b3s"):
        share_read_interleaved(e,p2_addr_b,int(OPT["share"]))
    elif OPT.get("share") and OPT.get("shpos","D")=="D":
        share_read_interleaved(e,p2_consts_b,int(OPT["share"]))
    elif not OPT.get("cbafter"):
        p2_consts_b(e)
    if OPT.get("t2"): dma_addr2(e)
    else: dma_addr(e)
    if not OPT.get('st5'): stamp(e,5)
    if last: signal_last(e)
    elif shard: signal_shard(e)
    elif wtag and OPT.get("t2"): signal_wtag2(e)
    elif wtag: signal_wtag(e)
    elif tag: signal_tag(e)
    else:
        signal(e)
        e("POLL_START:")
        stamp(e,6)
        poll(e)
    stamp(e,7)
    dma_issue(e,zld)
    b1_win(e,"Z")
    p2_main(e,ost)
    gen.stamp_out(e,0,0,0)
    e("K_END:\ns_endpgm")
    for o in OOL: e.l.extend(o.l)
    e("SPECIAL_WG:\ns_waitcnt lgkmcnt(0)")
    srd(e,16,8,9,ZS)
    if not wtag: srd(e,60,58,59,256)
    reset_line(e,"B")
    p2_consts_a(e)
    srd(e,12,56,57,0x400000)
    p2_setup(e,True)
    b1_win(e,"D")
    p2_consts_b(e)
    dma_addr(e,"B")
    e("s_branch SIGNAL" if last else ("s_branch POLL_SPECIAL" if (shard or tag) else "s_branch POLL_START"))
    s=HEADER+f"; @launch grid=(258,1,1) block=(512,1,1) lds={47104 if OPT.get('share') else 32768}\n"
    s+='.amdgcn_target "amdgcn-amd-amdhsa--gfx950"\n.text\n'
    s+=func(k1,e.txt())
    s+='.section .rodata,"a"\n.p2align 6\n'+kd(k1,128,102)
    return s
if __name__=="__main__":
    mode=sys.argv[1]; out=sys.argv[2]
    args=[a for a in sys.argv[3:] if not a.startswith("-")]
    for a in sys.argv[3:]:
        if a.startswith("-"):
            k,_,v=a[1:].partition("="); OPT[k]=v or "1"
    if mode.endswith("_diag"):
        DIAG=True; gen.DIAG=True
    gen.FUSED=True
    open(out,"w").write(fused(*args))
```

```python
import sys
import gen
from gen import E, vr, srd, NAME, HEADER, func, kd, out_swaps
OPT={}
DIAG=False
def stamp(e,k):
    if DIAG: e(f"s_memrealtime s[70:71]\ns_waitcnt lgkmcnt(0)\ns_mov_b32 s{72+k}, s70")
L=2
A1=104; B2=108; vTR=124; vEW=125; vER=126; vZ=127; H=80; M=81; T=64-26
DAT=116; Da=64; Db=88
def t(k): return f"v{k+T}"
def p1_issue(e):
    e(f"""
    s_and_b32 s21, s2, 7
    s_bfe_u32 s22, s2, 0x40003
    s_bfe_u32 s23, s2, 0x10007
    v_lshrrev_b32 v3, 2, v{L}
    v_lshlrev_b32 v3, 17, v3
    v_and_b32 v4, 3, v{L}
    v_lshl_or_b32 v3, v4, 4, v3
    s_lshl_b32 s24, s20, 14
    s_lshl_b32 s25, s21, 10
    s_add_u32 s24, s24, s25
    s_lshl_b32 s25, s22, 6
    s_add_u32 s24, s24, s25
    s_add_u32 s25, s24, 8192
    s_add_u32 s27, s26, 1024
    s_mov_b32 s14, 0x200000
    s_mov_b32 s15, 0x20000
    s_mov_b32 m0, s26
    s_cmp_eq_u32 s23, 0
    s_waitcnt lgkmcnt(0)
    s_cselect_b32 s12, s4, s6
    s_cselect_b32 s13, s5, s7
    buffer_load_dwordx4 v3, s[12:15], s24 offen {OPT.get("xf","").replace("+"," ")} lds
    s_mov_b32 m0, s27
    s_nop 0
    buffer_load_dwordx4 v3, s[12:15], s25 offen {OPT.get("xf","").replace("+"," ")} lds
    """)
def p1_consts(e):
    e(f"""
    v_lshrrev_b32 v{H}, 5, v{L}
    v_and_b32 v{M}, 31, v{L}
    v_bfe_u32 v4, v{M}, 1, 3
    v_and_b32 v5, 1, v{M}
    v_and_b32 v6, 15, v{M}
    v_cmp_eq_u32 vcc, 1, v6
    v_cvt_f32_u32 v7, v4
    v_cvt_f32_u32 {t(26)}, v5
    v_mul_f32 v7, 0x3d800000, v7
    v_mul_f32 {t(26)}, 0x3e800000, {t(26)}
    v_cndmask_b32 v7, v7, 0.5, vcc
    v_cndmask_b32 {t(26)}, {t(26)}, 0, vcc
    v_lshlrev_b32 {t(27)}, 3, v{H}
    v_cvt_f32_u32 {t(27)}, {t(27)}
    v_fma_f32 {t(26)}, {t(27)}, v7, {t(26)}
    """)
    if OPT.get("cheb"):
        e(f"""
        v_cos_f32 {t(28)}, {t(26)}
        v_add_f32 {t(27)}, {t(26)}, v7
        v_cos_f32 {t(36)}, v7
        v_cos_f32 {t(29)}, {t(27)}
        s_nop 0
        v_add_f32 {t(36)}, {t(36)}, {t(36)}
        """)
        for jj in range(2,8):
            e(f"v_fma_f32 {t(28+jj)}, {t(36)}, {t(27+jj)}, -{t(26+jj)}")
            if jj%2==1: e(f"v_cvt_pk_bf16_f32 v{A1+jj//2-1}, {t(28+jj-3)}, {t(29+jj-3)}")
        e(f"v_cvt_pk_bf16_f32 v{A1+3}, {t(34)}, {t(35)}")
    else:
        for jj in range(8):
            if jj>0: e(f"v_add_f32 {t(26)}, {t(26)}, v7")
            e(f"v_cos_f32 {t(28+jj)}, {t(26)}")
        e("s_nop 0")
        for q in range(4): e(f"v_cvt_pk_bf16_f32 v{A1+q}, {t(28+2*q)}, {t(29+2*q)}")
    e(f"""
    v_lshrrev_b32 v4, 4, v{M}
    v_and_b32 v5, 7, v{M}
    v_lshl_or_b32 v4, v4, 3, v5
    v_bfe_u32 v5, v{M}, 3, 1
    v_cvt_f32_u32 v6, v5
    v_mul_f32 v6, 0x3e800000, v6
    s_cmp_eq_u32 s20, 0
    s_cbranch_scc1 P1_SPECIAL
    v_lshlrev_b32 v7, 4, v4
    v_add_u32 v7, s20, v7
    v_mov_b32 {t(26)}, v6
    v_add_f32 {t(27)}, 0xbe800000, v6
    v_mov_b32 {t(28)}, -1
    s_branch P1_COMMON
    P1_SPECIAL:
    v_lshlrev_b32 v7, 4, v4
    v_cmp_le_u32 vcc, 8, v4
    v_subrev_u32 {t(29)}, 120, v7
    v_mov_b32 {t(28)}, 0xffff
    v_mov_b32 {t(30)}, 0xffff0000
    v_cndmask_b32 v7, v7, {t(29)}, vcc
    v_cndmask_b32 {t(28)}, {t(28)}, {t(30)}, vcc
    v_cmp_eq_u32 vcc, 8, v{M}
    v_mov_b32 {t(29)}, 0x80
    v_mov_b32 {t(26)}, v6
    v_cndmask_b32 v7, v7, {t(29)}, vcc
    v_cndmask_b32 {t(26)}, {t(26)}, 0, vcc
    s_nop 0
    v_mov_b32 {t(27)}, {t(26)}
    P1_COMMON:
    v_cvt_f32_u32 v7, v7
    v_lshlrev_b32 {t(29)}, 2, v{H}
    v_cvt_f32_u32 {t(29)}, {t(29)}
    v_mul_f32 v7, 0x3b800000, v7
    v_fma_f32 {t(26)}, {t(29)}, v7, {t(26)}
    v_fma_f32 {t(27)}, {t(29)}, v7, {t(27)}
    """)
    if not OPT.get("cheb"): e(f"v_mul_f32 {t(29)}, 4.0, v7")
    if OPT.get("cheb"):
        P=[72,74,76]; m=78
        def cv(n,dst):
            p=P[n%3]
            e(f"v_cvt_pk_bf16_f32 v{dst}, v{p}, v{p+1}")
        e(f"""
        v_cos_f32 v72, {t(26)}
        v_cos_f32 v73, {t(27)}
        v_add_f32 {t(26)}, {t(26)}, v7
        v_add_f32 {t(27)}, {t(27)}, v7
        v_cos_f32 v78, v7
        v_cos_f32 v74, {t(26)}
        v_cos_f32 v75, {t(27)}
        """)
        cv(0,B2+0)
        e("v_add_f32 v78, v78, v78")
        cv(1,B2+1)
        for n in range(2,12):
            d=P[n%3]; a_=P[(n-1)%3]; b_=P[(n-2)%3]
            e(f"v_pk_fma_f32 v[{d}:{d+1}], v[{a_}:{a_+1}], v[{m}:{m+1}], v[{b_}:{b_+1}] op_sel_hi:[1,0,1] neg_lo:[0,0,1] neg_hi:[0,0,1]")
            if n<4: cv(n,B2+n)
            if n>=8: cv(n,B2+n-4)
        e("s_cmp_eq_u32 s20, 0\ns_cbranch_scc0 P1_NOMASK")
        for q in range(8): e(f"v_and_b32 v{B2+q}, v{B2+q}, {t(28)}")
        e("P1_NOMASK:")
    else:
        for ks in range(2):
            for x in range(4):
                e(f"v_cos_f32 {t(30)}, {t(26)}\nv_cos_f32 {t(31)}, {t(27)}")
                if x<3: e(f"v_add_f32 {t(26)}, {t(26)}, v7\nv_add_f32 {t(27)}, {t(27)}, v7")
                elif ks==0: e(f"v_add_f32 {t(26)}, {t(26)}, v7\nv_add_f32 {t(27)}, {t(27)}, v7\nv_add_f32 {t(26)}, {t(26)}, {t(29)}\nv_add_f32 {t(27)}, {t(27)}, {t(29)}")
                else: e("s_nop 0")
                e(f"v_cvt_pk_bf16_f32 v{B2+4*ks+x}, {t(30)}, {t(31)}")
        for q in range(8): e(f"v_and_b32 v{B2+q}, v{B2+q}, {t(28)}")
    e(f"""
    v_bfe_u32 v4, v{L}, 2, 2
    v_lshl_or_b32 v4, v{H}, 3, v4
    v_lshlrev_b32 v4, 6, v4
    v_bfe_u32 v5, v{L}, 4, 1
    v_lshl_or_b32 v4, v5, 5, v4
    v_and_b32 v5, 3, v{L}
    v_lshl_or_b32 v4, v5, 3, v4
    v_add_u32 v{vTR}, s26, v4
    s_lshl_b32 s28, s20, 8
    s_add_u32 s28, s28, 16384
    v_lshlrev_b32 v4, 3, v{M}
    v_lshl_or_b32 v5, v{H}, 12, v4
    v_add_u32 v{vEW}, s28, v5
    s_add_u32 s28, s26, 16384
    v_lshl_or_b32 v5, v{H}, 9, v4
    v_add_u32 v{vER}, s28, v5
    v_and_b32 v4, 7, v{L}
    v_lshlrev_b32 v4, 14, v4
    v_bfe_u32 v5, v{L}, 3, 1
    v_lshl_or_b32 v4, v5, 6, v4
    v_bfe_u32 v5, v{L}, 4, 1
    v_lshl_or_b32 v4, v5, 5, v4
    v_lshl_or_b32 v{vZ}, v{H}, 4, v4
    s_lshl_b32 s28, s23, 21
    s_lshl_b32 s29, s20, 18
    s_add_u32 s28, s28, s29
    s_lshl_b32 s29, s21, 11
    s_add_u32 s28, s28, s29
    s_lshl_b32 s29, s22, 7
    s_add_u32 s28, s28, s29
    s_add_u32 s29, s28, 0x20000
    """)
def p1_main(e, st_flags):
    B0=DAT; B1=DAT+4; X=DAT; F=DAT
    NX=1 if OPT.get("sig") in ("tag","wtag") else 0
    if DIAG: e("s_waitcnt vmcnt(0)")
    stamp(e,2)
    e(f"""
    s_waitcnt vmcnt({1+NX})
    ds_read_b64_tr_b16 v[{B0}:{B0+1}], v{vTR} offset:0
    ds_read_b64_tr_b16 v[{B0+2}:{B0+3}], v{vTR} offset:256
    s_waitcnt vmcnt({NX})
    ds_read_b64_tr_b16 v[{B1}:{B1+1}], v{vTR} offset:1024
    ds_read_b64_tr_b16 v[{B1+2}:{B1+3}], v{vTR} offset:1280
    s_waitcnt lgkmcnt(2)
    v_mfma_f32_32x32x16_bf16 v[{Da}:{Da+15}], v[{A1}:{A1+3}], v[{B0}:{B0+3}], 0
    s_waitcnt lgkmcnt(0)
    v_mfma_f32_32x32x16_bf16 v[{Db}:{Db+15}], v[{A1}:{A1+3}], v[{B1}:{B1+3}], 0
    s_nop 10
    """)
    offs=[0,2048,8192,10240]
    for mu in range(4):
        e(f"v_cvt_pk_bf16_f32 v{X+2*mu}, v{Da+2*mu}, v{Da+2*mu+1}")
        e(f"v_cvt_pk_bf16_f32 v{X+2*mu+1}, v{Db+2*mu}, v{Db+2*mu+1}")
        e(f"ds_write_b64 v{vEW}, v[{X+2*mu}:{X+2*mu+1}] offset:{offs[mu]}")
    e("s_waitcnt vmcnt(0) lgkmcnt(0)\ns_barrier")
    stamp(e,3)
    for ks in range(2):
        for sg in range(2):
            e(f"ds_read_b64 v[{F+4*ks+2*sg}:{F+4*ks+2*sg+1}], v{vER} offset:{(4*ks+sg)*256}")
    e(f"""
    s_waitcnt lgkmcnt(2)
    v_mfma_f32_32x32x16_bf16 v[{Da}:{Da+15}], v[{F}:{F+3}], v[{B2}:{B2+3}], 0
    s_waitcnt lgkmcnt(0)
    v_mfma_f32_32x32x16_bf16 v[{Da}:{Da+15}], v[{F+4}:{F+7}], v[{B2+4}:{B2+7}], v[{Da}:{Da+15}]
    s_nop 10
    """)
    out_swaps(e,Da,X)
    e(f"""
    buffer_store_dwordx4 v[{X}:{X+3}], v{vZ}, s[16:19], s28 offen {st_flags}
    buffer_store_dwordx4 v[{X+4}:{X+7}], v{vZ}, s[16:19], s29 offen {st_flags}
    """)
PB1=8; TWC=40; TWS=48; A2=56; B3=64; vTR2=80; vXW=81; vXR=82; vO=86
def b1_init(e):
    e(f"""
    v_and_b32 v99, 15, v{L}
    v_lshrrev_b32 v100, 4, v{L}
    v_cvt_f32_u32 v99, v99
    v_cvt_f32_u32 v100, v100
    v_mul_f32 v96, 0x3d000000, v99
    v_add_f32 v97, v100, v100
    v_mul_f32 v98, 0x41000000, v96
    v_mul_f32 v97, v97, v96
    """)
def b1_block(e,k):
    ks=k>>1; i=k&1
    fr=lambda eh,cp: PB1+((eh*2+cp)*2+ks)*4
    e(f"""
    v_add_f32 v99, v97, v96
    v_cos_f32 v100, v97
    v_cos_f32 v101, v99
    v_sin_f32 v102, v97
    v_sin_f32 v103, v99
    v_add_f32 v97, v97, v98
    v_cvt_pk_bf16_f32 v{fr(0,0)+2*i}, v100, v101
    v_cvt_pk_bf16_f32 v{fr(0,1)+2*i+1}, v100, v101
    v_cvt_pk_bf16_f32 v{fr(1,0)+2*i}, v100, -v101
    v_cvt_pk_bf16_f32 v{fr(1,1)+2*i+1}, v100, -v101
    v_cvt_pk_bf16_f32 v{fr(0,0)+2*i+1}, v102, v103
    v_cvt_pk_bf16_f32 v{fr(0,1)+2*i}, -v102, -v103
    v_cvt_pk_bf16_f32 v{fr(1,0)+2*i+1}, v102, -v103
    v_cvt_pk_bf16_f32 v{fr(1,1)+2*i}, -v102, v103
    """)
def b1_win(e,win,special=False):
    pl=OPT.get("b1","XXXX")
    order="XDSZ"
    first=min(order.index(c) for c in pl)
    if order[first]==win: b1_init(e)
    for k,c in enumerate(pl):
        if c==win: b1_block(e,k)
def p2_consts_a(e):
    N=4; G=5
    e(f"""
    v_and_b32 v{N}, 15, v{L}
    v_lshrrev_b32 v{G}, 4, v{L}
    v_cvt_f32_u32 v6, v{N}
    v_cvt_f32_u32 v7, v{G}
    v_mul_f32 v87, 0x3b000000, v6
    v_mul_f32 v89, 4.0, v7
    """)
    for eh in range(2):
        if eh==1: e("v_add_f32 v87, 0x3d000000, v87")
        e("v_mul_f32 v88, v89, v87")
        for r in range(4):
            e(f"v_cos_f32 v{TWC+4*eh+r}, v88\nv_sin_f32 v{TWS+4*eh+r}, v88")
            if r<3: e("v_add_f32 v88, v88, v87")
    e(f"""
    v_mul_f32 v87, 0x3d800000, v6
    v_mul_f32 v88, v89, v87
    """)
    for r in range(4):
        e(f"v_cos_f32 v{90+r}, v88\nv_sin_f32 v{94+r}, v88")
        if r<3: e("v_add_f32 v88, v88, v87")
    e(f"""
    s_nop 0
    v_cvt_pk_bf16_f32 v{A2+0}, v90, v91
    v_cvt_pk_bf16_f32 v{A2+1}, v92, v93
    v_cvt_pk_bf16_f32 v{A2+2}, v94, v95
    v_cvt_pk_bf16_f32 v{A2+3}, v96, v97
    v_cvt_pk_bf16_f32 v{A2+4}, -v94, -v95
    v_cvt_pk_bf16_f32 v{A2+5}, -v96, -v97
    v_cvt_pk_bf16_f32 v{A2+6}, v90, v91
    v_cvt_pk_bf16_f32 v{A2+7}, v92, v93
    """)
    b1_win(e,"X")
CB=32768
def share_compute(e,sfx=''):
    e(f"""
    v_lshlrev_b32 v0, 4, v{L}
    v_and_b32 v99, 15, v{L}
    v_lshrrev_b32 v100, 4, v{L}
    v_add_u32 v0, {CB}, v0
    v_cvt_f32_u32 v99, v99
    s_cmp_ge_u32 s20, 4
    s_cbranch_scc1 SH_W4{sfx}
    s_lshl_b32 s40, s20, 3
    s_lshr_b32 s41, s20, 1
    v_lshl_add_u32 v100, v100, 1, s40
    v_mul_f32 v96, 0x3d000000, v99
    v_cvt_f32_u32 v100, v100
    s_lshl_b32 s41, s41, 10
    s_and_b32 s42, s20, 1
    v_mul_f32 v97, v100, v96
    s_lshl_b32 s42, s42, 3
    s_add_u32 s41, s41, s42
    v_add_f32 v99, v97, v96
    v_cos_f32 v100, v97
    v_cos_f32 v101, v99
    v_sin_f32 v102, v97
    v_sin_f32 v103, v99
    v_add_u32 v98, s41, v0
    v_cvt_pk_bf16_f32 v88, v100, v101
    v_cvt_pk_bf16_f32 v91, v100, v101
    v_cvt_pk_bf16_f32 v92, v100, -v101
    v_cvt_pk_bf16_f32 v95, v100, -v101
    v_cvt_pk_bf16_f32 v89, v102, v103
    v_cvt_pk_bf16_f32 v90, -v102, -v103
    v_cvt_pk_bf16_f32 v93, v102, -v103
    v_cvt_pk_bf16_f32 v94, -v102, v103
    ds_write_b64 v98, v[88:89] offset:0
    ds_write_b64 v98, v[90:91] offset:2048
    ds_write_b64 v98, v[92:93] offset:4096
    ds_write_b64 v98, v[94:95] offset:6144
    s_branch SH_DONE{sfx}
    SH_W4{sfx}:
    v_cvt_f32_u32 v100, v100
    s_cmp_ge_u32 s20, 6
    v_mul_f32 v89, 4.0, v100
    s_cbranch_scc1 SH_W6{sfx}
    s_and_b32 s40, s20, 1
    s_mul_i32 s41, s40, 0x3d000000
    s_lshl_b32 s40, s40, 10
    v_mul_f32 v87, 0x3b000000, v99
    v_add_u32 v98, s40, v0
    v_add_f32 v87, s41, v87
    v_mul_f32 v88, v89, v87
    """)
    for r in range(4):
        e(f"v_cos_f32 v{92+r}, v88\nv_sin_f32 v{100+r}, v88")
        if r<3: e("v_add_f32 v88, v88, v87")
    e(f"""
    s_nop 0
    ds_write_b128 v98, v[92:95] offset:{8*1024}
    ds_write_b128 v98, v[100:103] offset:{10*1024}
    s_branch SH_DONE{sfx}
    SH_W6{sfx}:
    s_cmp_eq_u32 s20, 6
    s_cbranch_scc0 SH_DONE{sfx}
    v_mul_f32 v87, 0x3d800000, v99
    v_mul_f32 v88, v89, v87
    """)
    for r in range(4):
        e(f"v_cos_f32 v{90+r}, v88\nv_sin_f32 v{94+r}, v88")
        if r<3: e("v_add_f32 v88, v88, v87")
    e(f"""
    s_nop 0
    v_cvt_pk_bf16_f32 v100, v90, v91
    v_cvt_pk_bf16_f32 v101, v92, v93
    v_cvt_pk_bf16_f32 v102, v94, v95
    v_cvt_pk_bf16_f32 v103, v96, v97
    v_cvt_pk_bf16_f32 v88, -v94, -v95
    v_cvt_pk_bf16_f32 v89, -v96, -v97
    v_cvt_pk_bf16_f32 v90, v90, v91
    v_cvt_pk_bf16_f32 v91, v92, v93
    ds_write_b128 v0, v[100:103] offset:{12*1024}
    ds_write_b128 v0, v[88:91] offset:{13*1024}
    SH_DONE{sfx}:
    """)
def share_read_interleaved(e, gen_fn, every):
    t=E(); gen_fn(t)
    q=0; n=0
    for line in t.l:
        e.l.append(line)
        ls=line.strip()
        if ls and not ls.endswith(":") and ls.startswith("v_"):
            n+=1
            if n%every==0 and q<14:
                e(f"ds_read_b128 v[{8+4*q}:{11+4*q}], v0 offset:{q*1024}"); q+=1
    while q<14:
        e(f"ds_read_b128 v[{8+4*q}:{11+4*q}], v0 offset:{q*1024}"); q+=1
def p2_consts_b(e):
    N=4; G=5
    e(f"""
    v_and_b32 v{N}, 15, v{L}
    v_lshrrev_b32 v{G}, 4, v{L}
    v_lshlrev_b32 v6, 3, v{L}
    v_add_u32 v{vTR2}, s26, v6
    s_add_u32 s40, s26, 16384
    v_lshlrev_b32 v6, 2, v{N}
    v_lshl_or_b32 v6, v{G}, 9, v6
    v_add_u32 v{vXW}, s40, v6
    v_and_b32 v6, 31, v{L}
    v_lshrrev_b32 v7, 5, v{L}
    s_and_b32 s43, s20, 3
    s_lshr_b32 s44, s20, 2
    s_lshl_b32 s45, s43, 7
    v_add_u32 v87, s45, v6
    v_lshlrev_b32 v88, 13, v7
    v_add_u32 v88, 16384, v88
    s_cmp_eq_u32 s44, 0
    s_cselect_b32 s46, 0, -1
    s_cselect_b32 s47, 0, 1
    """)
    for tau in range(4):
        e(f"""
        v_xor_b32 v89, s46, v87
        v_add_u32 v89, s47, v89
        v_and_b32 v89, 0x1ff, v89
        v_lshl_add_u32 v{vXR+tau}, v89, 2, v88
        """)
        if tau<3: e("v_add_u32 v87, 32, v87")
    e(f"""
    v_and_b32 v89, 7, v6
    v_lshlrev_b32 v89, 8, v89
    v_add_u32 v89, s33, v89
    v_cvt_f32_u32 v90, v89
    v_mul_f32 v90, 0x3a000000, v90
    v_lshlrev_b32 v91, 2, v7
    v_cvt_f32_u32 v91, v91
    v_mul_f32 v91, v91, v90
    v_lshrrev_b32 v92, 3, v6
    v_cmp_eq_u32 s[48:49], 0, v92
    v_cmp_eq_u32 s[50:51], 1, v92
    v_cmp_eq_u32 s[52:53], 2, v92
    v_cmp_eq_u32 s[54:55], 3, v92
    """)
    for x in range(4):
        e(f"v_cos_f32 v93, v91\nv_sin_f32 v94, v91")
        e("v_add_f32 v91, v91, v90" if x<3 else "s_nop 0")
        e(f"v_cvt_pk_bf16_f32 v95, v93, v94")
        for tau in range(4):
            e(f"v_cndmask_b32 v{B3+4*tau+x}, 0, v95, s[{48+2*tau}:{49+2*tau}]")
    e(f"""
    v_xor_b32 v89, s46, v89
    v_add_u32 v89, s47, v89
    v_and_b32 v89, 0x7ff, v89
    v_lshlrev_b32 v89, 11, v89
    v_bfe_u32 v90, v{L}, 3, 1
    v_lshl_or_b32 v89, v90, 6, v89
    v_bfe_u32 v90, v{L}, 4, 1
    v_lshl_or_b32 v89, v90, 5, v89
    v_lshl_or_b32 v{vO}, v7, 4, v89
    s_lshl_b32 s56, s30, 10
    s_lshl_b32 s57, s43, 8
    s_add_u32 s56, s56, s57
    s_add_u32 s57, s56, 128
    """)
def p2_addr_b(e):
    N=4; G=5
    e(f"""
    v_and_b32 v{N}, 15, v{L}
    v_lshrrev_b32 v{G}, 4, v{L}
    v_lshlrev_b32 v6, 3, v{L}
    v_add_u32 v{vTR2}, s26, v6
    s_add_u32 s40, s26, 16384
    v_lshlrev_b32 v6, 2, v{N}
    v_lshl_or_b32 v6, v{G}, 9, v6
    v_add_u32 v{vXW}, s40, v6
    v_and_b32 v6, 31, v{L}
    v_lshrrev_b32 v7, 5, v{L}
    s_and_b32 s43, s20, 3
    s_lshr_b32 s44, s20, 2
    s_lshl_b32 s45, s43, 7
    v_add_u32 v87, s45, v6
    v_lshlrev_b32 v88, 13, v7
    v_add_u32 v88, 16384, v88
    s_cmp_eq_u32 s44, 0
    s_cselect_b32 s46, 0, -1
    s_cselect_b32 s47, 0, 1
    """)
    for tau in range(4):
        e(f"""
        v_xor_b32 v89, s46, v87
        v_add_u32 v89, s47, v89
        v_and_b32 v89, 0x1ff, v89
        v_lshl_add_u32 v{vXR+tau}, v89, 2, v88
        """)
        if tau<3: e("v_add_u32 v87, 32, v87")
    e(f"""
    v_and_b32 v89, 7, v6
    v_lshlrev_b32 v89, 8, v89
    v_add_u32 v89, s33, v89
    v_xor_b32 v89, s46, v89
    v_add_u32 v89, s47, v89
    v_and_b32 v89, 0x7ff, v89
    v_lshlrev_b32 v89, 11, v89
    v_bfe_u32 v90, v{L}, 3, 1
    v_lshl_or_b32 v89, v90, 6, v89
    v_bfe_u32 v90, v{L}, 4, 1
    v_lshl_or_b32 v89, v90, 5, v89
    v_lshl_or_b32 v{vO}, v7, 4, v89
    s_lshl_b32 s56, s30, 10
    s_lshl_b32 s57, s43, 8
    s_add_u32 s56, s56, s57
    s_add_u32 s57, s56, 128
    """)
def p2_b3(e):
    e(f"""
    v_and_b32 v87, 31, v{L}
    v_lshrrev_b32 v88, 5, v{L}
    v_and_b32 v89, 7, v87
    v_lshlrev_b32 v89, 8, v89
    v_add_u32 v89, s33, v89
    v_cvt_f32_u32 v90, v89
    v_mul_f32 v90, 0x3a000000, v90
    v_lshlrev_b32 v91, 2, v88
    v_cvt_f32_u32 v91, v91
    v_lshrrev_b32 v92, 3, v87
    v_mul_f32 v91, v91, v90
    v_cmp_eq_u32 s[48:49], 0, v92
    v_cmp_eq_u32 s[50:51], 1, v92
    v_cmp_eq_u32 s[52:53], 2, v92
    v_cmp_eq_u32 s[54:55], 3, v92
    """)
    for x in range(4):
        e(f"v_cos_f32 v93, v91\nv_sin_f32 v94, v91")
        e("v_add_f32 v91, v91, v90" if x<3 else "s_nop 0")
        e(f"v_cvt_pk_bf16_f32 v95, v93, v94")
        for tau in range(4):
            e(f"v_cndmask_b32 v{B3+4*tau+x}, 0, v95, s[{48+2*tau}:{49+2*tau}]")
def p2_setup(e, special):
    if special: e("s_and_b32 s30, s2, 1\ns_movk_i32 s31, 128")
    elif OPT.get("sig")=="wtag": e("s_lshr_b32 s30, s2, 7\ns_lshl_b32 s31, s21, 4\ns_or_b32 s31, s31, s22")
    else: e("s_lshr_b32 s30, s2, 7\ns_and_b32 s31, s2, 127")
    e("""
    s_and_b32 s32, s31, 127
    s_lshr_b32 s34, s32, 4
    s_and_b32 s35, s32, 15
    s_lshl_b32 s36, s35, 4
    s_add_u32 s33, s36, s34
    s_sub_u32 s37, s36, 120
    s_cmp_ge_u32 s35, 8
    s_cselect_b32 s37, s37, s36
    s_cmp_eq_u32 s34, 0
    s_cselect_b32 s33, s37, s33
    s_cmp_eq_u32 s31, 128
    s_cselect_b32 s33, 128, s33
    """)
def reset_shard(e):
    S=int(OPT.get("S","8")); lg=S.bit_length()-1
    e(f"""
    s_and_b32 s91, s2, {S-1}
    s_cmp_eq_u32 s20, 0
    s_cbranch_scc0 RESET_DONE
    s_andn2_b32 s67, s2, {S-1}
    s_add_u32 s92, s23, 256
    v_add_u32 v6, s67, v{L}
    v_mov_b32 v7, s92
    v_cmp_eq_u32 vcc, {S}, v{L}
    s_lshl_b32 s92, s91, 2
    s_add_u32 s92, s92, 0x400000
    v_cndmask_b32 v6, v6, v7, vcc
    v_lshlrev_b32 v6, 7, v6
    v_mov_b32 v7, 0
    s_mov_b64 exec, {hex((1<<(S+1))-1)}
    buffer_store_dword v7, v6, s[16:19], s92 offen sc1
    s_mov_b64 exec, -1
    RESET_DONE:
    """)
def signal_shard(e):
    S=int(OPT.get("S","8")); lg=S.bit_length()-1
    sp=int(OPT.get("sp",str(128//S)))
    e(f"""
    s_waitcnt vmcnt(0)
    s_barrier
    s_cmp_eq_u32 s20, 0
    s_cbranch_scc0 POLL_DONE
    s_lshl_b32 s64, s30, 7
    s_mul_i32 s65, s91, {sp}
    s_add_u32 s64, s64, s65
    v_mov_b32 v4, s64
    v_mov_b32 v5, 1
    s_mov_b64 exec, 1
    buffer_atomic_add v5, v4, s[60:63], 0 offen sc0 sc1
    s_waitcnt vmcnt(0)""")
    stamp(e,6)
    e(f"""
    v_readfirstlane_b32 s64, v5
    s_cmp_eq_u32 s64, {128//S-1}
    s_cbranch_scc0 POLL_PRE
    s_mov_b64 exec, -1
    v_lshlrev_b32 v4, 7, v2
    s_lshl_b32 s65, s30, 14
    s_lshl_b32 s66, s91, 2
    s_add_u32 s65, s65, s66
    s_add_u32 s65, s65, 0x400000
    s_add_u32 s64, s65, 8192
    v_mov_b32 v5, 1
    s_nop 0
    buffer_store_dword v5, v4, s[16:19], s65 offen sc1
    buffer_store_dword v5, v4, s[16:19], s64 offen sc1
    s_mov_b64 exec, 1
    s_lshl_b32 s65, s30, 7
    s_add_u32 s65, s65, s66
    s_add_u32 s65, s65, 0x408000
    buffer_store_dword v5, v4, s[16:19], s65 offen sc1
    s_branch POLL_PRE
    POLL_SPECIAL:
    s_cmp_eq_u32 s20, 0
    s_cbranch_scc0 POLL_DONE
    POLL_PRE:
    s_mov_b64 exec, -1
    s_lshl_b32 s67, s2, 7
    s_add_u32 s67, s67, 0x400000
    v_lshlrev_b32 v4, 2, v2
    s_mov_b32 s65, 0x40000
    s_mov_b64 exec, {hex((1<<S)-1)}
    POLL:
    buffer_load_dword v5, v4, s[16:19], s67 offen sc1
    s_sub_u32 s65, s65, 1
    s_cbranch_scc1 POLL_OUT
    s_waitcnt vmcnt(0)
    v_cmp_eq_u32 vcc, 1, v5
    s_nop 4
    s_cmp_eq_u32 vcc_lo, {hex((1<<S)-1)}
    s_cbranch_scc0 POLL
    POLL_OUT:
    s_mov_b64 exec, -1
    POLL_DONE:
    s_barrier
    """)
def tag_load(e,special):
    br="s2" if special else "s23"
    if special: e("s_and_b32 s93, s2, 1\ns_lshl_b32 s93, s93, 8")
    else: e("s_lshl_b32 s93, s23, 8")
    e("""
    s_add_u32 s93, s93, %d
    buffer_load_dword v1, off, s[16:19], s93 sc1
    """%(EOFF() if OPT.get("sig")=="wtag" else 0x408000))
def tag_addr(e):
    R=int(OPT.get("R","8"))
    e(f"""
    s_lshl_b32 s66, s30, 14
    s_add_u32 s66, s66, 0x400000
    s_and_b32 s64, s2, {R-1}
    s_lshl_b32 s64, s64, 11
    s_add_u32 s67, s66, s64
    v_lshrrev_b32 v6, 2, v{L}
    v_and_b32 v5, 3, v{L}
    v_lshlrev_b32 v6, 8, v6
    v_lshl_or_b32 v6, v5, 4, v6
    """)
def signal_tag(e):
    R=int(OPT.get("R","8"))
    tag_addr(e)
    e(f"""
    s_and_b32 s64, s2, 7
    s_lshl_b32 s65, s64, 8
    s_add_u32 s65, s65, s66
    s_bfe_u32 s64, s2, 0x40003
    s_lshl_b32 s64, s64, 2
    s_add_u32 s92, s65, s64
    v_lshlrev_b32 v4, 11, v{L}
    s_mov_b32 s65, 0x40000
    s_waitcnt vmcnt(0)
    v_add_u32 v1, 0x9e3779b9, v1
    s_barrier
    s_cmp_eq_u32 s20, 0
    s_cbranch_scc0 POLL_DONE
    s_mov_b64 exec, {hex((1<<R)-1)}
    buffer_atomic_swap v1, v4, s[16:19], s92 offen sc1
    s_branch POLL_PRE
    POLL_SPECIAL:""")
    tag_addr(e)
    e(f"""
    s_mov_b32 s65, 0x40000
    s_waitcnt vmcnt(0)
    v_add_u32 v1, 0x9e3779b9, v1
    s_cmp_eq_u32 s20, 0
    s_cbranch_scc0 POLL_DONE
    POLL_PRE:""")
    stamp(e,6)
    e(f"""
    s_mov_b32 exec_lo, -1
    s_mov_b32 exec_hi, 0
    POLL:
    buffer_load_dwordx4 v[88:91], v6, s[16:19], s67 offen sc1
    s_sub_u32 s65, s65, 1
    s_cbranch_scc1 POLL_OUT
    s_waitcnt vmcnt(0)
    v_xor_b32 v88, v88, v1
    v_xor_b32 v89, v89, v1
    v_xor_b32 v90, v90, v1
    v_xor_b32 v91, v91, v1
    v_or3_b32 v88, v88, v89, v90
    v_or_b32 v88, v88, v91
    v_cmp_ne_u32 vcc, 0, v88
    s_cbranch_vccnz POLL
    POLL_OUT:
    s_cmp_lt_u32 s2, 256
    s_cbranch_scc1 NO_EPOCH
    s_mov_b64 exec, 1
    s_lshl_b32 s64, s30, 8
    s_add_u32 s64, s64, 0x408000
    buffer_store_dword v1, off, s[16:19], s64 sc1
    NO_EPOCH:
    s_mov_b64 exec, -1
    POLL_DONE:
    s_barrier
    """)
def NLp():
    NL=int(OPT.get("NL","1")); sp=int(OPT.get("sp","256")); return NL,sp
def EOFF():
    NL,sp=NLp(); return 0x400000+128*NL*sp
def vq(e):
    NL,sp=NLp()
    if NL==1: e(f"v_and_b32 v6, 3, v{L}\nv_lshlrev_b32 v6, 4, v6")
    elif NL==4: e(f"v_and_b32 v6, 3, v{L}\nv_mul_u32_u24 v6, {sp}, v6")
    elif NL==2: e(f"v_bfe_u32 v6, v{L}, 1, 1\nv_and_b32 v5, 1, v{L}\nv_mul_u32_u24 v6, {sp}, v6\nv_lshl_add_u32 v6, v5, 4, v6")
def wtag_addr(e):
    NL,sp=NLp(); G=NL*sp
    e(f"""
    s_mul_i32 s66, s30, {64*G}
    s_add_u32 s66, s66, 0x400000
    s_lshl_b32 s64, s34, 3
    s_add_u32 s64, s64, s20
    s_mul_i32 s64, s64, {G}
    s_add_u32 s67, s66, s64
    """)
    vq(e)
def signal_wtag(e):
    NL,sp=NLp(); G=NL*sp; per=16//NL
    wtag_addr(e)
    e(f"""
    s_lshl_b32 s64, s20, 3
    s_add_u32 s64, s64, s21
    s_mul_i32 s64, s64, {G}
    s_lshr_b32 s65, s22, {per.bit_length()-1}
    s_mul_i32 s65, s65, {sp}
    s_add_u32 s64, s64, s65
    s_and_b32 s65, s22, {per-1}
    s_lshl_b32 s65, s65, 2
    s_add_u32 s64, s64, s65
    s_add_u32 s92, s64, s66
    s_mov_b32 s65, 0x40000
    s_waitcnt vmcnt(0)
    v_add_u32 v1, 0x9e3779b9, v1
    s_mov_b64 exec, 1
    buffer_atomic_swap v1, off, s[16:19], s92 sc1
    s_mov_b64 exec, -1""")
    if OPT.get("b3s"): p2_b3(e)
    if OPT.get("share") and OPT.get("shpos")=="S":
        for q in range(14): e(f"ds_read_b128 v[{8+4*q}:{11+4*q}], v0 offset:{q*1024}")
    if OPT.get("cbafter"):
        p2_consts_b(e)
        vq(e)
    e("""
    s_branch POLL_PRE
    POLL_SPECIAL:""")
    wtag_addr(e)
    e(f"""
    s_mov_b32 s65, 0x40000
    s_waitcnt vmcnt(0)
    v_add_u32 v1, 0x9e3779b9, v1
    POLL_PRE:""")
    stamp(e,6)
    b1_win(e,"S")
    e(f"""
    s_mov_b64 exec, 15
    POLL:
    buffer_load_dwordx4 v[88:91], v6, s[16:19], s67 offen sc1
    s_sub_u32 s65, s65, 1
    s_cbranch_scc1 POLL_OUT
    s_waitcnt vmcnt(0)
    v_xor_b32 v88, v88, v1
    v_xor_b32 v89, v89, v1
    v_xor_b32 v90, v90, v1
    v_xor_b32 v91, v91, v1
    v_or3_b32 v88, v88, v89, v90
    v_or_b32 v88, v88, v91
    v_cmp_ne_u32 vcc, 0, v88
    s_cbranch_vccnz POLL
    POLL_OUT:
    s_mov_b64 exec, -1
    """)
OOL=[]
def signal_wtag2(e):
    def addr(x):
        x(f"""
        s_lshl_b32 s66, s30, 14
        s_add_u32 s66, s66, 0x400000
        s_lshl_b32 s64, s34, 11
        s_lshl_b32 s65, s20, 8
        s_add_u32 s67, s66, s64
        s_add_u32 s67, s67, s65
        v_lshlrev_b32 v6, 2, v{L}
        """)
    addr(e)
    e(f"""
    s_lshl_b32 s64, s21, 8
    s_lshl_b32 s65, s22, 2
    s_add_u32 s64, s64, s65
    s_add_u32 s64, s64, s26
    s_add_u32 s92, s64, s66
    s_mov_b32 s65, 0x40000
    s_waitcnt vmcnt(0)
    v_add_u32 v1, 0x9e3779b9, v1
    s_mov_b64 exec, 1
    buffer_atomic_swap v1, off, s[16:19], s92 sc1
    s_mov_b64 exec, -1""")
    if OPT.get("b3s"): p2_b3(e)
    e("POLL_PRE:")
    if OPT.get("prio"): e("s_setprio %s"%OPT["prio"])
    stamp(e,6)
    e(f"""
    s_mov_b32 m0, s26
    s_mov_b64 exec, 0xffff
    POLL:
    buffer_load_dword v88, v6, s[16:19], s67 offen sc1
    s_sub_u32 s65, s65, 1
    s_cbranch_scc1 POLL_OUT
    s_waitcnt vmcnt(0)
    v_cmp_ne_u32 vcc, v88, v1
    s_cbranch_vccnz POLL
    POLL_OUT:
    s_mov_b64 exec, -1
    """)
    o=E()
    o("POLL_SPECIAL:")
    addr(o)
    o(f"""
    s_mov_b32 s65, 0x40000
    s_waitcnt vmcnt(0)
    v_add_u32 v1, 0x9e3779b9, v1
    s_branch POLL_PRE
    """)
    OOL.append(o)
def epoch_update2(e):
    e("""
    s_cmp_ge_u32 s2, 256
    s_cbranch_scc1 EPOCH_OOL
    EPOCH_RET:
    """)
    o=E()
    o("""
    EPOCH_OOL:
    s_cmp_eq_u32 s20, 0
    s_cbranch_scc0 EPOCH_RET
    s_mov_b64 exec, 1
    s_lshl_b32 s64, s30, 8
    s_add_u32 s64, s64, %d
    buffer_store_dword v1, off, s[16:19], s64 sc1
    s_mov_b64 exec, -1
    s_branch EPOCH_RET
    """%EOFF())
    OOL.append(o)
def epoch_update(e):
    e("""
    s_cmp_lt_u32 s2, 256
    s_cbranch_scc1 NO_EPOCH
    s_cmp_eq_u32 s20, 0
    s_cbranch_scc0 NO_EPOCH
    s_mov_b64 exec, 1
    s_lshl_b32 s64, s30, 8
    s_add_u32 s64, s64, %d
    buffer_store_dword v1, off, s[16:19], s64 sc1
    s_mov_b64 exec, -1
    NO_EPOCH:
    """%EOFF())
def reset_line(e,sfx=""):
    if OPT.get("sig") in ("tag","wtag"):
        tag_load(e,sfx!="")
        return
    if OPT.get("sig")=="shard":
        if sfx=="": reset_shard(e)
        return
    if OPT.get("sig")!="last": return
    e(f"""
    s_lshl_b32 s67, s2, 7
    s_add_u32 s67, s67, 0x400000
    s_cmp_eq_u32 s20, 0
    s_cbranch_scc0 RESET_DONE{sfx}
    v_mov_b32 v6, s67
    v_mov_b32 v7, 0
    s_mov_b64 exec, 1
    buffer_store_dword v7, v6, s[16:19], 0 offen sc1
    s_mov_b64 exec, -1
    RESET_DONE{sfx}:
    """)
def signal_last(e):
    e("""
    SIGNAL:
    s_waitcnt vmcnt(0)
    s_barrier
    s_cmp_eq_u32 s20, 0
    s_cbranch_scc0 POLL_DONE
    s_lshl_b32 s64, s30, 7
    v_mov_b32 v4, s64
    v_mov_b32 v5, 1
    s_mov_b64 exec, 1
    buffer_atomic_add v5, v4, s[60:63], 0 offen sc0 sc1
    s_waitcnt vmcnt(0)""")
    stamp(e,6)
    e("""
    v_readfirstlane_b32 s64, v5
    s_cmp_eq_u32 s64, 128
    s_cbranch_scc0 POLL_PRE
    s_mov_b64 exec, -1
    v_lshlrev_b32 v4, 7, v2
    s_lshl_b32 s65, s30, 14
    s_add_u32 s65, s65, 0x400000
    s_add_u32 s66, s65, 8192
    v_mov_b32 v5, 1
    s_nop 0
    buffer_store_dword v5, v4, s[16:19], s65 offen sc1
    buffer_store_dword v5, v4, s[16:19], s66 offen sc1
    s_mov_b64 exec, 1
    s_lshl_b32 s65, s30, 7
    s_add_u32 s65, s65, 0x408000
    buffer_store_dword v5, v4, s[16:19], s65 offen sc1
    s_branch POLL_OUT
    POLL_PRE:
    v_mov_b32 v4, s67
    s_mov_b32 s65, 0x40000
    POLL:
    buffer_load_dword v5, v4, s[16:19], 0 offen sc1
    s_sub_u32 s65, s65, 1
    s_cbranch_scc1 POLL_OUT
    s_waitcnt vmcnt(0)
    v_readfirstlane_b32 s64, v5
    s_cmp_eq_u32 s64, 1
    s_cbranch_scc0 POLL
    POLL_OUT:
    s_mov_b64 exec, -1
    POLL_DONE:
    s_barrier
    """)
def dma_addr(e,sfx=''):
    e(f"""
    v_lshlrev_b32 v3, 4, v{L}
    s_lshl_b32 s38, s30, 21
    s_lshl_b32 s39, s32, 14
    s_add_u32 s38, s38, s39
    s_add_u32 s38, s38, s26
    s_add_u32 s39, s38, 1024
    s_add_u32 s27, s26, 1024
    s_cmp_eq_u32 s32, 0
    s_cbranch_scc0 P2_REG{sfx}
    v_bfe_u32 v4, v{L}, 2, 1
    s_lshr_b32 s40, s31, 1
    v_lshlrev_b32 v4, 30, v4
    v_add_u32 v3, s40, v3
    v_add_u32 v3, v4, v3
    P2_REG{sfx}:
    """)
def dma_addr2(e):
    e(f"""
    v_lshlrev_b32 v3, 4, v{L}
    s_lshl_b32 s38, s30, 21
    s_lshl_b32 s39, s32, 14
    s_add_u32 s38, s38, s39
    s_add_u32 s38, s38, s26
    s_add_u32 s39, s38, 1024
    s_add_u32 s27, s26, 1024
    s_cmp_eq_u32 s32, 0
    s_cbranch_scc1 P2_SPEC_OOL
    P2_SPEC_RET:
    """)
    o=E()
    o(f"""
    P2_SPEC_OOL:
    v_bfe_u32 v4, v{L}, 2, 1
    s_lshr_b32 s40, s31, 1
    v_lshlrev_b32 v4, 30, v4
    v_add_u32 v3, s40, v3
    v_add_u32 v3, v4, v3
    s_branch P2_SPEC_RET
    """)
    OOL.append(o)
def dma_issue(e,ld_flags):
    if OPT.get("t2"):
        e(f"""
        buffer_load_dwordx4 v3, s[16:19], s38 offen {ld_flags} lds
        s_mov_b32 m0, s27
        s_nop 0
        buffer_load_dwordx4 v3, s[16:19], s39 offen {ld_flags} lds
        """)
        return
    e(f"""
    s_mov_b32 m0, s26
    s_nop 0
    buffer_load_dwordx4 v3, s[16:19], s38 offen {ld_flags} lds
    s_mov_b32 m0, s27
    s_nop 0
    buffer_load_dwordx4 v3, s[16:19], s39 offen {ld_flags} lds
    """)
def signal(e):
    sig=OPT.get("sig","atomic")
    e("""
    s_waitcnt vmcnt(0)
    s_barrier
    s_cmp_eq_u32 s20, 0
    s_cbranch_scc0 SIG_DONE""")
    if sig=="atomic":
        e("""
        s_lshl_b32 s64, s23, 7
        s_and_b32 s65, s21, 1
        s_lshl_b32 s65, s65, 6
        s_add_u32 s64, s64, s65
        v_mov_b32 v4, s64
        v_mov_b32 v5, 1
        s_mov_b64 exec, 1
        buffer_atomic_add v5, v4, s[60:63], 0 offen sc1
        s_mov_b64 exec, -1""")
    elif sig=="byte":
        e("""
        v_mov_b32 v4, s2
        v_mov_b32 v5, 1
        s_mov_b64 exec, 1
        buffer_store_byte v5, v4, s[60:63], 0 offen sc0 sc1
        s_mov_b64 exec, -1""")
    e("SIG_DONE:")
def poll(e):
    sig=OPT.get("sig","atomic")
    e("""
    s_cmp_eq_u32 s20, 0
    s_cbranch_scc0 POLL_DONE""")
    if sig=="atomic":
        e("""
        v_lshlrev_b32 v4, 6, v2
        s_lshl_b32 s64, s30, 7
        v_add_u32 v4, s64, v4
        s_mov_b32 s65, 0x40000
        s_mov_b64 exec, 3
        POLL:
        buffer_load_dword v5, v4, s[60:63], 0 offen sc1
        s_sub_u32 s65, s65, 1
        s_cbranch_scc1 POLL_OUT
        s_waitcnt vmcnt(0)
        v_cmp_le_u32 vcc, 64, v5
        s_nop 4
        s_cmp_eq_u32 vcc_lo, 3
        s_cbranch_scc0 POLL""")
    else:
        e("""
        v_lshlrev_b32 v4, 4, v2
        s_lshl_b32 s64, s30, 7
        v_add_u32 v4, s64, v4
        s_mov_b32 s65, 0x40000
        s_mov_b32 s66, 0x01010101
        s_mov_b64 exec, 0xff
        POLL:
        buffer_load_dwordx4 v[88:91], v4, s[60:63], 0 offen sc1
        s_sub_u32 s65, s65, 1
        s_cbranch_scc1 POLL_OUT
        s_waitcnt vmcnt(0)
        v_and_b32 v88, v88, v89
        v_and_b32 v90, v90, v91
        v_and_b32 v88, v88, v90
        v_cmp_eq_u32 vcc, s66, v88
        s_nop 4
        s_cmp_eq_u32 vcc_lo, 0xff
        s_cbranch_scc0 POLL""")
    e("""
    POLL_OUT:
    s_mov_b64 exec, -1
    POLL_DONE:
    s_barrier
    """)
def p2_main(e, st_flags=""):
    A=88; D1=96; BF=112; D2=96; X=120; F=96; D3=112; Q=88
    B1=PB1
    if DIAG or not OPT.get("t2"): e("s_waitcnt vmcnt(0)")
    stamp(e,8)
    for ks in range(2):
        if OPT.get("t2"): e(f"s_waitcnt vmcnt({1-ks})")
        for i in range(2):
            e(f"ds_read_b64_tr_b16 v[{A+4*ks+2*i}:{A+4*ks+2*i+1}], v{vTR2} offset:{ks*1024+i*512}")
    e("s_waitcnt lgkmcnt(2)")
    for ks in range(2):
        if ks==1: e("s_waitcnt lgkmcnt(0)")
        for eh in range(2):
            for cp in range(2):
                d=D1+(eh*2+cp)*4; f=B1+((eh*2+cp)*2+ks)*4
                c="0" if ks==0 else f"v[{d}:{d+3}]"
                e(f"v_mfma_f32_16x16x32_bf16 v[{d}:{d+3}], v[{A+4*ks}:{A+4*ks+3}], v[{f}:{f+3}], {c}")
    e("s_nop 5")
    for eh in range(2):
        re=D1+eh*8; im=re+4
        for p in range(2):
            c=TWC+4*eh+2*p; s_=TWS+4*eh+2*p; t=A+4*p; u=A+4*p+2
            e(f"v_pk_mul_f32 v[{t}:{t+1}], v[{re+2*p}:{re+2*p+1}], v[{c}:{c+1}]")
            e(f"v_pk_mul_f32 v[{u}:{u+1}], v[{im+2*p}:{im+2*p+1}], v[{c}:{c+1}]")
            e(f"v_pk_fma_f32 v[{t}:{t+1}], v[{im+2*p}:{im+2*p+1}], v[{s_}:{s_+1}], v[{t}:{t+1}]")
            e(f"v_pk_fma_f32 v[{u}:{u+1}], v[{re+2*p}:{re+2*p+1}], v[{s_}:{s_+1}], v[{u}:{u+1}] neg_lo:[1,0,0] neg_hi:[1,0,0]")
        for p in range(2):
            t=A+4*p; u=t+2
            e(f"v_cvt_pk_bf16_f32 v{BF+4*eh+p}, v{t}, v{t+1}")
            e(f"v_cvt_pk_bf16_f32 v{BF+4*eh+2+p}, v{u}, v{u+1}")
    e("s_nop 1")
    for eh in range(2):
        for cpp in range(2):
            d=D2+(eh*2+cpp)*4
            e(f"v_mfma_f32_16x16x32_bf16 v[{d}:{d+3}], v[{A2+4*cpp}:{A2+4*cpp+3}], v[{BF+4*eh}:{BF+4*eh+3}], 0")
    e("s_nop 7")
    for r in range(4):
        e(f"v_cvt_pk_bf16_f32 v{X+2*r}, v{D2+r}, v{D2+4+r}")
        e(f"v_cvt_pk_bf16_f32 v{X+2*r+1}, v{D2+8+r}, v{D2+12+r}")
        e(f"ds_write2_b32 v{vXW}, v{X+2*r}, v{X+2*r+1} offset0:{32*r} offset1:{32*r+16}")
    e("s_waitcnt lgkmcnt(0)\ns_barrier")
    stamp(e,9)
    if OPT.get("t2"): epoch_update2(e)
    elif OPT.get("sig")=="wtag": epoch_update(e)
    e("s_and_b32 s58, s32, 127\ns_cmp_eq_u32 s58, 0\ns_cselect_b32 s58, s44, 0\ns_cmp_lg_u32 s58, 0\ns_cbranch_scc1 P2_END")
    for tau in range(4):
        e(f"ds_read2st64_b32 v[{F+4*tau}:{F+4*tau+1}], v{vXR+tau} offset0:0 offset1:8")
        e(f"ds_read2st64_b32 v[{F+4*tau+2}:{F+4*tau+3}], v{vXR+tau} offset0:16 offset1:24")
    for tau in range(4):
        e(f"s_waitcnt lgkmcnt({6-2*tau})")
        c="0" if tau==0 else f"v[{D3}:{D3+15}]"
        e(f"v_mfma_f32_32x32x16_bf16 v[{D3}:{D3+15}], v[{F+4*tau}:{F+4*tau+3}], v[{B3+4*tau}:{B3+4*tau+3}], {c}")
    e("s_nop 11")
    out_swaps(e,D3,Q)
    e(f"""
    buffer_store_dwordx4 v[{Q}:{Q+3}], v{vO}, s[12:15], s56 offen {st_flags}
    buffer_store_dwordx4 v[{Q+4}:{Q+7}], v{vO}, s[12:15], s57 offen {st_flags}
    P2_END:
    """)
def fused(zst="sc1", zld="sc1", ost=""):
    k1=NAME+"_kernel"
    e=E()
    e("""s_cmp_ge_u32 s2, 258
    s_cbranch_scc1 K_END
    s_load_dwordx2 s[4:5], s[0:1], 0
    s_load_dwordx2 s[6:7], s[0:1], 40
    s_load_dwordx2 s[8:9], s[0:1], 96
    s_load_dwordx2 s[56:57], s[0:1], 80""")
    stamp(e,0)
    e(f"""
    v_lshrrev_b32 v1, 6, v0
    v_and_b32 v{L}, 63, v0
    s_nop 0
    v_readfirstlane_b32 s20, v1
    s_lshl_b32 s26, s20, 11
    s_cmp_ge_u32 s2, 256
    s_cbranch_scc1 SPECIAL_WG
    """)
    if OPT.get("prio"): e("s_setprio %s"%OPT["prio"])
    last=OPT.get("sig")=="last"
    shard=OPT.get("sig")=="shard"
    tag=OPT.get("sig") in ("tag","wtag")
    wtag=OPT.get("sig")=="wtag"
    ZS=(EOFF()+0x1000) if wtag else (0x410000 if (last or shard or tag) else 0x400000)
    p1_issue(e)
    stamp(e,1)
    srd(e,16,8,9,ZS)
    if not wtag: srd(e,60,58,59,256)
    reset_line(e)
    p1_consts(e)
    if OPT.get("share"): share_compute(e)
    else: p2_consts_a(e)
    if OPT.get('st5'): stamp(e,5)
    p1_main(e,zst)
    stamp(e,4)
    srd(e,12,56,57,0x400000)
    p2_setup(e,False)
    b1_win(e,"D")
    if OPT.get("share") and OPT.get("b3s"):
        share_read_interleaved(e,p2_addr_b,int(OPT["share"]))
    elif OPT.get("share") and OPT.get("shpos","D")=="D":
        share_read_interleaved(e,p2_consts_b,int(OPT["share"]))
    elif not OPT.get("cbafter"):
        p2_consts_b(e)
    if OPT.get("t2"): dma_addr2(e)
    else: dma_addr(e)
    if not OPT.get('st5'): stamp(e,5)
    if last: signal_last(e)
    elif shard: signal_shard(e)
    elif wtag and OPT.get("t2"): signal_wtag2(e)
    elif wtag: signal_wtag(e)
    elif tag: signal_tag(e)
    else:
        signal(e)
        e("POLL_START:")
        stamp(e,6)
        poll(e)
    stamp(e,7)
    dma_issue(e,zld)
    b1_win(e,"Z")
    p2_main(e,ost)
    gen.stamp_out(e,0,0,0)
    e("K_END:\ns_endpgm")
    for o in OOL: e.l.extend(o.l)
    e("SPECIAL_WG:\ns_waitcnt lgkmcnt(0)")
    srd(e,16,8,9,ZS)
    if not wtag: srd(e,60,58,59,256)
    reset_line(e,"B")
    if OPT.get("spshare"):
        share_compute(e,"B")
        e("s_waitcnt lgkmcnt(0)\ns_barrier")
        for q in range(14): e(f"ds_read_b128 v[{8+4*q}:{11+4*q}], v0 offset:{q*1024}")
    else: p2_consts_a(e)
    srd(e,12,56,57,0x400000)
    p2_setup(e,True)
    b1_win(e,"D")
    p2_consts_b(e)
    dma_addr(e,"B")
    e("s_branch SIGNAL" if last else ("s_branch POLL_SPECIAL" if (shard or tag) else "s_branch POLL_START"))
    s=HEADER+f"; @launch grid=(258,1,1) block=(512,1,1) lds={47104 if OPT.get('share') else 32768}\n"
    s+='.amdgcn_target "amdgcn-amd-amdhsa--gfx950"\n.text\n'
    s+=func(k1,e.txt())
    s+='.section .rodata,"a"\n.p2align 6\n'+kd(k1,128,102)
    return s
if __name__=="__main__":
    mode=sys.argv[1]; out=sys.argv[2]
    args=[a for a in sys.argv[3:] if not a.startswith("-")]
    for a in sys.argv[3:]:
        if a.startswith("-"):
            k,_,v=a[1:].partition("="); OPT[k]=v or "1"
    if mode.endswith("_diag"):
        DIAG=True; gen.DIAG=True
    gen.FUSED=True
    open(out,"w").write(fused(*args))
```
